```python
import torch

def _softmax(x, axis=-1):
    return torch.softmax(x, dim=axis)
def _gelu(x):
    return torch.nn.functional.gelu(x, approximate="tanh")
def _silu(x):
    return torch.nn.functional.silu(x)
def _sigmoid(x):
    return torch.sigmoid(x)
def _layernorm(x, axis=-1, eps=1e-5):
    m = x.mean(dim=axis, keepdim=True)
    v = x.var(dim=axis, keepdim=True, unbiased=False)
    return (x - m) / torch.sqrt(v + eps)
def _scatter_add(tgt, idx, src, axis=0):
    return tgt.clone().index_add_(axis, idx, src)
def _segment_sum(src, seg, n):
    out = torch.zeros((n,) + src.shape[1:], dtype=src.dtype)
    return out.index_add_(0, seg, src)
def _pad(x, pw):
    flat = tuple(v for pair in reversed(pw) for v in pair)
    return torch.nn.functional.pad(x, flat)

kernel_name = 'standalone__paged_block_table_kv_radixattention__decode'

def setup_inputs():

    _w = (lambda a: (lambda t: t.to(torch.bfloat16) if t.is_floating_point() else t)(torch.as_tensor(a)))
    B, H, Hkv, Dh = 4, 16, 8, 256
    Lk = 4096
    bs = 16
    nb = max(2, Lk // bs)
    P = max(1, nb // 2)
    n_phys = P + B * (nb - P)
    shared = torch.arange(P, dtype=torch.int64)
    priv = P + torch.arange(B * (nb - P), dtype=torch.int64).reshape(B, nb - P)
    bt = torch.cat([torch.tile(shared[None, :], (B, 1)), priv], dim=1)
    ctx = nb * bs - (torch.arange(1, B + 1, dtype=torch.int64) * 2654435761) % max(1, (nb * bs - P * bs) // 2)
    return {
        "q": _w((lambda *s: torch.randn(*s, dtype=torch.bfloat16) * 0.8)(B, H, Dh)),
        "k_cache": _w((lambda *s: torch.randn(*s, dtype=torch.bfloat16) * 0.8)(n_phys, bs, Hkv, Dh)),
        "v_cache": _w((lambda *s: torch.randn(*s, dtype=torch.bfloat16) * 0.05)(n_phys, bs, Hkv, Dh)),
        "block_table": _w(bt.to(torch.int64)),
        "ctx_lens": _w(torch.as_tensor(ctx).to(torch.int64)),
    }

def reference(q, k_cache, v_cache, block_table, ctx_lens):
    B, H, Dh = q.shape
    n_phys, bs, Hkv, _ = k_cache.shape
    nb = block_table.shape[1]
    Lk = nb * bs
    rep = H // Hkv
    k = k_cache[block_table].reshape(B, Lk, Hkv, Dh)
    v = v_cache[block_table].reshape(B, Lk, Hkv, Dh)
    k = (lambda x, n, axis: torch.repeat_interleave(x, n, dim=axis))(k, rep, axis=2)
    v = (lambda x, n, axis: torch.repeat_interleave(x, n, dim=axis))(v, rep, axis=2)
    scores = torch.einsum("bhd,bkhd->bhk", q, k) * (Dh ** -0.5)
    pos = torch.arange(Lk)
    valid = pos[None, :] < ctx_lens[:, None]
    scores = torch.where(valid[:, None, :], scores, -1e9)
    p = _softmax(scores, axis=-1)
    return torch.einsum("bhk,bkhd->bhd", p, v)
```

```python
import sys, math, argparse
NAME = "standalone__paged_block_table_kv_radixattention__decode_kernel"
HEADER = open("standalone__paged_block_table_kv_radixattention__decode.s.ref").read().split("; Override launch")[0]

S = 128
NBLK = [229, 202, 239, 212]
SLOT = 8448
KVBYTES = 41943040
CF = math.log2(math.e) / 16.0
import struct
def f2u(x): return struct.unpack("<I", struct.pack("<f", x))[0]

class Cfg:
    segs = [(-1, 32), (0, 26), (1, 19), (2, 29), (3, 22)]
    stamps = False
    lds = 84 * 1024
    st_flags = "sc0 sc1"
    ld_flags = "sc1"
    delay_test = False
    spin = 20000

def partition(cfg):
    ws = []; acc = 0
    for b, nw in cfg.segs:
        n = S if b < 0 else NBLK[b] - S
        M = -(-65536 * n // nw)
        for k in range(nw + 1):
            assert (k * M) >> 16 == (k * n) // nw, (b, k)
            if k: assert ((k * M) >> 16) - (((k - 1) * M) >> 16) <= 4
        ws.append((b, acc, nw, M)); acc += nw
    assert acc == 128
    seg_of_wave = []
    for b, st, nw, M in ws: seg_of_wave += [b] * nw
    return ws, seg_of_wave

sWG, sWAVE = 2, 3
sQ, sK, sV, sBT, sCTX, sOUT, sDBG, sWS = 4, 6, 8, 10, 12, 14, 16, 18
sKSRD, sVSRD = 20, 24
sH, sSPL, sB, sJ0, sJ1, sSH = 32, 33, 34, 35, 36, 37
sSOFF, sM0A, sM0B, sCNT, sI, sINX, sCOL, sH512 = 38, 39, 40, 41, 42, 43, 44, 45
sC, sT0, sT1, sT2, sT3, sSPEC, sFB = 46, 47, 48, 49, 50, 51, 56
sLM = 52
sONE = 54
sCM = 57
sSLOT = 58
sMK = 60
sFL = 68
sEX = 76
sHB = 84
sST = 86

vLANE, vN, vG = 1, 2, 3
vKOFF = 4
vVOFF = 12
vKRD = 16
vMSK = 20
vTAB, vCOL, vCTXG, vM, vL, vLIM, vT, vU, vAL, vNMC, vF, vL16 = 24, 25, 26, 27, 28, 29, 30, 31, 32, 33, 34, 35
vS = 36
vP = 40
vNINF = 44
vHA = 45
vW = 46
vA = 48
vKF = 64
vVF = 96
vQF = 128
vACC = 160
vRA = 192
vRD = 96
NV = 196
LDS_Q = 32768
LDS_H = 36864
LDS_Z = 37120

def vr(b, n=4): return f"v[{b}:{b+n-1}]"
def sr(b, n=2): return f"s[{b}:{b+n-1}]"

def gen(cfg):
    L = []
    e = L.append
    ws, seg_of_wave = partition(cfg)
    nst = [0]
    def stamp(k):
        if cfg.stamps: e(f"s_memrealtime {sr(sST+2*k)}")
    e(HEADER.rstrip())
    e(f"; @launch grid=(256,1,1) block=(256,1,1) lds={cfg.lds}")
    e('.amdgcn_target "amdgcn-amd-amdhsa--gfx950"')
    e(".text"); e(f".globl {NAME}"); e(".p2align 8"); e(f".type {NAME},@function"); e(f"{NAME}:")
    stamp(0)
    e(f"s_load_dwordx16 s[4:19], s[0:1], 0")
    e("s_cmp_ge_u32 s2, 256"); e("s_cbranch_scc1 L_end")
    e(f"v_lshrrev_b32 v{vT}, 6, v0")
    e(f"v_and_b32 v{vLANE}, 63, v0")
    e(f"v_readfirstlane_b32 s{sWAVE}, v{vT}")
    e(f"s_and_b32 s{sH}, s2, 7"); e(f"s_lshr_b32 s{sSPL}, s2, 3")
    e(f"s_lshl_b32 s{sH512}, s{sH}, 9")
    e(f"v_lshrrev_b32 v{vT}, 5, v{vLANE}")
    e(f"v_and_b32 v{vU}, 31, v{vLANE}")
    e(f"v_xor_b32 v{vU}, v{vU}, v{vT}")
    e(f"v_lshlrev_b32 v{vU}, 4, v{vU}")
    e(f"v_lshl_or_b32 v{vKOFF}, v{vT}, 12, v{vU}")
    e(f"s_lshl_b32 s{sT0}, s{sSPL}, 2"); e(f"s_add_u32 s{sT0}, s{sT0}, s{sWAVE}")
    def pack(b, st, nw): return st | ((st + nw - 1) << 8) | ((max(b, 0)) << 16) | ((0 if b < 0 else 1) << 24)
    b, st, nw, M = ws[0]
    e(f"s_mov_b32 s{sT1}, {pack(b, st, nw)}"); e(f"s_mov_b32 s{sT2}, {M}")
    for b, st, nw, M in ws[1:]:
        e(f"s_cmp_ge_u32 s{sT0}, {st}")
        e(f"s_cselect_b32 s{sT1}, {pack(b, st, nw)}, s{sT1}")
        e(f"s_cselect_b32 s{sT2}, {M}, s{sT2}")
    e(f"s_and_b32 s{sT3}, s{sT1}, 0xff")
    e(f"s_sub_u32 s{sT3}, s{sT0}, s{sT3}")
    e(f"s_mul_i32 s{sT3}, s{sT3}, s{sT2}")
    e(f"s_lshr_b32 s{sJ0}, s{sT3}, 16")
    e(f"s_add_u32 s{sT3}, s{sT3}, s{sT2}")
    e(f"s_lshr_b32 s{sJ1}, s{sT3}, 16")
    e(f"s_bfe_u32 s{sB}, s{sT1}, 0x80010")
    e(f"s_lshr_b32 s{sSH}, s{sT1}, 24")
    e(f"s_lshl_b32 s{sT2}, s{sSH}, 7")
    e(f"s_add_u32 s{sJ0}, s{sJ0}, s{sT2}"); e(f"s_add_u32 s{sJ1}, s{sJ1}, s{sT2}")
    e(f"s_lshl_b32 s{sT2}, s{sB}, 7")
    e(f"s_add_u32 s{sSPEC}, s{sJ0}, s{sT2}")
    e(f"s_lshl_b32 s{sSOFF}, s{sSPEC}, 16"); e(f"s_add_u32 s{sSOFF}, s{sSOFF}, s{sH512}")
    e(f"s_lshl_b32 s{sM0A}, s{sWAVE}, 13"); e(f"s_add_u32 s{sM0B}, s{sM0A}, 4096")
    for j in range(1, 8):
        e(f"v_xor_b32 v{vKOFF+j}, {32*j}, v{vKOFF}")
        e(f"v_add_u32 v{vKOFF+j}, {8192*j - (j&3)*1024}, v{vKOFF+j}")
    e(f"s_mov_b32 s{sKSRD+2}, {KVBYTES}"); e(f"s_mov_b32 s{sKSRD+3}, 0x20000")
    e(f"s_mov_b32 s{sVSRD+2}, {KVBYTES}"); e(f"s_mov_b32 s{sVSRD+3}, 0x20000")
    e(f"s_mov_b32 m0, s{sM0A}")
    e(f"v_and_b32 v{vN}, 15, v{vLANE}"); e(f"v_lshrrev_b32 v{vG}, 4, v{vLANE}")
    e(f"v_lshlrev_b32 v{vVOFF}, 4, v{vN}"); e(f"v_lshl_or_b32 v{vVOFF}, v{vG}, 14, v{vVOFF}")
    for r in range(1, 4): e(f"v_add_u32 v{vVOFF+r}, {4096*r}, v{vVOFF}")
    e("s_waitcnt lgkmcnt(0)")
    stamp(1)
    e(f"s_mov_b32 s{sKSRD}, s{sK}"); e(f"s_mov_b32 s{sKSRD+1}, s{sK+1}")
    e(f"s_mov_b32 s{sVSRD}, s{sV}"); e(f"s_mov_b32 s{sVSRD+1}, s{sV+1}")
    def kloads(m0_set):
        for j in range(8):
            if j == 0 and not m0_set:
                e(f"s_mov_b32 m0, s{sM0A}"); e("s_nop 0")
            if j == 4:
                e(f"s_mov_b32 m0, s{sM0B}"); e("s_nop 0")
            e(f"buffer_load_dwordx4 v{vKOFF+j}, {sr(sKSRD,4)}, s{sSOFF} offen offset:{(j&3)*1024} nt lds")
    def vload(r, hf):
        e(f"buffer_load_dwordx4 {vr(vVF+8*r+4*hf)}, v{vVOFF+r}, {sr(sVSRD,4)}, s{sSOFF} offen offset:{256*hf} nt")
    if cfg.delay_test:
        e(f"s_cmp_lt_u32 s2, 200"); e("s_cbranch_scc1 L_nodelay")
        e(f"s_mov_b32 s{sT2}, 400"); e("L_dl:"); e("s_sleep 8"); e(f"s_sub_u32 s{sT2}, s{sT2}, 1"); e(f"s_cmp_lg_u32 s{sT2}, 0"); e("s_cbranch_scc1 L_dl"); e("L_nodelay:")
    kloads(True)
    e(f"s_bfe_u32 s{sT2}, s{sT1}, 0x80008")
    e(f"s_cmp_eq_u32 s{sT2}, s{sT0}")
    e(f"s_cselect_b32 s{sT2}, s{sSH}, 0")
    e(f"s_cmp_eq_u32 s{sT2}, 1")
    e(f"s_cselect_b32 s{sJ1}, 256, s{sJ1}")
    e(f"v_lshrrev_b32 v{vT}, 5, v{vLANE}")
    e(f"s_lshl_b32 s{sT2}, s{sWAVE}, 2")
    e(f"v_lshl_add_u32 v{vU}, v{vT}, 1, s{sT2}")
    e(f"v_xor_b32 v{vU}, v{vU}, v{vLANE}")
    e(f"s_lshl_b32 s{sT2}, s{sH}, 10"); e(f"s_add_u32 s{sT2}, s{sT2}, s{sM0A}")
    e(f"v_lshl_add_u32 v{vU}, v{vU}, 4, s{sT2}")
    e(f"s_lshl_b32 s{sT2}, s{sWAVE}, 10"); e(f"s_add_u32 m0, s{sT2}, {LDS_Q}")
    e(f"s_cmp_eq_u32 s{sSH}, 0")
    e(f"s_cselect_b32 s{sT2}, 3, 0")
    e(f"s_cselect_b32 s{sT3}, 3, 63")
    e(f"global_load_lds_dwordx4 v{vU}, {sr(sQ)}")
    e(f"v_and_b32 v{vCOL}, s{sT3}, v{vLANE}")
    e(f"v_add_u32 v{vCOL}, s{sJ0}, v{vCOL}")
    e(f"v_lshrrev_b32 v{vT}, 2, v{vLANE}")
    e(f"v_and_b32 v{vT}, s{sT2}, v{vT}")
    e(f"v_or_b32 v{vT}, s{sB}, v{vT}")
    e(f"v_min_u32 v{vU}, 255, v{vCOL}")
    e(f"v_lshl_or_b32 v{vU}, v{vT}, 8, v{vU}")
    e(f"v_lshlrev_b32 v{vU}, 2, v{vU}")
    e(f"global_load_dword v{vTAB}, v{vU}, {sr(sBT)}")
    e(f"v_and_b32 v{vF}, s{sT2}, v{vLANE}")
    e(f"v_or_b32 v{vF}, s{sB}, v{vF}")
    e(f"v_lshlrev_b32 v{vU}, 2, v{vF}")
    e(f"global_load_dword v{vCTXG}, v{vU}, {sr(sCTX)}")
    cms = []
    for s in range(32):
        m = 0
        for w in range(4):
            sg = seg_of_wave[4 * s + w]
            for p in range(4):
                if sg < 0 or sg == p: m |= 1 << (4 * p + w)
        cms.append(m)
    e(f"s_mov_b32 s{sCM}, {cms[0]}")
    for s in range(1, 32):
        if cms[s] != cms[s - 1]:
            e(f"s_cmp_ge_u32 s{sSPL}, {s}"); e(f"s_cselect_b32 s{sCM}, {cms[s]}, s{sCM}")
    e(f"s_lshl_b32 s{sT2}, s{sWAVE}, 2")
    e(f"s_lshr_b32 s{sCM}, s{sCM}, s{sT2}"); e(f"s_and_b32 s{sCM}, s{sCM}, 15")
    e(f"s_mul_i32 s{sT2}, s{sH}, {32*SLOT}")
    e(f"s_add_u32 s{sHB}, s{sWS}, s{sT2}"); e(f"s_addc_u32 s{sHB+1}, s{sWS+1}, 0")
    e(f"s_mul_i32 s{sT2}, s{sSPL}, {SLOT}")
    e(f"s_add_u32 s{sSLOT}, s{sHB}, s{sT2}"); e(f"s_addc_u32 s{sSLOT+1}, s{sHB+1}, 0")
    e(f"s_lshl_b32 s{sT2}, s{sWAVE}, 11")
    e(f"v_lshl_add_u32 v{vL16}, v{vLANE}, 4, s{sT2}")
    for k in range(4): e(f"v_mov_b32 v{vA+k}, -1")
    e(f"s_cmp_eq_u32 s{sCM}, 0"); e("s_cbranch_scc1 L_noclear")
    e(f"global_store_dwordx4 v{vL16}, {vr(vA)}, {sr(sSLOT)} {cfg.st_flags}")
    e(f"global_store_dwordx4 v{vL16}, {vr(vA)}, {sr(sSLOT)} offset:1024 {cfg.st_flags}")
    e(f"s_lshl_b32 s{sT2}, s{sWAVE}, 4"); e(f"s_add_u32 s{sT2}, s{sT2}, 8192")
    e(f"v_mov_b32 v{vU}, s{sT2}")
    e("s_mov_b64 exec, 1")
    e(f"global_store_dwordx4 v{vU}, {vr(vA)}, {sr(sSLOT)} {cfg.st_flags}")
    e("s_mov_b64 exec, -1")
    e("L_noclear:")
    for r in range(4):
        vload(r, 0); vload(r, 1)
    stamp(2)
    e(f"s_mov_b32 s{sC}, {f2u(CF):#x}")
    e(f"s_mov_b32 s{sONE}, 0x11111111"); e(f"s_mov_b32 s{sONE+1}, 0x11111111")
    e(f"s_mov_b64 {sr(sLM)}, -1")
    e(f"s_mov_b32 s{sI}, 0"); e(f"s_mov_b32 s{sFB}, 0")
    e(f"v_mov_b32 v{vNINF}, 0xff800000")
    e(f"v_mov_b32 v{vM}, {f2u(-1e30):#x}"); e(f"v_mov_b32 v{vL}, 0")
    e(f"v_lshlrev_b32 v{vT}, 9, v{vN}"); e(f"v_add_u32 v{vT}, s{sM0A}, v{vT}")
    e(f"v_xor_b32 v{vU}, v{vG}, v{vN}")
    for k in range(4):
        e(f"v_xor_b32 v{vKRD+k}, {4*k}, v{vU}")
        e(f"v_lshl_add_u32 v{vKRD+k}, v{vKRD+k}, 4, v{vT}")
    e(f"v_and_b32 v{vT}, 1, v{vLANE}"); e(f"v_lshlrev_b32 v{vT}, 4, v{vT}")
    e(f"v_mov_b32 v{vU}, 0xffff"); e(f"v_lshlrev_b32 v{vT}, v{vT}, v{vU}")
    e(f"v_bfe_u32 v{vU}, v{vLANE}, 1, 2")
    for k in range(4):
        e(f"v_cmp_eq_u32 {sr(sMK+2*k)}, {k}, v{vU}")
    e("s_nop 0")
    for k in range(4):
        e(f"v_cndmask_b32 v{vMSK+k}, 0, v{vT}, {sr(sMK+2*k)}")
    for k in range(32): e(f"v_mov_b32 v{vACC+k}, 0")
    e(f"v_mov_b32 v{vT}, {LDS_Z}")
    e(f"ds_write_b128 v{vT}, {vr(vACC)}"); e(f"ds_write_b128 v{vT}, {vr(vACC)} offset:1024")
    for w in range(4):
        e(f"s_bitcmp1_b32 s{sCM}, {w}"); e(f"s_cselect_b64 vcc, -1, 0")
        e(f"v_add_u32 v{vU}, {8192*w}, v{vL16}")
        e(f"v_cndmask_b32 v{vRA+w}, v{vT}, v{vU}, vcc")
    e(f"v_and_b32 v{vT}, 3, v{vN}"); e(f"v_lshrrev_b32 v{vU}, 3, v{vN}")
    e(f"v_lshl_add_u32 v{vT}, v{vT}, 1, v{vU}")
    e(f"s_lshl_b32 s{sT2}, s{sWAVE}, 3"); e(f"s_add_u32 s{sT2}, s{sT2}, {LDS_H}")
    e(f"v_lshl_add_u32 v{vHA}, v{vT}, 5, s{sT2}")
    e(f"v_lshl_add_u32 v{vT}, v{vF}, 1, v{vU}")
    e(f"v_lshlrev_b32 v{vU}, 1, v{vT}"); e(f"v_xor_b32 v{vU}, v{vU}, v{vG}")
    e(f"v_lshlrev_b32 v{vT}, 9, v{vT}"); e(f"v_add_u32 v{vT}, {LDS_Q}, v{vT}")
    for k in range(4):
        e(f"v_xor_b32 v{vA+4+k}, {4*k}, v{vU}")
        e(f"v_lshl_add_u32 v{vA+4+k}, v{vA+4+k}, 4, v{vT}")
    e("s_waitcnt vmcnt(8)")
    stamp(3)
    e("s_barrier")
    for i in range(8):
        e(f"ds_read_b128 {vr(vQF+4*i)}, v{vA+4+(i&3)} offset:{256*(i>>2)}")
    e(f"s_cmp_lg_u32 s{sWAVE}, 0"); e("s_cbranch_scc1 L_noflag")
    e(f"s_lshl_b32 s{sT2}, s{sH}, 5"); e(f"s_add_u32 s{sT2}, s{sT2}, s{sSPL}")
    e(f"v_mov_b32 v{vT}, s{sT2}"); e(f"v_mov_b32 v{vU}, 1")
    e("s_mov_b64 exec, 1")
    e(f"global_store_byte v{vT}, v{vU}, {sr(sDBG)} sc0 sc1")
    e("s_mov_b64 exec, -1")
    e("L_noflag:")
    e(f"v_min_u32 v{vTAB}, 639, v{vTAB}")
    e(f"v_cmp_gt_i32 vcc, 1, v{vCTXG}")
    e(f"v_min_i32 v{vCTXG}, 4096, v{vCTXG}")
    e(f"v_readfirstlane_b32 s{sT0}, v{vTAB}")
    e("s_cbranch_vccnz L_zeroctx")
    e("L_zeroctx_ret:")
    e(f"v_readfirstlane_b32 s{sT1}, v{vCTXG}")
    e(f"v_mov_b32_dpp v{vT}, v{vTAB} row_shr:4 row_mask:0xf bank_mask:0xf bound_ctrl:0")
    e(f"v_cmp_le_u32 vcc, s{sJ1}, v{vCOL}")
    e(f"v_lshlrev_b32 v{vU}, 2, v{vG}")
    e(f"v_sub_u32 v{vCTXG}, v{vCTXG}, v{vU}")
    e(f"v_mov_b32 v{vU}, 256")
    e(f"v_cndmask_b32 v{vCOL}, v{vCOL}, v{vU}, vcc")
    e(f"v_lshlrev_b32 v{vCOL}, 4, v{vCOL}")
    e(f"s_cmp_lg_u32 s{sT0}, s{sSPEC}")
    e("s_cbranch_scc1 L_respec")
    e("L_respec_ret:")
    e("s_waitcnt lgkmcnt(0)")
    e(f"s_cmp_eq_u32 s{sSH}, 0")
    e("s_cbranch_scc1 L_sh_setup")
    e(f"s_add_u32 s{sT1}, s{sT1}, 15"); e(f"s_lshr_b32 s{sT1}, s{sT1}, 4")
    e(f"s_min_u32 s{sT1}, s{sT1}, s{sJ1}")
    e(f"s_sub_i32 s{sCNT}, s{sT1}, s{sJ0}"); e(f"s_max_i32 s{sCNT}, s{sCNT}, 1")
    e("s_branch L_pr_first")

    def loop(tag, pairs):
        shared = len(pairs) > 1
        e(f"L_{tag}_loop:")
        e("s_waitcnt vmcnt(8)")
        e(f"L_{tag}_first:")
        for i in range(8):
            e(f"ds_read_b128 {vr(vKF+4*i)}, v{vKRD+(i&3)} offset:{256*(i>>2)}")
        e(f"s_add_u32 s{sINX}, s{sI}, 1")
        e(f"v_readlane_b32 s{sCOL}, v{vCOL}, s{sI}")
        e(f"v_readlane_b32 s{sSOFF}, v{vTAB}, s{sINX}")
        if shared:
            e(f"s_lshr_b32 s{sT2}, s{sI}, 2")
            e(f"s_lshl_b64 {sr(sLM)}, {sr(sONE)}, s{sT2}")
            e(f"s_cmp_eq_u32 s{sFB}, 0")
            e(f"s_cselect_b64 {sr(sLM)}, -1, {sr(sLM)}")
        else:
            e("s_nop 1")
        e(f"v_subrev_u32 v{vLIM}, s{sCOL}, v{vCTXG}")
        e(f"s_lshl_b32 s{sSOFF}, s{sSOFF}, 16"); e(f"s_add_u32 s{sSOFF}, s{sSOFF}, s{sH512}")
        if shared:
            e(f"v_cndmask_b32 v{vLIM}, 0, v{vLIM}, {sr(sLM)}")
        for r in range(4):
            e(f"v_cmp_lt_i32 {sr(sMK+2*r)}, {r}, v{vLIM}")
        e(f"s_mov_b32 s{sI}, s{sINX}")
        e(f"s_mov_b32 m0, s{sM0A}")
        e(f"s_cmp_ge_u32 s{sINX}, s{sCNT}")
        for i in range(8):
            e(f"s_waitcnt lgkmcnt({7-i})")
            e(f"v_mfma_f32_16x16x32_bf16 {vr(vS)}, {vr(vKF+4*i)}, {vr(vQF+4*i)}, " + ("0" if i == 0 else vr(vS)))
        e(f"s_cbranch_scc1 L_{tag}_skipk")
        kloads(True)
        e(f"L_{tag}_sm:")
        for r in range(4):
            e(f"v_cndmask_b32 v{vS+r}, v{vNINF}, v{vS+r}, {sr(sMK+2*r)}")
        e(f"v_max3_f32 v{vT}, v{vS}, v{vS+1}, v{vS+2}")
        e(f"v_max3_f32 v{vT}, v{vT}, v{vS+3}, v{vM}")
        e(f"v_mov_b32 v{vU}, v{vT}"); e("s_nop 1")
        e(f"v_permlane32_swap_b32 v{vT}, v{vU}"); e("s_nop 0")
        e(f"v_max_f32 v{vT}, v{vT}, v{vU}")
        e(f"v_mov_b32 v{vU}, v{vT}"); e("s_nop 1")
        e(f"v_permlane16_swap_b32 v{vT}, v{vU}"); e("s_nop 0")
        e(f"v_max_f32 v{vT}, v{vT}, v{vU}")
        e(f"v_sub_f32 v{vAL}, v{vM}, v{vT}")
        e(f"v_mul_f32 v{vNMC}, s{sC}, v{vT}")
        e(f"v_mul_f32 v{vAL}, s{sC}, v{vAL}")
        e(f"v_mov_b32 v{vM}, v{vT}")
        e(f"v_exp_f32 v{vAL}, v{vAL}")
        for r in range(4):
            e(f"v_fma_f32 v{vS+r}, v{vS+r}, s{sC}, -v{vNMC}")
        for r in range(4):
            e(f"v_exp_f32 v{vS+r}, v{vS+r}")
        for p in pairs:
            e(f"v_mov_b32_dpp v{vA+p}, v{vAL} row_newbcast:{p} row_mask:0x3 bank_mask:0xf")
            e(f"v_mov_b32_dpp v{vA+p}, v{vAL} row_newbcast:{8+p} row_mask:0xc bank_mask:0xf")
        e(f"v_fma_f32 v{vL}, v{vL}, v{vAL}, v{vS}")
        e(f"v_add_f32 v{vT}, v{vS+1}, v{vS+2}")
        for r in range(4):
            e(f"v_cvt_pk_bf16_f32 v{vP+r}, v{vS+r}, v{vS+r}")
        e(f"v_add_f32 v{vL}, v{vL}, v{vS+3}")
        e(f"v_add_f32 v{vL}, v{vL}, v{vT}")
        for p in pairs:
            for k in range(8):
                e(f"v_mul_f32 v{vACC+8*p+k}, v{vACC+8*p+k}, v{vA+p}")
        for r in range(4):
            for p in pairs:
                for k in range(4):
                    if shared:
                        e(f"v_and_b32_dpp v{vA+4*p+k}, v{vP+r}, v{vMSK+k} quad_perm:[{p},{p},{p},{p}] row_mask:0xf bank_mask:0xf")
                    else:
                        e(f"v_and_b32 v{vA+4*(r&1)+k}, v{vP+r}, v{vMSK+k}")
            e(f"s_cbranch_scc1 L_{tag}_last{r}")
            if r > 0:
                vload(r - 1, 0); vload(r - 1, 1)
            e("s_waitcnt vmcnt(14)")
            if r == 0: e("s_nop 0")
            e(f"L_{tag}_pv{r}:")
            for hf in range(2):
                for p in pairs:
                    a = vA + 4 * p if shared else vA + 4 * (r & 1)
                    e(f"v_mfma_f32_16x16x32_bf16 {vr(vACC+8*p+4*hf)}, {vr(a)}, {vr(vVF+8*r+4*hf)}, {vr(vACC+8*p+4*hf)}")
        e(f"s_cbranch_scc1 L_{tag}_done")
        vload(3, 0); vload(3, 1)
        e(f"s_branch L_{tag}_loop")
        e(f"L_{tag}_skipk:")
        e(f"s_lshl_b32 s{sT2}, s{sH}, 5")
        e(f"s_load_dwordx8 {sr(sFL,8)}, {sr(sDBG)}, s{sT2}")
        e("s_cmp_eq_u32 s2, s2")
        e("s_nop 4")
        e(f"s_branch L_{tag}_sm")
        e(f"L_{tag}_last0:")
        e(f"v_mov_b32 v{vU}, v{vL}"); e("s_nop 1")
        e(f"v_permlane32_swap_b32 v{vL}, v{vU}"); e("s_nop 0")
        e(f"v_add_f32 v{vL}, v{vL}, v{vU}")
        e(f"v_mov_b32 v{vU}, v{vL}"); e("s_nop 1")
        e(f"v_permlane16_swap_b32 v{vL}, v{vU}"); e("s_nop 0")
        if shared:
            e(f"v_add_f32 v{vW+1}, v{vL}, v{vU}")
            e(f"v_mov_b32 v{vW}, v{vM}")
        else:
            e(f"v_add_f32 v{vL}, v{vL}, v{vU}")
            e(f"v_and_b32 v{vU}, 3, v{vN}")
            e(f"v_cmp_eq_u32 vcc, s{sB}, v{vU}")
            e(f"v_mov_b32 v{vU}, {f2u(-1e30):#x}")
            e("s_nop 0")
            e(f"v_cndmask_b32 v{vW}, v{vU}, v{vM}, vcc")
            e(f"v_cndmask_b32 v{vW+1}, 0, v{vL}, vcc")
            e(f"v_mov_b32 v{vT}, s{sB}")
            e(f"v_lshlrev_b32 v{vT}, 11, v{vT}")
            e(f"v_lshl_add_u32 v{vT}, v{vLANE}, 4, v{vT}")
        if shared:
            e(f"v_lshlrev_b32 v{vT}, 4, v{vLANE}")
        e(f"v_add_u32 v{vLIM}, s{sM0A}, v{vT}")
        e(f"ds_write_b64 v{vHA}, {vr(vW,2)}")
        e("s_waitcnt vmcnt(6)")
        e(f"s_branch L_{tag}_pv0")
        for r in range(1, 4):
            e(f"L_{tag}_last{r}:")
            e(f"s_waitcnt vmcnt({6-2*r})")
            e(f"s_branch L_{tag}_pv{r}")
        e(f"L_{tag}_done:")
        stamp(4)
        order = [(p, hf) for hf in range(2) for p in pairs]
        e("s_nop 7" if not shared else "s_nop 1")
        for n, (p, hf) in enumerate(order):
            e(f"ds_write_b128 v{vLIM}, {vr(vACC+8*p+4*hf)} offset:{2048*p+1024*hf}")
        if not shared: e("s_branch L_reduce")

    loop("pr", [0])
    e("L_sh_setup:")
    e(f"v_cmp_ne_u32 vcc, v{vT}, v{vTAB}")
    e(f"s_sub_u32 s{sCNT}, s{sJ1}, s{sJ0}")
    e("s_nop 3")
    e(f"s_and_b32 s{sFB}, vcc_lo, 0xfff0")
    e(f"s_cselect_b32 s{sCNT}, 16, s{sCNT}")
    e("s_branch L_sh_first")
    loop("sh", [0, 1, 2, 3])

    e("L_reduce:")
    e(f"v_lshrrev_b32 v{vT}, 1, v{vG}")
    e(f"s_lshl_b32 s{sT2}, s{sWAVE}, 6"); e(f"s_add_u32 s{sT2}, s{sT2}, {LDS_H}")
    e(f"v_lshl_add_u32 v{vU}, v{vT}, 5, s{sT2}")
    e(f"s_lshl_b32 s{sT2}, s{sWAVE}, 4"); e(f"s_add_u32 s{sT2}, s{sT2}, 8192")
    e(f"v_lshl_add_u32 v{vF}, v{vT}, 3, s{sT2}")
    e("s_waitcnt lgkmcnt(0)")
    e("s_barrier")
    stamp(5)
    e(f"s_cmp_eq_u32 s{sCM}, 0"); e("s_cbranch_scc1 L_consume")
    e(f"ds_read_b128 {vr(vA)}, v{vU}"); e(f"ds_read_b128 {vr(vA+4)}, v{vU} offset:16")
    for w in range(4):
        e(f"ds_read_b128 {vr(vRD+8*w)}, v{vRA+w}")
        e(f"ds_read_b128 {vr(vRD+8*w+4)}, v{vRA+w} offset:1024")
    e("s_waitcnt lgkmcnt(8)")
    e(f"v_max3_f32 v{vW}, v{vA}, v{vA+2}, v{vA+4}")
    e(f"v_max_f32 v{vW}, v{vW}, v{vA+6}")
    for w in range(4): e(f"v_sub_f32 v{vA+2*w}, v{vA+2*w}, v{vW}")
    for w in range(4): e(f"v_mul_f32 v{vA+2*w}, s{sC}, v{vA+2*w}")
    for w in range(4): e(f"v_exp_f32 v{vA+2*w}, v{vA+2*w}")
    e(f"v_min_u32 v{vW}, -2, v{vW}")
    e(f"v_mul_f32 v{vW+1}, v{vA}, v{vA+1}")
    for w in range(1, 4): e(f"v_fmac_f32 v{vW+1}, v{vA+2*w}, v{vA+2*w+1}")
    e("s_waitcnt lgkmcnt(6)")
    for k in range(8): e(f"v_mul_f32 v{vKF+k}, v{vA}, v{vRD+k}")
    e(f"v_min_u32 v{vW+1}, -2, v{vW+1}")
    for w in range(1, 4):
        e(f"s_waitcnt lgkmcnt({6-2*w})")
        for k in range(8): e(f"v_fmac_f32 v{vKF+k}, v{vA+2*w}, v{vRD+8*w+k}")
    for k in range(8): e(f"v_min_u32 v{vKF+k}, -2, v{vKF+k}")
    e(f"global_store_dwordx4 v{vL16}, {vr(vKF)}, {sr(sSLOT)} {cfg.st_flags}")
    e(f"global_store_dwordx4 v{vL16}, {vr(vKF+4)}, {sr(sSLOT)} offset:1024 {cfg.st_flags}")
    e("s_mov_b32 exec_lo, 1"); e("s_mov_b32 exec_hi, 1")
    e(f"global_store_dwordx2 v{vF}, {vr(vW,2)}, {sr(sSLOT)} {cfg.st_flags}")
    e("s_mov_b64 exec, -1")

    nsh = [s for s in range(32) if any(seg_of_wave[4*s+w] < 0 for w in range(4))]
    assert nsh == list(range(len(nsh)))
    a = len(nsh)
    lo = []; hi = []
    for p in range(4):
        sl = [s for s in range(32) if any(seg_of_wave[4*s+w] == p for w in range(4)) and s >= a]
        assert sl == list(range(sl[0], sl[-1] + 1)) and a + len(sl) <= 16, (p, sl)
        lo.append(sl[0]); hi.append(sl[-1] + 1)
    cw_switch = min(s for s in range(32) if cms[s] >> 12 and s >= a)
    e("L_consume:")
    stamp(6)
    e(f"s_cmp_ge_u32 s{sSPL}, {cw_switch}"); e(f"s_cselect_b32 s{sT2}, 0, 3")
    e(f"s_cmp_lg_u32 s{sWAVE}, s{sT2}"); e("s_cbranch_scc1 L_fin")
    e(f"s_and_b32 s{sT2}, s{sFL}, s{sFL+1}")
    for k in range(2, 8): e(f"s_and_b32 s{sT2}, s{sT2}, s{sFL+k}")
    e(f"s_cmp_lg_u32 s{sT2}, 0x01010101"); e("s_cbranch_scc1 L_flagwait")
    e("L_flagok:")
    e(f"s_lshr_b32 s{sT0}, s{sSPL}, 3")
    lop = sum((lo[p] - a) << (8 * p) for p in range(4)); hip_ = sum(hi[p] << (8 * p) for p in range(4))
    e(f"s_lshl_b32 s{sT1}, s{sT0}, 3")
    e(f"s_lshr_b32 s{sT2}, {lop:#x}, s{sT1}"); e(f"s_and_b32 s{sT2}, s{sT2}, 0xff")
    e(f"s_lshr_b32 s{sT3}, {hip_:#x}, s{sT1}"); e(f"s_and_b32 s{sT3}, s{sT3}, 0xff")
    e(f"s_lshl_b32 s{sI}, s{sT0}, 11")
    e(f"s_bfe_u32 s{sINX}, s{sSPL}, 0x10001"); e(f"s_lshl_b32 s{sCOL}, s{sINX}, 10"); e(f"s_add_u32 s{sI}, s{sI}, s{sCOL}")
    e(f"s_bfe_u32 s{sCNT}, s{sSPL}, 0x10002"); e(f"s_lshl_b32 s{sCOL}, s{sCNT}, 9"); e(f"s_add_u32 s{sI}, s{sI}, s{sCOL}")
    e(f"s_and_b32 s{sSOFF}, s{sSPL}, 1"); e(f"s_lshl_b32 s{sCOL}, s{sSOFF}, 7"); e(f"s_add_u32 s{sI}, s{sI}, s{sCOL}")
    e(f"v_and_b32 v{vT}, 7, v{vN}"); e(f"v_lshrrev_b32 v{vU}, 3, v{vN}")
    e(f"v_lshlrev_b32 v{vL}, 4, v{vT}"); e(f"v_lshl_add_u32 v{vL}, v{vU}, 8, v{vL}"); e(f"v_add_u32 v{vL}, s{sI}, v{vL}")
    e(f"s_lshr_b32 s{sCOL}, s{sSPL}, 2"); e(f"s_lshl_b32 s{sCOL}, s{sCOL}, 3"); e(f"s_add_u32 s{sCOL}, s{sCOL}, 8192")
    e(f"s_mov_b32 s{sSPEC}, {SLOT}")
    D, H, DA, HA = vQF, vQF + 16, vQF + 24, vQF + 28
    for k in range(4):
        e(f"v_add_u32 v{vM}, {4*k}, v{vG}")
        if 4 * k + 3 >= a:
            e(f"v_add_u32 v{vF}, s{sT2}, v{vM}")
            if 4 * k < a:
                e(f"v_cmp_gt_u32 vcc, {a}, v{vM}"); e("s_nop 1")
                e(f"v_cndmask_b32 v{vM}, v{vF}, v{vM}, vcc")
            else:
                e(f"v_mov_b32 v{vM}, v{vF}")
            e(f"v_cmp_gt_u32 {sr(sEX+2*k)}, s{sT3}, v{vM}")
        else:
            e(f"s_mov_b64 {sr(sEX+2*k)}, -1")
        e(f"v_mul_lo_u32 v{vM}, v{vM}, s{sSPEC}")
        e(f"v_add_u32 v{DA+k}, v{vM}, v{vL}")
        e(f"v_add_u32 v{HA+k}, s{sCOL}, v{vM}")
        for j in range(4): e(f"v_mov_b32 v{D+4*k+j}, 0")
        e(f"v_mov_b32 v{H+2*k}, {f2u(-1e30):#x}"); e(f"v_mov_b32 v{H+2*k+1}, 0")
    e(f"s_lshl_b32 s{sI}, s{sT0}, 13"); e(f"s_lshl_b32 s{sCOL}, s{sH}, 10"); e(f"s_add_u32 s{sI}, s{sI}, s{sCOL}")
    e(f"s_lshl_b32 s{sCOL}, s{sCNT}, 9"); e(f"s_add_u32 s{sI}, s{sI}, s{sCOL}")
    e(f"s_and_b32 s{sCOL}, s{sSPL}, 3"); e(f"s_lshl_b32 s{sCOL}, s{sCOL}, 7"); e(f"s_add_u32 s{sI}, s{sI}, s{sCOL}")
    e(f"v_lshlrev_b32 v{vT}, 4, v{vT}"); e(f"v_lshl_add_u32 v{vT}, v{vU}, 3, v{vT}"); e(f"v_add_u32 v{vLIM}, s{sI}, v{vT}")
    e(f"s_mov_b32 s{sJ0}, {cfg.spin}")
    e("L_poll:")
    e(f"s_sub_u32 s{sJ0}, s{sJ0}, 1"); e("s_cbranch_scc1 L_fin")
    for k in range(4):
        e(f"s_mov_b64 exec, {sr(sEX+2*k)}")
        e(f"s_cbranch_execz L_pk{k}")
        e(f"global_load_dwordx4 {vr(D+4*k)}, v{DA+k}, {sr(sHB)} {cfg.ld_flags}")
        e(f"global_load_dwordx2 {vr(H+2*k,2)}, v{HA+k}, {sr(sHB)} {cfg.ld_flags}")
        e(f"L_pk{k}:")
    e("s_mov_b64 exec, -1")
    e("s_waitcnt vmcnt(0)")
    for k in range(4):
        e(f"v_max3_u32 v{vA+k}, v{D+4*k}, v{D+4*k+1}, v{D+4*k+2}")
        e(f"v_max3_u32 v{vA+4+k}, v{D+4*k+3}, v{H+2*k}, v{H+2*k+1}")
    for k in range(4):
        e(f"v_max_u32 v{vA+k}, v{vA+k}, v{vA+4+k}")
    for k in range(4):
        e(f"v_cmp_eq_u32 {sr(sEX+2*k)}, -1, v{vA+k}")
    e(f"v_max3_f32 v{vT}, v{H}, v{H+2}, v{H+4}")
    e(f"v_max_f32 v{vT}, v{vT}, v{H+6}")
    e(f"s_or_b64 {sr(sMK)}, {sr(sEX)}, {sr(sEX+2)}")
    e(f"s_or_b64 {sr(sMK+2)}, {sr(sEX+4)}, {sr(sEX+6)}")
    e(f"s_or_b64 {sr(sMK)}, {sr(sMK)}, {sr(sMK+2)}")
    e("s_cbranch_scc1 L_poll")
    stamp(7)
    e(f"v_mov_b32 v{vU}, v{vT}"); e("s_nop 1")
    e(f"v_permlane32_swap_b32 v{vT}, v{vU}"); e("s_nop 0")
    e(f"v_max_f32 v{vT}, v{vT}, v{vU}")
    e(f"v_mov_b32 v{vU}, v{vT}"); e("s_nop 1")
    e(f"v_permlane16_swap_b32 v{vT}, v{vU}"); e("s_nop 0")
    e(f"v_max_f32 v{vT}, v{vT}, v{vU}")
    for k in range(4): e(f"v_sub_f32 v{H+2*k}, v{H+2*k}, v{vT}")
    for k in range(4): e(f"v_mul_f32 v{H+2*k}, s{sC}, v{H+2*k}")
    for k in range(4): e(f"v_exp_f32 v{H+2*k}, v{H+2*k}")
    e("s_nop 0")
    for j in range(4): e(f"v_mul_f32 v{vA+j}, v{H}, v{D+j}")
    e(f"v_mul_f32 v{vA+4}, v{H}, v{H+1}")
    for k in range(1, 4):
        for j in range(4): e(f"v_fmac_f32 v{vA+j}, v{H+2*k}, v{D+4*k+j}")
        e(f"v_fmac_f32 v{vA+4}, v{H+2*k}, v{H+2*k+1}")
    for sw in ("v_permlane32_swap_b32", "v_permlane16_swap_b32"):
        for j in range(5): e(f"v_mov_b32 v{vA+8+j}, v{vA+j}")
        e("s_nop 0")
        for j in range(5): e(f"{sw} v{vA+j}, v{vA+8+j}")
        for j in range(5): e(f"v_add_f32 v{vA+j}, v{vA+j}, v{vA+8+j}")
    e(f"v_rcp_f32 v{vA+4}, v{vA+4}")
    e("s_nop 0")
    for j in range(4): e(f"v_mul_f32 v{vA+j}, v{vA+j}, v{vA+4}")
    e(f"v_cvt_pk_bf16_f32 v{vW}, v{vA}, v{vA+1}")
    e(f"v_cvt_pk_bf16_f32 v{vW+1}, v{vA+2}, v{vA+3}")
    e("s_mov_b64 exec, 0xffff")
    e(f"global_store_dwordx2 v{vLIM}, {vr(vW,2)}, {sr(sOUT)}")
    e("L_fin:")
    if cfg.stamps:
        e("s_mov_b64 exec, -1")
        e("s_waitcnt vmcnt(0)")
        e(f"s_memrealtime {sr(sMK)}")
        e("s_waitcnt lgkmcnt(0)")
        e(f"s_lshl_b32 s{sT2}, s2, 4"); e(f"s_add_u32 s{sT2}, s{sT2}, s{sWAVE}"); e(f"s_lshl_b32 s{sT2}, s{sT2}, 6")
        e(f"s_add_u32 s{sT2}, s{sT2}, 0x8000000")
        e(f"v_mov_b32 v{vT}, s{sT2}")
        e(f"s_getreg_b32 s{sT3}, hwreg(HW_REG_XCC_ID)")
        for k in range(8): e(f"v_mov_b32 v{vKF+k}, s{sST+2*k}")
        e(f"v_mov_b32 v{vKF+8}, s{sMK}"); e(f"v_mov_b32 v{vKF+9}, s{sT3}"); e(f"v_mov_b32 v{vKF+10}, 0x12345678"); e(f"v_mov_b32 v{vKF+11}, 0")
        for k in range(3):
            e(f"global_store_dwordx4 v{vT}, {vr(vKF+4*k)}, {sr(sWS)} offset:{16*k}")
    e("L_end:")
    e("s_endpgm")
    e("L_flagwait:")
    e(f"s_lshl_b32 s{sT2}, s{sH}, 5")
    e(f"v_and_b32 v{vT}, 7, v{vLANE}")
    e(f"v_lshl_add_u32 v{vT}, v{vT}, 2, s{sT2}")
    e(f"s_mov_b32 s{sJ0}, {cfg.spin}")
    e("L_fw:")
    e(f"s_sub_u32 s{sJ0}, s{sJ0}, 1"); e("s_cbranch_scc1 L_fin")
    e("s_sleep 4")
    e(f"global_load_dword v{vU}, v{vT}, {sr(sDBG)} sc0 sc1")
    e("s_waitcnt vmcnt(0)")
    e(f"v_cmp_ne_u32 vcc, 0x01010101, v{vU}")
    e("s_nop 1")
    e("s_cbranch_vccnz L_fw")
    e("s_branch L_flagok")
    e("L_respec:")
    e("s_waitcnt vmcnt(0)")
    e(f"s_lshl_b32 s{sSOFF}, s{sT0}, 16"); e(f"s_add_u32 s{sSOFF}, s{sSOFF}, s{sH512}")
    kloads(False)
    for r in range(4):
        vload(r, 0); vload(r, 1)
    e("s_waitcnt vmcnt(8)")
    e("s_branch L_respec_ret")
    e("L_zeroctx:")
    e("s_waitcnt lgkmcnt(0)")
    e("s_mov_b64 exec, vcc")
    e(f"v_mov_b32 v{vCTXG}, 4096")
    for k in range(32): e(f"v_mov_b32 v{vQF+k}, 0")
    e("s_mov_b64 exec, -1")
    e("s_nop 0")
    e("s_branch L_zeroctx_ret")
    e('.section .rodata,"a"'); e(".p2align 6"); e(f".amdhsa_kernel {NAME}")
    e(f"  .amdhsa_next_free_vgpr {NV}"); e("  .amdhsa_next_free_sgpr 102"); e(f"  .amdhsa_accum_offset {NV}")
    e("  .amdhsa_group_segment_fixed_size 0"); e("  .amdhsa_kernarg_size 64"); e("  .amdhsa_user_sgpr_count 2")
    e("  .amdhsa_user_sgpr_kernarg_segment_ptr 1"); e("  .amdhsa_system_sgpr_workgroup_id_x 1"); e(".end_amdhsa_kernel")
    out = []
    for x in L:
        if x.endswith(":") or x.startswith(".") or x.startswith(";") or x.startswith("  ."): out.append(x)
        else: out.append("    " + x)
    return "\n".join(out) + "\n"

if __name__ == "__main__":
    ap = argparse.ArgumentParser()
    ap.add_argument("out"); ap.add_argument("opts", nargs="*")
    a = ap.parse_args()
    cfg = Cfg()
    for o in a.opts:
        k, v = o.split("=", 1)
        setattr(cfg, k, eval(v))
    open(a.out, "w").write(gen(cfg))
```

```python
import sys, math, argparse
NAME = "standalone__paged_block_table_kv_radixattention__decode_kernel"
HEADER = open("standalone__paged_block_table_kv_radixattention__decode.s.ref").read().split("; Override launch")[0]

S = 128
NBLK = [229, 202, 239, 212]
SLOT = 8448
KVBYTES = 41943040
CF = math.log2(math.e) / 16.0
import struct
def f2u(x): return struct.unpack("<I", struct.pack("<f", x))[0]

class Cfg:
    segs = [(-1, 32), (0, 26), (1, 19), (2, 29), (3, 22)]
    stamps = False
    lds = 84 * 1024
    st_flags = "sc0 sc1"
    ld_flags = "sc1"
    delay_test = False
    spin = 20000
    out_flags = ""
    probe = None

def partition(cfg):
    ws = []; acc = 0
    for b, nw in cfg.segs:
        n = S if b < 0 else NBLK[b] - S
        M = -(-65536 * n // nw)
        for k in range(nw + 1):
            assert (k * M) >> 16 == (k * n) // nw, (b, k)
            if k: assert ((k * M) >> 16) - (((k - 1) * M) >> 16) <= 4
        ws.append((b, acc, nw, M)); acc += nw
    assert acc == 128
    seg_of_wave = []
    for b, st, nw, M in ws: seg_of_wave += [b] * nw
    return ws, seg_of_wave

sWG, sWAVE = 2, 3
sQ, sK, sV, sBT, sCTX, sOUT, sDBG, sWS = 4, 6, 8, 10, 12, 14, 16, 18
sKSRD, sVSRD = 20, 24
sH, sSPL, sB, sJ0, sJ1, sSH = 32, 33, 34, 35, 36, 37
sSOFF, sM0A, sM0B, sCNT, sI, sINX, sCOL, sH512 = 38, 39, 40, 41, 42, 43, 44, 45
sC, sT0, sT1, sT2, sT3, sSPEC, sFB = 46, 47, 48, 49, 50, 51, 56
sLM = 52
sONE = 54
sCM = 57
sSLOT = 58
sMK = 60
sFL = 68
sEX = 76
sHB = 84
sST = 86

vLANE, vN, vG = 1, 2, 3
vKOFF = 4
vVOFF = 12
vKRD = 16
vMSK = 20
vTAB, vCOL, vCTXG, vM, vL, vLIM, vT, vU, vAL, vNMC, vF, vL16 = 24, 25, 26, 27, 28, 29, 30, 31, 32, 33, 34, 35
vS = 36
vP = 40
vNINF = 44
vHA = 45
vW = 46
vA = 48
vKF = 64
vVF = 96
vQF = 128
vACC = 160
vRA = 192
vRD = 96
NV = 196
LDS_Q = 32768
LDS_H = 36864
LDS_Z = 37120

def vr(b, n=4): return f"v[{b}:{b+n-1}]"
def sr(b, n=2): return f"s[{b}:{b+n-1}]"

def gen(cfg):
    L = []
    e = L.append
    ws, seg_of_wave = partition(cfg)
    nst = [0]
    def stamp(k):
        if cfg.stamps or (cfg.probe and k in (0, cfg.probe[0])): e(f"s_memrealtime {sr(sST+2*k)}")
    e(HEADER.rstrip())
    e(f"; @launch grid=(256,1,1) block=(256,1,1) lds={cfg.lds}")
    e('.amdgcn_target "amdgcn-amd-amdhsa--gfx950"')
    e(".text"); e(f".globl {NAME}"); e(".p2align 8"); e(f".type {NAME},@function"); e(f"{NAME}:")
    stamp(0)
    e(f"s_load_dwordx16 s[4:19], s[0:1], 0")
    e("s_cmp_ge_u32 s2, 256"); e("s_cbranch_scc1 L_end")
    e(f"v_lshrrev_b32 v{vT}, 6, v0")
    e(f"v_and_b32 v{vLANE}, 63, v0")
    e(f"v_readfirstlane_b32 s{sWAVE}, v{vT}")
    e(f"s_and_b32 s{sH}, s2, 7"); e(f"s_lshr_b32 s{sSPL}, s2, 3")
    e(f"s_lshl_b32 s{sH512}, s{sH}, 9")
    e(f"v_lshrrev_b32 v{vT}, 5, v{vLANE}")
    e(f"v_and_b32 v{vU}, 31, v{vLANE}")
    e(f"v_xor_b32 v{vU}, v{vU}, v{vT}")
    e(f"v_lshlrev_b32 v{vU}, 4, v{vU}")
    e(f"v_lshl_or_b32 v{vKOFF}, v{vT}, 12, v{vU}")
    e(f"s_lshl_b32 s{sT0}, s{sSPL}, 2"); e(f"s_add_u32 s{sT0}, s{sT0}, s{sWAVE}")
    def pack(b, st, nw): return st | ((st + nw - 1) << 8) | ((max(b, 0)) << 16) | ((0 if b < 0 else 1) << 24)
    b, st, nw, M = ws[0]
    e(f"s_mov_b32 s{sT1}, {pack(b, st, nw)}"); e(f"s_mov_b32 s{sT2}, {M}")
    for b, st, nw, M in ws[1:]:
        e(f"s_cmp_ge_u32 s{sT0}, {st}")
        e(f"s_cselect_b32 s{sT1}, {pack(b, st, nw)}, s{sT1}")
        e(f"s_cselect_b32 s{sT2}, {M}, s{sT2}")
    e(f"s_and_b32 s{sT3}, s{sT1}, 0xff")
    e(f"s_sub_u32 s{sT3}, s{sT0}, s{sT3}")
    e(f"s_mul_i32 s{sT3}, s{sT3}, s{sT2}")
    e(f"s_lshr_b32 s{sJ0}, s{sT3}, 16")
    e(f"s_add_u32 s{sT3}, s{sT3}, s{sT2}")
    e(f"s_lshr_b32 s{sJ1}, s{sT3}, 16")
    e(f"s_bfe_u32 s{sB}, s{sT1}, 0x80010")
    e(f"s_lshr_b32 s{sSH}, s{sT1}, 24")
    e(f"s_lshl_b32 s{sT2}, s{sSH}, 7")
    e(f"s_add_u32 s{sJ0}, s{sJ0}, s{sT2}"); e(f"s_add_u32 s{sJ1}, s{sJ1}, s{sT2}")
    e(f"s_lshl_b32 s{sT2}, s{sB}, 7")
    e(f"s_add_u32 s{sSPEC}, s{sJ0}, s{sT2}")
    e(f"s_lshl_b32 s{sSOFF}, s{sSPEC}, 16"); e(f"s_add_u32 s{sSOFF}, s{sSOFF}, s{sH512}")
    e(f"s_lshl_b32 s{sM0A}, s{sWAVE}, 13"); e(f"s_add_u32 s{sM0B}, s{sM0A}, 4096")
    for j in range(1, 8):
        e(f"v_xor_b32 v{vKOFF+j}, {32*j}, v{vKOFF}")
        e(f"v_add_u32 v{vKOFF+j}, {8192*j - (j&3)*1024}, v{vKOFF+j}")
    e(f"s_mov_b32 s{sKSRD+2}, {KVBYTES}"); e(f"s_mov_b32 s{sKSRD+3}, 0x20000")
    e(f"s_mov_b32 s{sVSRD+2}, {KVBYTES}"); e(f"s_mov_b32 s{sVSRD+3}, 0x20000")
    e(f"s_mov_b32 m0, s{sM0A}")
    e(f"v_and_b32 v{vN}, 15, v{vLANE}"); e(f"v_lshrrev_b32 v{vG}, 4, v{vLANE}")
    e(f"v_lshlrev_b32 v{vVOFF}, 4, v{vN}"); e(f"v_lshl_or_b32 v{vVOFF}, v{vG}, 14, v{vVOFF}")
    for r in range(1, 4): e(f"v_add_u32 v{vVOFF+r}, {4096*r}, v{vVOFF}")
    e("s_waitcnt lgkmcnt(0)")
    stamp(1)
    e(f"s_mov_b32 s{sKSRD}, s{sK}"); e(f"s_mov_b32 s{sKSRD+1}, s{sK+1}")
    e(f"s_mov_b32 s{sVSRD}, s{sV}"); e(f"s_mov_b32 s{sVSRD+1}, s{sV+1}")
    def kloads(m0_set):
        for j in range(8):
            if j == 0 and not m0_set:
                e(f"s_mov_b32 m0, s{sM0A}"); e("s_nop 0")
            if j == 4:
                e(f"s_mov_b32 m0, s{sM0B}"); e("s_nop 0")
            e(f"buffer_load_dwordx4 v{vKOFF+j}, {sr(sKSRD,4)}, s{sSOFF} offen offset:{(j&3)*1024} nt lds")
    def vload(r, hf):
        e(f"buffer_load_dwordx4 {vr(vVF+8*r+4*hf)}, v{vVOFF+r}, {sr(sVSRD,4)}, s{sSOFF} offen offset:{256*hf} nt")
    if cfg.delay_test:
        e(f"s_cmp_lt_u32 s2, 200"); e("s_cbranch_scc1 L_nodelay")
        e(f"s_mov_b32 s{sT2}, 400"); e("L_dl:"); e("s_sleep 8"); e(f"s_sub_u32 s{sT2}, s{sT2}, 1"); e(f"s_cmp_lg_u32 s{sT2}, 0"); e("s_cbranch_scc1 L_dl"); e("L_nodelay:")
    kloads(True)
    e(f"s_bfe_u32 s{sT2}, s{sT1}, 0x80008")
    e(f"s_cmp_eq_u32 s{sT2}, s{sT0}")
    e(f"s_cselect_b32 s{sT2}, s{sSH}, 0")
    e(f"s_cmp_eq_u32 s{sT2}, 1")
    e(f"s_cselect_b32 s{sJ1}, 256, s{sJ1}")
    e(f"v_lshrrev_b32 v{vT}, 5, v{vLANE}")
    e(f"s_lshl_b32 s{sT2}, s{sWAVE}, 2")
    e(f"v_lshl_add_u32 v{vU}, v{vT}, 1, s{sT2}")
    e(f"v_xor_b32 v{vU}, v{vU}, v{vLANE}")
    e(f"s_lshl_b32 s{sT2}, s{sH}, 10"); e(f"s_add_u32 s{sT2}, s{sT2}, s{sM0A}")
    e(f"v_lshl_add_u32 v{vU}, v{vU}, 4, s{sT2}")
    e(f"s_lshl_b32 s{sT2}, s{sWAVE}, 10"); e(f"s_add_u32 m0, s{sT2}, {LDS_Q}")
    e(f"s_cmp_eq_u32 s{sSH}, 0")
    e(f"s_cselect_b32 s{sT2}, 3, 0")
    e(f"s_cselect_b32 s{sT3}, 3, 63")
    e(f"global_load_lds_dwordx4 v{vU}, {sr(sQ)}")
    e(f"v_and_b32 v{vCOL}, s{sT3}, v{vLANE}")
    e(f"v_add_u32 v{vCOL}, s{sJ0}, v{vCOL}")
    e(f"v_lshrrev_b32 v{vT}, 2, v{vLANE}")
    e(f"v_and_b32 v{vT}, s{sT2}, v{vT}")
    e(f"v_or_b32 v{vT}, s{sB}, v{vT}")
    e(f"v_min_u32 v{vU}, 255, v{vCOL}")
    e(f"v_lshl_or_b32 v{vU}, v{vT}, 8, v{vU}")
    e(f"v_lshlrev_b32 v{vU}, 2, v{vU}")
    e(f"global_load_dword v{vTAB}, v{vU}, {sr(sBT)}")
    e(f"v_and_b32 v{vF}, s{sT2}, v{vLANE}")
    e(f"v_or_b32 v{vF}, s{sB}, v{vF}")
    e(f"v_lshlrev_b32 v{vU}, 2, v{vF}")
    e(f"global_load_dword v{vCTXG}, v{vU}, {sr(sCTX)}")
    cms = []
    for s in range(32):
        m = 0
        for w in range(4):
            sg = seg_of_wave[4 * s + w]
            for p in range(4):
                if sg < 0 or sg == p: m |= 1 << (4 * p + w)
        cms.append(m)
    e(f"s_mov_b32 s{sCM}, {cms[0]}")
    for s in range(1, 32):
        if cms[s] != cms[s - 1]:
            e(f"s_cmp_ge_u32 s{sSPL}, {s}"); e(f"s_cselect_b32 s{sCM}, {cms[s]}, s{sCM}")
    e(f"s_lshl_b32 s{sT2}, s{sWAVE}, 2")
    e(f"s_lshr_b32 s{sCM}, s{sCM}, s{sT2}"); e(f"s_and_b32 s{sCM}, s{sCM}, 15")
    e(f"s_mul_i32 s{sT2}, s{sH}, {32*SLOT}")
    e(f"s_add_u32 s{sHB}, s{sWS}, s{sT2}"); e(f"s_addc_u32 s{sHB+1}, s{sWS+1}, 0")
    e(f"s_mul_i32 s{sT2}, s{sSPL}, {SLOT}")
    e(f"s_add_u32 s{sSLOT}, s{sHB}, s{sT2}"); e(f"s_addc_u32 s{sSLOT+1}, s{sHB+1}, 0")
    e(f"s_lshl_b32 s{sT2}, s{sWAVE}, 11")
    e(f"v_lshl_add_u32 v{vL16}, v{vLANE}, 4, s{sT2}")
    for k in range(4): e(f"v_mov_b32 v{vA+k}, -1")
    e(f"s_cmp_eq_u32 s{sCM}, 0"); e("s_cbranch_scc1 L_noclear")
    e(f"global_store_dwordx4 v{vL16}, {vr(vA)}, {sr(sSLOT)} {cfg.st_flags}")
    e(f"global_store_dwordx4 v{vL16}, {vr(vA)}, {sr(sSLOT)} offset:1024 {cfg.st_flags}")
    e(f"s_lshl_b32 s{sT2}, s{sWAVE}, 4"); e(f"s_add_u32 s{sT2}, s{sT2}, 8192")
    e(f"v_mov_b32 v{vU}, s{sT2}")
    e("s_mov_b64 exec, 1")
    e(f"global_store_dwordx4 v{vU}, {vr(vA)}, {sr(sSLOT)} {cfg.st_flags}")
    e("s_mov_b64 exec, -1")
    e("L_noclear:")
    for r in range(4):
        vload(r, 0); vload(r, 1)
    stamp(2)
    e(f"s_mov_b32 s{sC}, {f2u(CF):#x}")
    e(f"s_mov_b32 s{sONE}, 0x11111111"); e(f"s_mov_b32 s{sONE+1}, 0x11111111")
    e(f"s_mov_b64 {sr(sLM)}, -1")
    e(f"s_mov_b32 s{sI}, 0"); e(f"s_mov_b32 s{sFB}, 0")
    e(f"v_mov_b32 v{vNINF}, 0xff800000")
    e(f"v_mov_b32 v{vM}, {f2u(-1e30):#x}"); e(f"v_mov_b32 v{vL}, 0")
    e(f"v_lshlrev_b32 v{vT}, 9, v{vN}"); e(f"v_add_u32 v{vT}, s{sM0A}, v{vT}")
    e(f"v_xor_b32 v{vU}, v{vG}, v{vN}")
    for k in range(4):
        e(f"v_xor_b32 v{vKRD+k}, {4*k}, v{vU}")
        e(f"v_lshl_add_u32 v{vKRD+k}, v{vKRD+k}, 4, v{vT}")
    e(f"v_and_b32 v{vT}, 1, v{vLANE}"); e(f"v_lshlrev_b32 v{vT}, 4, v{vT}")
    e(f"v_mov_b32 v{vU}, 0xffff"); e(f"v_lshlrev_b32 v{vT}, v{vT}, v{vU}")
    e(f"v_bfe_u32 v{vU}, v{vLANE}, 1, 2")
    for k in range(4):
        e(f"v_cmp_eq_u32 {sr(sMK+2*k)}, {k}, v{vU}")
    e("s_nop 0")
    for k in range(4):
        e(f"v_cndmask_b32 v{vMSK+k}, 0, v{vT}, {sr(sMK+2*k)}")
    for k in range(32): e(f"v_mov_b32 v{vACC+k}, 0")
    e(f"v_mov_b32 v{vT}, {LDS_Z}")
    e(f"ds_write_b128 v{vT}, {vr(vACC)}"); e(f"ds_write_b128 v{vT}, {vr(vACC)} offset:1024")
    for w in range(4):
        e(f"s_bitcmp1_b32 s{sCM}, {w}"); e(f"s_cselect_b64 vcc, -1, 0")
        e(f"v_add_u32 v{vU}, {8192*w}, v{vL16}")
        e(f"v_cndmask_b32 v{vRA+w}, v{vT}, v{vU}, vcc")
    e(f"v_and_b32 v{vT}, 3, v{vN}"); e(f"v_lshrrev_b32 v{vU}, 3, v{vN}")
    e(f"v_lshl_add_u32 v{vT}, v{vT}, 1, v{vU}")
    e(f"s_lshl_b32 s{sT2}, s{sWAVE}, 3"); e(f"s_add_u32 s{sT2}, s{sT2}, {LDS_H}")
    e(f"v_lshl_add_u32 v{vHA}, v{vT}, 5, s{sT2}")
    e(f"v_lshl_add_u32 v{vT}, v{vF}, 1, v{vU}")
    e(f"v_lshlrev_b32 v{vU}, 1, v{vT}"); e(f"v_xor_b32 v{vU}, v{vU}, v{vG}")
    e(f"v_lshlrev_b32 v{vT}, 9, v{vT}"); e(f"v_add_u32 v{vT}, {LDS_Q}, v{vT}")
    for k in range(4):
        e(f"v_xor_b32 v{vA+4+k}, {4*k}, v{vU}")
        e(f"v_lshl_add_u32 v{vA+4+k}, v{vA+4+k}, 4, v{vT}")
    e("s_waitcnt vmcnt(8)")
    stamp(3)
    e("s_barrier")
    for i in range(8):
        e(f"ds_read_b128 {vr(vQF+4*i)}, v{vA+4+(i&3)} offset:{256*(i>>2)}")
    e(f"s_cmp_lg_u32 s{sWAVE}, 0"); e("s_cbranch_scc1 L_noflag")
    e(f"s_lshl_b32 s{sT2}, s{sH}, 5"); e(f"s_add_u32 s{sT2}, s{sT2}, s{sSPL}")
    e(f"v_mov_b32 v{vT}, s{sT2}"); e(f"v_mov_b32 v{vU}, 1")
    e("s_mov_b64 exec, 1")
    e(f"global_store_byte v{vT}, v{vU}, {sr(sDBG)} sc0 sc1")
    e("s_mov_b64 exec, -1")
    e("L_noflag:")
    e(f"v_min_u32 v{vTAB}, 639, v{vTAB}")
    e(f"v_cmp_gt_i32 vcc, 1, v{vCTXG}")
    e(f"v_min_i32 v{vCTXG}, 4096, v{vCTXG}")
    e(f"v_readfirstlane_b32 s{sT0}, v{vTAB}")
    e("s_cbranch_vccnz L_zeroctx")
    e("L_zeroctx_ret:")
    e(f"v_readfirstlane_b32 s{sT1}, v{vCTXG}")
    e(f"v_mov_b32_dpp v{vT}, v{vTAB} row_shr:4 row_mask:0xf bank_mask:0xf bound_ctrl:0")
    e(f"v_cmp_le_u32 vcc, s{sJ1}, v{vCOL}")
    e(f"v_lshlrev_b32 v{vU}, 2, v{vG}")
    e(f"v_sub_u32 v{vCTXG}, v{vCTXG}, v{vU}")
    e(f"v_mov_b32 v{vU}, 256")
    e(f"v_cndmask_b32 v{vCOL}, v{vCOL}, v{vU}, vcc")
    e(f"v_lshlrev_b32 v{vCOL}, 4, v{vCOL}")
    e(f"s_cmp_lg_u32 s{sT0}, s{sSPEC}")
    e("s_cbranch_scc1 L_respec")
    e("L_respec_ret:")
    e("s_waitcnt lgkmcnt(0)")
    e(f"s_cmp_eq_u32 s{sSH}, 0")
    e("s_cbranch_scc1 L_sh_setup")
    e(f"s_add_u32 s{sT1}, s{sT1}, 15"); e(f"s_lshr_b32 s{sT1}, s{sT1}, 4")
    e(f"s_min_u32 s{sT1}, s{sT1}, s{sJ1}")
    e(f"s_sub_i32 s{sCNT}, s{sT1}, s{sJ0}"); e(f"s_max_i32 s{sCNT}, s{sCNT}, 1")
    e("s_branch L_pr_first")

    def loop(tag, pairs):
        shared = len(pairs) > 1
        e(f"L_{tag}_loop:")
        e("s_waitcnt vmcnt(8)")
        e(f"L_{tag}_first:")
        for i in range(8):
            e(f"ds_read_b128 {vr(vKF+4*i)}, v{vKRD+(i&3)} offset:{256*(i>>2)}")
        e(f"s_add_u32 s{sINX}, s{sI}, 1")
        e(f"v_readlane_b32 s{sCOL}, v{vCOL}, s{sI}")
        e(f"v_readlane_b32 s{sSOFF}, v{vTAB}, s{sINX}")
        if shared:
            e(f"s_lshr_b32 s{sT2}, s{sI}, 2")
            e(f"s_lshl_b64 {sr(sLM)}, {sr(sONE)}, s{sT2}")
            e(f"s_cmp_eq_u32 s{sFB}, 0")
            e(f"s_cselect_b64 {sr(sLM)}, -1, {sr(sLM)}")
        else:
            e("s_nop 1")
        e(f"v_subrev_u32 v{vLIM}, s{sCOL}, v{vCTXG}")
        e(f"s_lshl_b32 s{sSOFF}, s{sSOFF}, 16"); e(f"s_add_u32 s{sSOFF}, s{sSOFF}, s{sH512}")
        if shared:
            e(f"v_cndmask_b32 v{vLIM}, 0, v{vLIM}, {sr(sLM)}")
        for r in range(4):
            e(f"v_cmp_lt_i32 {sr(sMK+2*r)}, {r}, v{vLIM}")
        e(f"s_mov_b32 s{sI}, s{sINX}")
        e(f"s_mov_b32 m0, s{sM0A}")
        e(f"s_cmp_ge_u32 s{sINX}, s{sCNT}")
        for i in range(8):
            e(f"s_waitcnt lgkmcnt({7-i})")
            e(f"v_mfma_f32_16x16x32_bf16 {vr(vS)}, {vr(vKF+4*i)}, {vr(vQF+4*i)}, " + ("0" if i == 0 else vr(vS)))
        e(f"s_cbranch_scc1 L_{tag}_skipk")
        kloads(True)
        e(f"L_{tag}_sm:")
        for r in range(4):
            e(f"v_cndmask_b32 v{vS+r}, v{vNINF}, v{vS+r}, {sr(sMK+2*r)}")
        e(f"v_max3_f32 v{vT}, v{vS}, v{vS+1}, v{vS+2}")
        e(f"v_max3_f32 v{vT}, v{vT}, v{vS+3}, v{vM}")
        e(f"v_mov_b32 v{vU}, v{vT}"); e("s_nop 1")
        e(f"v_permlane32_swap_b32 v{vT}, v{vU}"); e("s_nop 0")
        e(f"v_max_f32 v{vT}, v{vT}, v{vU}")
        e(f"v_mov_b32 v{vU}, v{vT}"); e("s_nop 1")
        e(f"v_permlane16_swap_b32 v{vT}, v{vU}"); e("s_nop 0")
        e(f"v_max_f32 v{vT}, v{vT}, v{vU}")
        e(f"v_sub_f32 v{vAL}, v{vM}, v{vT}")
        e(f"v_mul_f32 v{vNMC}, s{sC}, v{vT}")
        e(f"v_mul_f32 v{vAL}, s{sC}, v{vAL}")
        e(f"v_mov_b32 v{vM}, v{vT}")
        e(f"v_exp_f32 v{vAL}, v{vAL}")
        for r in range(4):
            e(f"v_fma_f32 v{vS+r}, v{vS+r}, s{sC}, -v{vNMC}")
        for r in range(4):
            e(f"v_exp_f32 v{vS+r}, v{vS+r}")
        for p in pairs:
            e(f"v_mov_b32_dpp v{vA+p}, v{vAL} row_newbcast:{p} row_mask:0x3 bank_mask:0xf")
            e(f"v_mov_b32_dpp v{vA+p}, v{vAL} row_newbcast:{8+p} row_mask:0xc bank_mask:0xf")
        e(f"v_fma_f32 v{vL}, v{vL}, v{vAL}, v{vS}")
        e(f"v_add_f32 v{vT}, v{vS+1}, v{vS+2}")
        for r in range(4):
            e(f"v_cvt_pk_bf16_f32 v{vP+r}, v{vS+r}, v{vS+r}")
        e(f"v_add_f32 v{vL}, v{vL}, v{vS+3}")
        e(f"v_add_f32 v{vL}, v{vL}, v{vT}")
        for p in pairs:
            for k in range(8):
                e(f"v_mul_f32 v{vACC+8*p+k}, v{vACC+8*p+k}, v{vA+p}")
        for r in range(4):
            for p in pairs:
                for k in range(4):
                    if shared:
                        e(f"v_and_b32_dpp v{vA+4*p+k}, v{vP+r}, v{vMSK+k} quad_perm:[{p},{p},{p},{p}] row_mask:0xf bank_mask:0xf")
                    else:
                        e(f"v_and_b32 v{vA+4*(r&1)+k}, v{vP+r}, v{vMSK+k}")
            e(f"s_cbranch_scc1 L_{tag}_last{r}")
            if r > 0:
                vload(r - 1, 0); vload(r - 1, 1)
            e("s_waitcnt vmcnt(14)")
            if r == 0: e("s_nop 0")
            e(f"L_{tag}_pv{r}:")
            for hf in range(2):
                for p in pairs:
                    a = vA + 4 * p if shared else vA + 4 * (r & 1)
                    e(f"v_mfma_f32_16x16x32_bf16 {vr(vACC+8*p+4*hf)}, {vr(a)}, {vr(vVF+8*r+4*hf)}, {vr(vACC+8*p+4*hf)}")
        e(f"s_cbranch_scc1 L_{tag}_done")
        vload(3, 0); vload(3, 1)
        e(f"s_branch L_{tag}_loop")
        e(f"L_{tag}_skipk:")
        e(f"s_lshl_b32 s{sT2}, s{sH}, 5")
        e(f"s_load_dwordx8 {sr(sFL,8)}, {sr(sDBG)}, s{sT2}")
        e("s_cmp_eq_u32 s2, s2")
        e("s_nop 4")
        e(f"s_branch L_{tag}_sm")
        e(f"L_{tag}_last0:")
        e(f"v_mov_b32 v{vU}, v{vL}"); e("s_nop 1")
        e(f"v_permlane32_swap_b32 v{vL}, v{vU}"); e("s_nop 0")
        e(f"v_add_f32 v{vL}, v{vL}, v{vU}")
        e(f"v_mov_b32 v{vU}, v{vL}"); e("s_nop 1")
        e(f"v_permlane16_swap_b32 v{vL}, v{vU}"); e("s_nop 0")
        if shared:
            e(f"v_add_f32 v{vW+1}, v{vL}, v{vU}")
            e(f"v_mov_b32 v{vW}, v{vM}")
        else:
            e(f"v_add_f32 v{vL}, v{vL}, v{vU}")
            e(f"v_and_b32 v{vU}, 3, v{vN}")
            e(f"v_cmp_eq_u32 vcc, s{sB}, v{vU}")
            e(f"v_mov_b32 v{vU}, {f2u(-1e30):#x}")
            e("s_nop 0")
            e(f"v_cndmask_b32 v{vW}, v{vU}, v{vM}, vcc")
            e(f"v_cndmask_b32 v{vW+1}, 0, v{vL}, vcc")
            e(f"v_mov_b32 v{vT}, s{sB}")
            e(f"v_lshlrev_b32 v{vT}, 11, v{vT}")
            e(f"v_lshl_add_u32 v{vT}, v{vLANE}, 4, v{vT}")
        if shared:
            e(f"v_lshlrev_b32 v{vT}, 4, v{vLANE}")
        e(f"v_add_u32 v{vLIM}, s{sM0A}, v{vT}")
        e(f"ds_write_b64 v{vHA}, {vr(vW,2)}")
        e("s_waitcnt vmcnt(6)")
        e(f"s_branch L_{tag}_pv0")
        for r in range(1, 4):
            e(f"L_{tag}_last{r}:")
            e(f"s_waitcnt vmcnt({6-2*r})")
            e(f"s_branch L_{tag}_pv{r}")
        e(f"L_{tag}_done:")
        stamp(4)
        order = [(p, hf) for hf in range(2) for p in pairs]
        e("s_nop 7" if not shared else "s_nop 1")
        for n, (p, hf) in enumerate(order):
            e(f"ds_write_b128 v{vLIM}, {vr(vACC+8*p+4*hf)} offset:{2048*p+1024*hf}")
        if not shared: e("s_branch L_reduce")

    loop("pr", [0])
    e("L_sh_setup:")
    e(f"v_cmp_ne_u32 vcc, v{vT}, v{vTAB}")
    e(f"s_sub_u32 s{sCNT}, s{sJ1}, s{sJ0}")
    e("s_nop 3")
    e(f"s_and_b32 s{sFB}, vcc_lo, 0xfff0")
    e(f"s_cselect_b32 s{sCNT}, 16, s{sCNT}")
    e("s_branch L_sh_first")
    loop("sh", [0, 1, 2, 3])

    e("L_reduce:")
    e(f"v_lshrrev_b32 v{vT}, 1, v{vG}")
    e(f"s_lshl_b32 s{sT2}, s{sWAVE}, 6"); e(f"s_add_u32 s{sT2}, s{sT2}, {LDS_H}")
    e(f"v_lshl_add_u32 v{vU}, v{vT}, 5, s{sT2}")
    e(f"s_lshl_b32 s{sT2}, s{sWAVE}, 4"); e(f"s_add_u32 s{sT2}, s{sT2}, 8192")
    e(f"v_lshl_add_u32 v{vF}, v{vT}, 3, s{sT2}")
    e("s_waitcnt lgkmcnt(0)")
    e("s_barrier")
    stamp(5)
    e(f"s_cmp_eq_u32 s{sCM}, 0"); e("s_cbranch_scc1 L_consume")
    e(f"ds_read_b128 {vr(vA)}, v{vU}"); e(f"ds_read_b128 {vr(vA+4)}, v{vU} offset:16")
    for w in range(4):
        e(f"ds_read_b128 {vr(vRD+8*w)}, v{vRA+w}")
        e(f"ds_read_b128 {vr(vRD+8*w+4)}, v{vRA+w} offset:1024")
    e("s_waitcnt lgkmcnt(8)")
    e(f"v_max3_f32 v{vW}, v{vA}, v{vA+2}, v{vA+4}")
    e(f"v_max_f32 v{vW}, v{vW}, v{vA+6}")
    for w in range(4): e(f"v_sub_f32 v{vA+2*w}, v{vA+2*w}, v{vW}")
    for w in range(4): e(f"v_mul_f32 v{vA+2*w}, s{sC}, v{vA+2*w}")
    for w in range(4): e(f"v_exp_f32 v{vA+2*w}, v{vA+2*w}")
    e(f"v_min_u32 v{vW}, -2, v{vW}")
    e(f"v_mul_f32 v{vW+1}, v{vA}, v{vA+1}")
    for w in range(1, 4): e(f"v_fmac_f32 v{vW+1}, v{vA+2*w}, v{vA+2*w+1}")
    e("s_waitcnt lgkmcnt(6)")
    for k in range(8): e(f"v_mul_f32 v{vKF+k}, v{vA}, v{vRD+k}")
    e(f"v_min_u32 v{vW+1}, -2, v{vW+1}")
    for w in range(1, 4):
        e(f"s_waitcnt lgkmcnt({6-2*w})")
        for k in range(8): e(f"v_fmac_f32 v{vKF+k}, v{vA+2*w}, v{vRD+8*w+k}")
    for k in range(8): e(f"v_min_u32 v{vKF+k}, -2, v{vKF+k}")
    e(f"global_store_dwordx4 v{vL16}, {vr(vKF)}, {sr(sSLOT)} {cfg.st_flags}")
    e(f"global_store_dwordx4 v{vL16}, {vr(vKF+4)}, {sr(sSLOT)} offset:1024 {cfg.st_flags}")
    e("s_mov_b32 exec_lo, 1"); e("s_mov_b32 exec_hi, 1")
    e(f"global_store_dwordx2 v{vF}, {vr(vW,2)}, {sr(sSLOT)} {cfg.st_flags}")
    e("s_mov_b64 exec, -1")

    nsh = [s for s in range(32) if any(seg_of_wave[4*s+w] < 0 for w in range(4))]
    assert nsh == list(range(len(nsh)))
    a = len(nsh)
    lo = []; hi = []
    for p in range(4):
        sl = [s for s in range(32) if any(seg_of_wave[4*s+w] == p for w in range(4)) and s >= a]
        assert sl == list(range(sl[0], sl[-1] + 1)) and a + len(sl) <= 16, (p, sl)
        lo.append(sl[0]); hi.append(sl[-1] + 1)
    cw_switch = min(s for s in range(32) if cms[s] >> 12 and s >= a)
    e("L_consume:")
    stamp(6)
    e(f"s_cmp_ge_u32 s{sSPL}, {cw_switch}"); e(f"s_cselect_b32 s{sT2}, 0, 3")
    e(f"s_cmp_lg_u32 s{sWAVE}, s{sT2}"); e("s_cbranch_scc1 L_fin")
    e(f"s_and_b32 s{sT2}, s{sFL}, s{sFL+1}")
    for k in range(2, 8): e(f"s_and_b32 s{sT2}, s{sT2}, s{sFL+k}")
    e(f"s_cmp_lg_u32 s{sT2}, 0x01010101"); e("s_cbranch_scc1 L_flagwait")
    e("L_flagok:")
    e(f"s_lshr_b32 s{sT0}, s{sSPL}, 3")
    lop = sum((lo[p] - a) << (8 * p) for p in range(4)); hip_ = sum(hi[p] << (8 * p) for p in range(4))
    e(f"s_lshl_b32 s{sT1}, s{sT0}, 3")
    e(f"s_lshr_b32 s{sT2}, {lop:#x}, s{sT1}"); e(f"s_and_b32 s{sT2}, s{sT2}, 0xff")
    e(f"s_lshr_b32 s{sT3}, {hip_:#x}, s{sT1}"); e(f"s_and_b32 s{sT3}, s{sT3}, 0xff")
    e(f"s_lshl_b32 s{sI}, s{sT0}, 11")
    e(f"s_bfe_u32 s{sINX}, s{sSPL}, 0x10001"); e(f"s_lshl_b32 s{sCOL}, s{sINX}, 10"); e(f"s_add_u32 s{sI}, s{sI}, s{sCOL}")
    e(f"s_bfe_u32 s{sCNT}, s{sSPL}, 0x10002"); e(f"s_lshl_b32 s{sCOL}, s{sCNT}, 9"); e(f"s_add_u32 s{sI}, s{sI}, s{sCOL}")
    e(f"s_and_b32 s{sSOFF}, s{sSPL}, 1"); e(f"s_lshl_b32 s{sCOL}, s{sSOFF}, 7"); e(f"s_add_u32 s{sI}, s{sI}, s{sCOL}")
    e(f"v_and_b32 v{vT}, 7, v{vN}"); e(f"v_lshrrev_b32 v{vU}, 3, v{vN}")
    e(f"v_lshlrev_b32 v{vL}, 4, v{vT}"); e(f"v_lshl_add_u32 v{vL}, v{vU}, 8, v{vL}"); e(f"v_add_u32 v{vL}, s{sI}, v{vL}")
    e(f"s_lshr_b32 s{sCOL}, s{sSPL}, 2"); e(f"s_lshl_b32 s{sCOL}, s{sCOL}, 3"); e(f"s_add_u32 s{sCOL}, s{sCOL}, 8192")
    e(f"s_mov_b32 s{sSPEC}, {SLOT}")
    D, H, DA, HA = vQF, vQF + 16, vQF + 24, vQF + 28
    for k in range(4):
        e(f"v_add_u32 v{vM}, {4*k}, v{vG}")
        if 4 * k + 3 >= a:
            e(f"v_add_u32 v{vF}, s{sT2}, v{vM}")
            if 4 * k < a:
                e(f"v_cmp_gt_u32 vcc, {a}, v{vM}"); e("s_nop 1")
                e(f"v_cndmask_b32 v{vM}, v{vF}, v{vM}, vcc")
            else:
                e(f"v_mov_b32 v{vM}, v{vF}")
            e(f"v_cmp_gt_u32 {sr(sEX+2*k)}, s{sT3}, v{vM}")
        else:
            e(f"s_mov_b64 {sr(sEX+2*k)}, -1")
        e(f"v_mul_lo_u32 v{vM}, v{vM}, s{sSPEC}")
        e(f"v_add_u32 v{DA+k}, v{vM}, v{vL}")
        e(f"v_add_u32 v{HA+k}, s{sCOL}, v{vM}")
        for j in range(4): e(f"v_mov_b32 v{D+4*k+j}, 0")
        e(f"v_mov_b32 v{H+2*k}, {f2u(-1e30):#x}"); e(f"v_mov_b32 v{H+2*k+1}, 0")
    e(f"s_lshl_b32 s{sI}, s{sT0}, 13"); e(f"s_lshl_b32 s{sCOL}, s{sH}, 10"); e(f"s_add_u32 s{sI}, s{sI}, s{sCOL}")
    e(f"s_lshl_b32 s{sCOL}, s{sCNT}, 9"); e(f"s_add_u32 s{sI}, s{sI}, s{sCOL}")
    e(f"s_and_b32 s{sCOL}, s{sSPL}, 3"); e(f"s_lshl_b32 s{sCOL}, s{sCOL}, 7"); e(f"s_add_u32 s{sI}, s{sI}, s{sCOL}")
    e(f"v_lshlrev_b32 v{vT}, 4, v{vT}"); e(f"v_lshl_add_u32 v{vT}, v{vU}, 3, v{vT}"); e(f"v_add_u32 v{vLIM}, s{sI}, v{vT}")
    e(f"s_mov_b32 s{sJ0}, {cfg.spin}")
    e("L_poll:")
    e(f"s_sub_u32 s{sJ0}, s{sJ0}, 1"); e("s_cbranch_scc1 L_fin")
    for k in range(4):
        e(f"s_mov_b64 exec, {sr(sEX+2*k)}")
        e(f"s_cbranch_execz L_pk{k}")
        e(f"global_load_dwordx4 {vr(D+4*k)}, v{DA+k}, {sr(sHB)} {cfg.ld_flags}")
        e(f"global_load_dwordx2 {vr(H+2*k,2)}, v{HA+k}, {sr(sHB)} {cfg.ld_flags}")
        e(f"L_pk{k}:")
    e("s_mov_b64 exec, -1")
    e("s_waitcnt vmcnt(0)")
    for k in range(4):
        e(f"v_max3_u32 v{vA+k}, v{D+4*k}, v{D+4*k+1}, v{D+4*k+2}")
        e(f"v_max3_u32 v{vA+4+k}, v{D+4*k+3}, v{H+2*k}, v{H+2*k+1}")
    for k in range(4):
        e(f"v_max_u32 v{vA+k}, v{vA+k}, v{vA+4+k}")
    for k in range(4):
        e(f"v_cmp_eq_u32 {sr(sEX+2*k)}, -1, v{vA+k}")
    e(f"v_max3_f32 v{vT}, v{H}, v{H+2}, v{H+4}")
    e(f"v_max_f32 v{vT}, v{vT}, v{H+6}")
    e(f"s_or_b64 {sr(sMK)}, {sr(sEX)}, {sr(sEX+2)}")
    e(f"s_or_b64 {sr(sMK+2)}, {sr(sEX+4)}, {sr(sEX+6)}")
    e(f"s_or_b64 {sr(sMK)}, {sr(sMK)}, {sr(sMK+2)}")
    e("s_cbranch_scc1 L_poll")
    stamp(7)
    e(f"v_mov_b32 v{vU}, v{vT}"); e("s_nop 1")
    e(f"v_permlane32_swap_b32 v{vT}, v{vU}"); e("s_nop 0")
    e(f"v_max_f32 v{vT}, v{vT}, v{vU}")
    e(f"v_mov_b32 v{vU}, v{vT}"); e("s_nop 1")
    e(f"v_permlane16_swap_b32 v{vT}, v{vU}"); e("s_nop 0")
    e(f"v_max_f32 v{vT}, v{vT}, v{vU}")
    for k in range(4): e(f"v_sub_f32 v{H+2*k}, v{H+2*k}, v{vT}")
    for k in range(4): e(f"v_mul_f32 v{H+2*k}, s{sC}, v{H+2*k}")
    for k in range(4): e(f"v_exp_f32 v{H+2*k}, v{H+2*k}")
    e("s_nop 0")
    for j in range(4): e(f"v_mul_f32 v{vA+j}, v{H}, v{D+j}")
    e(f"v_mul_f32 v{vA+4}, v{H}, v{H+1}")
    for k in range(1, 4):
        for j in range(4): e(f"v_fmac_f32 v{vA+j}, v{H+2*k}, v{D+4*k+j}")
        e(f"v_fmac_f32 v{vA+4}, v{H+2*k}, v{H+2*k+1}")
    for sw in ("v_permlane32_swap_b32", "v_permlane16_swap_b32"):
        for j in range(5): e(f"v_mov_b32 v{vA+8+j}, v{vA+j}")
        e("s_nop 0")
        for j in range(5): e(f"{sw} v{vA+j}, v{vA+8+j}")
        for j in range(5): e(f"v_add_f32 v{vA+j}, v{vA+j}, v{vA+8+j}")
    e(f"v_rcp_f32 v{vA+4}, v{vA+4}")
    e("s_nop 0")
    for j in range(4): e(f"v_mul_f32 v{vA+j}, v{vA+j}, v{vA+4}")
    e(f"v_cvt_pk_bf16_f32 v{vW}, v{vA}, v{vA+1}")
    e(f"v_cvt_pk_bf16_f32 v{vW+1}, v{vA+2}, v{vA+3}")
    e("s_mov_b64 exec, 0xffff")
    e(f"global_store_dwordx2 v{vLIM}, {vr(vW,2)}, {sr(sOUT)} {cfg.out_flags}")
    e("L_fin:")
    if cfg.probe:
        k, mult = cfg.probe
        if k == 8:
            e("s_waitcnt vmcnt(0)"); e(f"s_memrealtime {sr(sST+2)}"); k = 1
        e("s_waitcnt lgkmcnt(0)")
        if k > 0:
            e(f"s_sub_u32 s{sT0}, s{sST+2*k}, s{sST}")
            e(f"s_cmp_gt_u32 s{sT0}, 3000"); e(f"s_cselect_b32 s{sT0}, 0, s{sT0}")
            e(f"s_mul_i32 s{sT0}, s{sT0}, {mult}")
        else:
            e(f"s_mov_b32 s{sT0}, 0")
        e(f"s_add_u32 s{sT0}, s{sT0}, 4000")
        e("L_probe:")
        e(f"s_memrealtime {sr(sMK)}"); e("s_waitcnt lgkmcnt(0)")
        e(f"s_sub_u32 s{sT1}, s{sMK}, s{sST}")
        e(f"s_cmp_lt_u32 s{sT1}, s{sT0}"); e("s_cbranch_scc1 L_probe")
    if cfg.stamps:
        e("s_mov_b64 exec, -1")
        e("s_waitcnt vmcnt(0)")
        e(f"s_memrealtime {sr(sMK)}")
        e("s_waitcnt lgkmcnt(0)")
        e(f"s_lshl_b32 s{sT2}, s2, 4"); e(f"s_add_u32 s{sT2}, s{sT2}, s{sWAVE}"); e(f"s_lshl_b32 s{sT2}, s{sT2}, 6")
        e(f"s_add_u32 s{sT2}, s{sT2}, 0x8000000")
        e(f"v_mov_b32 v{vT}, s{sT2}")
        e(f"s_getreg_b32 s{sT3}, hwreg(HW_REG_XCC_ID)")
        for k in range(8): e(f"v_mov_b32 v{vKF+k}, s{sST+2*k}")
        e(f"v_mov_b32 v{vKF+8}, s{sMK}"); e(f"v_mov_b32 v{vKF+9}, s{sT3}"); e(f"v_mov_b32 v{vKF+10}, 0x12345678"); e(f"v_mov_b32 v{vKF+11}, 0")
        for k in range(3):
            e(f"global_store_dwordx4 v{vT}, {vr(vKF+4*k)}, {sr(sWS)} offset:{16*k}")
    e("L_end:")
    e("s_endpgm")
    e("L_flagwait:")
    e(f"s_lshl_b32 s{sT2}, s{sH}, 5")
    e(f"v_and_b32 v{vT}, 7, v{vLANE}")
    e(f"v_lshl_add_u32 v{vT}, v{vT}, 2, s{sT2}")
    e(f"s_mov_b32 s{sJ0}, {cfg.spin}")
    e("L_fw:")
    e(f"s_sub_u32 s{sJ0}, s{sJ0}, 1"); e("s_cbranch_scc1 L_fin")
    e("s_sleep 4")
    e(f"global_load_dword v{vU}, v{vT}, {sr(sDBG)} sc0 sc1")
    e("s_waitcnt vmcnt(0)")
    e(f"v_cmp_ne_u32 vcc, 0x01010101, v{vU}")
    e("s_nop 1")
    e("s_cbranch_vccnz L_fw")
    e("s_branch L_flagok")
    e("L_respec:")
    e("s_waitcnt vmcnt(0)")
    e(f"s_lshl_b32 s{sSOFF}, s{sT0}, 16"); e(f"s_add_u32 s{sSOFF}, s{sSOFF}, s{sH512}")
    kloads(False)
    for r in range(4):
        vload(r, 0); vload(r, 1)
    e("s_waitcnt vmcnt(8)")
    e("s_branch L_respec_ret")
    e("L_zeroctx:")
    e("s_waitcnt lgkmcnt(0)")
    e("s_mov_b64 exec, vcc")
    e(f"v_mov_b32 v{vCTXG}, 4096")
    for k in range(32): e(f"v_mov_b32 v{vQF+k}, 0")
    e("s_mov_b64 exec, -1")
    e("s_nop 0")
    e("s_branch L_zeroctx_ret")
    e('.section .rodata,"a"'); e(".p2align 6"); e(f".amdhsa_kernel {NAME}")
    e(f"  .amdhsa_next_free_vgpr {NV}"); e("  .amdhsa_next_free_sgpr 102"); e(f"  .amdhsa_accum_offset {NV}")
    e("  .amdhsa_group_segment_fixed_size 0"); e("  .amdhsa_kernarg_size 64"); e("  .amdhsa_user_sgpr_count 2")
    e("  .amdhsa_user_sgpr_kernarg_segment_ptr 1"); e("  .amdhsa_system_sgpr_workgroup_id_x 1"); e(".end_amdhsa_kernel")
    out = []
    for x in L:
        if x.endswith(":") or x.startswith(".") or x.startswith(";") or x.startswith("  ."): out.append(x)
        else: out.append("    " + x)
    return "\n".join(out) + "\n"

if __name__ == "__main__":
    ap = argparse.ArgumentParser()
    ap.add_argument("out"); ap.add_argument("opts", nargs="*")
    a = ap.parse_args()
    cfg = Cfg()
    for o in a.opts:
        k, v = o.split("=", 1)
        setattr(cfg, k, eval(v))
    open(a.out, "w").write(gen(cfg))
```

```python
import sys, math, argparse, struct
NAME = "standalone__paged_block_table_kv_radixattention__decode_kernel"
HEADER = open("standalone__paged_block_table_kv_radixattention__decode.s.ref").read().split("; Override launch")[0]
STOK = 2048
CTX = [3663, 3230, 3821, 3388]
SLOT = 8192
HDR = 256 * SLOT
HELLO = HDR + 32768
EPO = HELLO + 1024
KVBYTES = 41943040
CF = math.log2(math.e) / 16.0
def f2u(x): return struct.unpack("<I", struct.pack("<f", x))[0]
NEG = f2u(-1e30) & ~0xff

class Cfg:
    segs = [(-1, 36), (2, 28), (0, 25), (1, 18), (3, 21)]
    dld = "sc1"; dst = ""; dwarm = None; pf = 3; pff = ""
    gran = 1
    stamps = False
    lds = 49152
    out_flags = ""
    spin = 20000
    probe = None
    pad = 0xd00
    touch = True
    l2warm = True
    ldnt = "nt"
    hflags = ""
    force_safe = False; hello_tries = 8; hello_sleep = 24
    earlyk = True
    nopoll = False

def partition(cfg):
    ws = []; acc = 0
    for b, nw in cfg.segs:
        n = STOK if b < 0 else CTX[b] - STOK
        M = -(-65536 * n // nw)
        assert (nw * M) >> 16 == n and nw * M < 2**32
        assert (M >> 16) >= 33 and (M >> 16) + 1 + 15 <= 8 * 16
        ws.append((b, acc, nw, M)); acc += nw
    assert acc == 128
    seg_of_wave = []
    for b, st, nw, M in ws: seg_of_wave += [b] * nw
    return ws, seg_of_wave

sWAVE = 3
sQ, sK, sV, sBT, sCTX, sOUT, sDBG, sWS = 4, 6, 8, 10, 12, 14, 16, 18
sKSRD, sVSRD = 20, 24
sPC = 28; sTAG = 30; sFF = 31
sH, sSPL, sB, sJ0, sJ1, sSH = 32, 33, 34, 35, 36, 37
sSOFF, sM0A, sM0B, sCNT, sI, sINX, sCOL, sH512 = 38, 39, 40, 41, 42, 43, 44, 45
sC, sT0, sT1, sT2, sT3, sSPEC, sFB = 46, 47, 48, 49, 50, 51, 56
sLM = 52; sONE = 54; sCM = 57; sSLOT = 58; sMK = 60; sT8 = 68; sSPEC1 = 69; sEX = 76; sHB = 84; sST = 86

vLANE, vN, vG = 1, 2, 3
vKOFF = 4; vVOFF = 12; vKRD = 16; vMSK = 20
vTAB, vCOL, vCTXG, vM, vL, vLIM, vT, vU, vAL, vNMC, vF, vL16 = 24, 25, 26, 27, 28, 29, 30, 31, 32, 33, 34, 35
vS = 36; vP = 40; vNINF = 44; vHA = 45; vW = 46; vA = 48; vKF = 64; vVF = 96; vQF = 128; vACC = 160
vRA = 192; vHR = 196; vGH = 197; vDEP = 198; vFA = 199; vNR = 200; vG4 = 201; vPF = 202
sPFX = 70
vRD = 96
NV = 208
LDS_Q = 32768; LDS_T = 36864; LDS_C = 40960; LDS_H = 41216; LDS_F = 41472; LDS_Z = 41536

def vr(b, n=4): return f"v[{b}:{b+n-1}]"
def sr(b, n=2): return f"s[{b}:{b+n-1}]"

def gen(cfg):
    L = []
    e = L.append
    ws, seg_of_wave = partition(cfg)
    dbg = cfg.stamps or cfg.probe
    def stamp(k):
        if cfg.stamps or (cfg.probe and k in (0, cfg.probe[0])): e(f"s_memrealtime {sr(sST+2*k)}")
    cms = []
    for s in range(32):
        m = 0
        for w in range(4):
            sg = seg_of_wave[4 * s + w]
            for p in range(4):
                if sg < 0 or sg == p: m |= 1 << (4 * p + w)
        cms.append(m)
    def kloads(m0_set):
        for j in range(8):
            if j == 0 and not m0_set:
                e(f"s_mov_b32 m0, s{sM0A}"); e("s_nop 0")
            if j == 4:
                e(f"s_mov_b32 m0, s{sM0B}"); e("s_nop 0")
            e(f"buffer_load_dwordx4 v{vKOFF+j}, {sr(sKSRD,4)}, s{sSOFF} offen offset:{(j&3)*1024} {cfg.ldnt} lds")
    def vload(r, hf):
        e(f"buffer_load_dwordx4 {vr(vVF+8*r+4*hf)}, v{vVOFF+r}, {sr(sVSRD,4)}, s{sSOFF} offen offset:{256*hf} {cfg.ldnt}")
    def kreads():
        for i in range(8):
            e(f"ds_read_b128 {vr(vKF+4*i)}, v{vKRD+(i&3)} offset:{256*(i>>2)}")
    def stub(name):
        e(f"T_{name}:"); e("s_branch L_touch_ret")

    e(HEADER.rstrip())
    e(f"; @launch grid=(256,1,1) block=(320,1,1) lds={cfg.lds}")
    e('.amdgcn_target "amdgcn-amd-amdhsa--gfx950"')
    e(".text"); e(f".globl {NAME}")
    if cfg.pad:
        e(".p2align 12"); e(f".fill {cfg.pad//4}, 4, 0xbf800000")
    e(".p2align 8"); e(f".type {NAME},@function"); e(f"{NAME}:")
    stamp(0)
    e(f"s_load_dwordx16 s[4:19], s[0:1], 0")
    e("s_cmp_ge_u32 s2, 256"); e("s_cbranch_scc1 L_end0")
    e(f"v_lshrrev_b32 v{vT}, 6, v0")
    e(f"v_and_b32 v{vLANE}, 63, v0")
    e(f"v_readfirstlane_b32 s{sWAVE}, v{vT}")
    e(f"s_and_b32 s{sH}, s2, 7"); e(f"s_lshr_b32 s{sSPL}, s2, 3")
    e(f"v_lshrrev_b32 v{vT}, 5, v{vLANE}")
    e(f"s_sub_u32 s{sWAVE}, s{sWAVE}, 1")
    e("s_cbranch_scc0 L_main")
    e("s_setprio 3")
    e(f"v_lshlrev_b32 v{vT}, 1, v{vT}")
    e(f"v_xor_b32 v{vT}, v{vT}, v{vLANE}")
    e(f"s_lshl_b32 s{sT2}, s{sH}, 10")
    e(f"v_lshl_add_u32 v{vA}, v{vT}, 4, s{sT2}")
    for b in range(1, 4):
        e(f"v_xor_b32 v{vA+b}, {64*b}, v{vA}")
        e(f"v_add_u32 v{vA+b}, {8192*b-1024*b}, v{vA+b}")
    e(f"v_lshlrev_b32 v{vL16}, 4, v{vLANE}")
    e(f"v_and_b32 v{vU}, 3, v{vLANE}"); e(f"v_lshlrev_b32 v{vU}, 2, v{vU}")
    e(f"s_lshl_b32 s{sT3}, s{sH}, 7"); e(f"s_add_u32 s{sT3}, s{sT3}, {EPO}")
    e(f"s_mov_b32 m0, {LDS_Q}")
    e("s_waitcnt lgkmcnt(0)")
    stamp(1)
    for b in range(4):
        e(f"global_load_lds_dwordx4 v{vA+b}, {sr(sQ)} offset:{1024*b} {cfg.hflags}")
    e(f"s_mov_b32 m0, {LDS_T}")
    e(f"s_load_dword s{sTAG}, {sr(sWS)}, s{sT3}")
    for b in range(4):
        e(f"global_load_lds_dwordx4 v{vL16}, {sr(sBT)} offset:{1024*b} {cfg.hflags}")
    e(f"s_mov_b32 m0, {LDS_C}"); e("s_nop 0")
    e(f"global_load_lds_dword v{vU}, {sr(sCTX)} {cfg.hflags}")
    e("s_branch L_helper")
    e("L_end0:"); e("s_endpgm")
    e("L_main:")
    if cfg.l2warm:
        e(f"s_cmp_lg_u32 s{sWAVE}, 3"); e("s_cbranch_scc1 L_nowarm")
        e(f"s_getpc_b64 {sr(sPC)}")
        e(f"v_lshlrev_b32 v{vU}, 7, v{vLANE}")
        e(f"global_load_dword v{vAL}, v{vU}, {sr(sPC)}")
        e("L_nowarm:")
    e(f"s_lshl_b32 s{sH512}, s{sH}, 9")
    e(f"v_and_b32 v{vU}, 31, v{vLANE}")
    e(f"v_xor_b32 v{vU}, v{vU}, v{vT}")
    e(f"v_lshlrev_b32 v{vU}, 4, v{vU}")
    e(f"v_lshl_or_b32 v{vKOFF}, v{vT}, 12, v{vU}")
    e(f"s_lshl_b32 s{sT0}, s{sSPL}, 2"); e(f"s_add_u32 s{sT0}, s{sT0}, s{sWAVE}")
    def pack(b, st, nw): return st | ((st + nw - 1) << 8) | ((max(b, 0)) << 16) | ((0 if b < 0 else 1) << 24)
    b, st, nw, M = ws[0]
    e(f"s_mov_b32 s{sT1}, {pack(b, st, nw)}"); e(f"s_mov_b32 s{sT2}, {M}")
    for b, st, nw, M in ws[1:]:
        e(f"s_cmp_ge_u32 s{sT0}, {st}")
        e(f"s_cselect_b32 s{sT1}, {pack(b, st, nw)}, s{sT1}")
        e(f"s_cselect_b32 s{sT2}, {M}, s{sT2}")
    e(f"s_and_b32 s{sT3}, s{sT1}, 0xff")
    e(f"s_sub_u32 s{sT3}, s{sT0}, s{sT3}")
    e(f"s_mul_i32 s{sT3}, s{sT3}, s{sT2}")
    e(f"s_lshr_b32 s{sJ0}, s{sT3}, 16")
    if cfg.gran > 1: e(f"s_and_b32 s{sJ0}, s{sJ0}, {-cfg.gran}")
    e(f"s_add_u32 s{sJ1}, s{sT3}, s{sT2}")
    e(f"s_bfe_u32 s{sB}, s{sT1}, 0x80010")
    e(f"s_lshr_b32 s{sSH}, s{sT1}, 24")
    e(f"s_add_u32 s{sT2}, s{sB}, s{sSH}")
    e(f"s_lshl_b32 s{sT2}, s{sT2}, 11")
    e(f"s_add_u32 s{sT2}, s{sJ0}, s{sT2}")
    e(f"s_lshl_b32 s{sT2}, s{sT2}, 12")
    e(f"s_add_u32 s{sSOFF}, s{sT2}, s{sH512}")
    e(f"s_or_b32 s{sKSRD+2}, s{sT2}, 0xffff"); e(f"s_add_u32 s{sKSRD+2}, s{sKSRD+2}, 1")
    e(f"s_mov_b32 s{sVSRD+2}, s{sKSRD+2}")
    e(f"s_lshl_b32 s{sM0A}, s{sWAVE}, 13"); e(f"s_add_u32 s{sM0B}, s{sM0A}, 4096")
    for j in range(1, 8):
        e(f"v_xor_b32 v{vKOFF+j}, {32*j}, v{vKOFF}")
        e(f"v_add_u32 v{vKOFF+j}, {8192*j - (j&3)*1024}, v{vKOFF+j}")
    e(f"s_mov_b32 s{sKSRD+3}, 0x20000"); e(f"s_mov_b32 s{sVSRD+3}, 0x20000")
    e(f"s_mov_b32 m0, s{sM0A}")
    e(f"v_and_b32 v{vN}, 15, v{vLANE}"); e(f"v_lshrrev_b32 v{vG}, 4, v{vLANE}")
    e(f"v_lshlrev_b32 v{vVOFF}, 4, v{vN}"); e(f"v_lshl_or_b32 v{vVOFF}, v{vG}, 14, v{vVOFF}")
    for r in range(1, 4): e(f"v_add_u32 v{vVOFF+r}, {4096*r}, v{vVOFF}")
    e("s_waitcnt lgkmcnt(0)")
    stamp(1)
    e(f"s_mov_b32 s{sKSRD}, s{sK}"); e(f"s_mov_b32 s{sKSRD+1}, s{sK+1}")
    e(f"s_mov_b32 s{sVSRD}, s{sV}"); e(f"s_mov_b32 s{sVSRD+1}, s{sV+1}")
    kloads(True)
    for r in range(4):
        vload(r, 0); vload(r, 1)
    if cfg.touch:
        e(f"s_cmp_eq_u32 s{sWAVE}, 3"); e("s_cbranch_scc1 T_red")
        e(f"s_cmp_eq_u32 s{sSH}, 1"); e("s_cbranch_scc1 T_pr1")
        e(f"s_cmp_eq_u32 s{sWAVE}, 0"); e("s_cbranch_scc1 T_sh0")
        e("s_branch T_sh1")
    e("L_touch_ret:")
    e(f"s_mov_b32 s{sSPEC}, s{sSOFF}")
    e(f"s_add_u32 s{sSPEC1}, s{sKSRD+2}, s{sH512}")
    e(f"s_lshr_b32 s{sJ1}, s{sJ1}, 16")
    if cfg.gran > 1: e(f"s_and_b32 s{sJ1}, s{sJ1}, {-cfg.gran}")
    e(f"s_lshl_b32 s{sT2}, s{sSH}, 11")
    e(f"s_add_u32 s{sJ0}, s{sJ0}, s{sT2}"); e(f"s_add_u32 s{sJ1}, s{sJ1}, s{sT2}")
    e(f"s_bfe_u32 s{sT2}, s{sT1}, 0x80008")
    e(f"s_cmp_eq_u32 s{sT2}, s{sT0}")
    e(f"s_cselect_b32 s{sT2}, s{sSH}, 0")
    e(f"s_cmp_eq_u32 s{sT2}, 1")
    e(f"s_cselect_b32 s{sJ1}, 4096, s{sJ1}")
    e(f"s_cmp_eq_u32 s{sSH}, 0")
    e(f"s_cselect_b32 s{sT2}, 3, 0")
    e(f"s_cselect_b32 s{sT3}, 7, 63")
    e(f"s_lshr_b32 s{sT0}, s{sJ0}, 4")
    e(f"v_and_b32 v{vCOL}, s{sT3}, v{vLANE}")
    e(f"v_add_u32 v{vCOL}, s{sT0}, v{vCOL}")
    e(f"v_lshrrev_b32 v{vT}, 3, v{vLANE}")
    e(f"v_and_b32 v{vT}, s{sT2}, v{vT}")
    e(f"v_or_b32 v{vT}, s{sB}, v{vT}")
    e(f"v_min_u32 v{vU}, 255, v{vCOL}")
    e(f"v_lshlrev_b32 v{vNR}, 2, v{vU}")
    e(f"v_lshl_add_u32 v{vTAB}, v{vT}, 10, v{vNR}")
    e(f"v_lshlrev_b32 v{vCOL}, 4, v{vCOL}")
    e(f"v_and_b32 v{vF}, s{sT2}, v{vLANE}")
    e(f"v_or_b32 v{vF}, s{sB}, v{vF}")
    e(f"v_lshlrev_b32 v{vCTXG}, 2, v{vF}")
    e(f"s_mov_b32 s{sCM}, {cms[0]}")
    for s in range(1, 32):
        if cms[s] != cms[s - 1]:
            e(f"s_cmp_ge_u32 s{sSPL}, {s}"); e(f"s_cselect_b32 s{sCM}, {cms[s]}, s{sCM}")
    e(f"s_lshl_b32 s{sT2}, s{sWAVE}, 2")
    e(f"s_lshr_b32 s{sCM}, s{sCM}, s{sT2}"); e(f"s_and_b32 s{sCM}, s{sCM}, 15")
    e(f"s_lshl_b32 s{sT2}, s{sH}, 5"); e(f"s_add_u32 s{sT2}, s{sT2}, s{sSPL}"); e(f"s_lshl_b32 s{sT2}, s{sT2}, 13")
    e(f"s_add_u32 s{sSLOT}, s{sWS}, s{sT2}"); e(f"s_addc_u32 s{sSLOT+1}, s{sWS+1}, 0")
    e(f"s_lshl_b32 s{sT2}, s{sWAVE}, 11")
    e(f"v_lshl_add_u32 v{vL16}, v{vLANE}, 4, s{sT2}")
    e(f"s_mov_b32 s{sC}, {f2u(CF):#x}")
    e(f"s_mov_b32 s{sONE}, 0x11111111"); e(f"s_mov_b32 s{sONE+1}, s{sONE}")
    e(f"s_mov_b32 s{sI}, 0")
    e(f"v_mov_b32 v{vNINF}, 0xff800000")
    e(f"v_mov_b32 v{vM}, {NEG:#x}"); e(f"v_mov_b32 v{vL}, 0")
    e(f"v_lshlrev_b32 v{vT}, 9, v{vN}"); e(f"v_add_u32 v{vT}, s{sM0A}, v{vT}")
    e(f"v_xor_b32 v{vU}, v{vG}, v{vN}")
    for k in range(4):
        e(f"v_xor_b32 v{vKRD+k}, {4*k}, v{vU}")
        e(f"v_lshl_add_u32 v{vKRD+k}, v{vKRD+k}, 4, v{vT}")
    e(f"v_and_b32 v{vT}, 1, v{vLANE}"); e(f"v_lshlrev_b32 v{vT}, 4, v{vT}")
    e(f"v_mov_b32 v{vU}, 0xffff"); e(f"v_lshlrev_b32 v{vT}, v{vT}, v{vU}")
    e(f"v_bfe_u32 v{vU}, v{vLANE}, 1, 2")
    for k in range(4):
        e(f"v_cmp_eq_u32 {sr(sMK+2*k)}, {k}, v{vU}")
    for k in range(0, 32, 2): e(f"v_mov_b64 {vr(vACC+k,2)}, 0")
    for k in range(4):
        e(f"v_cndmask_b32 v{vMSK+k}, 0, v{vT}, {sr(sMK+2*k)}")
    e(f"v_mov_b32 v{vT}, {LDS_Z}")
    e(f"ds_write_b128 v{vT}, {vr(vACC)}"); e(f"ds_write_b128 v{vT}, {vr(vACC)} offset:1024")
    for w in range(4):
        e(f"s_bitcmp1_b32 s{sCM}, {w}"); e(f"s_cselect_b64 vcc, -1, 0")
        e(f"v_add_u32 v{vU}, {8192*w}, v{vL16}")
        e(f"v_cndmask_b32 v{vRA+w}, v{vT}, v{vU}, vcc")
    e(f"s_lshl_b32 s{sT2}, s{sB}, 11"); e(f"s_add_u32 s{sT2}, s{sT2}, s{sM0A}")
    e(f"v_lshl_add_u32 v{vDEP}, v{vLANE}, 4, s{sT2}")
    e(f"v_lshrrev_b32 v{vT}, 1, v{vG}")
    e(f"s_lshl_b32 s{sT2}, s{sWAVE}, 6"); e(f"s_add_u32 s{sT2}, s{sT2}, {LDS_H}")
    e(f"v_lshl_add_u32 v{vHR}, v{vT}, 5, s{sT2}")
    e(f"s_lshl_b32 s{sT2}, s{sH}, 2"); e(f"s_add_u32 s{sT2}, s{sT2}, s{sWAVE}"); e(f"s_lshl_b32 s{sT2}, s{sT2}, 6")
    e(f"s_add_u32 s{sT2}, s{sT2}, s{sSPL}"); e(f"s_lshl_b32 s{sT2}, s{sT2}, 4"); e(f"s_add_u32 s{sT2}, s{sT2}, {HDR}")
    e(f"v_lshl_add_u32 v{vGH}, v{vT}, 9, s{sT2}")
    e(f"v_mov_b32 v{vFA}, {LDS_F}")
    e(f"s_mov_b32 s{sFF}, 0xff")
    e(f"v_lshlrev_b32 v{vG4}, 2, v{vG}")
    e(f"s_lshl_b32 s{sT2}, s{sWAVE}, 11")
    e(f"v_lshl_add_u32 v{vPF}, v{vN}, 7, s{sT2}")
    e(f"s_cmp_eq_u32 s{sCM}, 0")
    e(f"s_cselect_b64 {sr(sPFX)}, 1, 0xffff")
    e(f"v_and_b32 v{vT}, 3, v{vN}"); e(f"v_lshrrev_b32 v{vU}, 3, v{vN}")
    e(f"v_lshl_add_u32 v{vT}, v{vT}, 1, v{vU}")
    e(f"s_lshl_b32 s{sT2}, s{sWAVE}, 3"); e(f"s_add_u32 s{sT2}, s{sT2}, {LDS_H}")
    e(f"v_lshl_add_u32 v{vHA}, v{vT}, 5, s{sT2}")
    e(f"v_lshl_add_u32 v{vT}, v{vF}, 1, v{vU}")
    e(f"v_lshlrev_b32 v{vU}, 1, v{vT}"); e(f"v_xor_b32 v{vU}, v{vU}, v{vG}")
    e(f"v_lshlrev_b32 v{vT}, 9, v{vT}")
    for k in range(4):
        e(f"v_xor_b32 v{vA+4+k}, {4*k}, v{vU}")
        e(f"v_lshl_add_u32 v{vA+4+k}, v{vA+4+k}, 4, v{vT}")
    if cfg.earlyk:
        e(f"s_mov_b32 s{sSOFF}, s{sSPEC1}")
        e(f"s_add_u32 s{sKSRD+2}, s{sKSRD+2}, 0x10000")
        e(f"s_mov_b32 m0, s{sM0A}")
        e("s_waitcnt vmcnt(8)")
        stamp(2)
        kreads()
        e("s_waitcnt lgkmcnt(0)")
        kloads(True)
    e("s_barrier")
    stamp(3)
    e(f"ds_read_b32 v{vTAB}, v{vTAB} offset:{LDS_T}")
    e(f"ds_read_b32 v{vNR}, v{vNR} offset:{LDS_T}")
    e(f"ds_read_b32 v{vCTXG}, v{vCTXG} offset:{LDS_C}")
    for i in range(8):
        e(f"ds_read_b128 {vr(vQF+4*i)}, v{vA+4+(i&3)} offset:{LDS_Q+256*(i>>2)}")
    e(f"v_max_u32 v{vT}, s{sJ0}, v{vCOL}")
    e(f"v_add_u32 v{vU}, 16, v{vCOL}")
    e("s_waitcnt lgkmcnt(8)")
    e(f"v_cmp_gt_i32 vcc, 1, v{vCTXG}")
    e(f"v_min_i32 v{vCTXG}, 4096, v{vCTXG}")
    e(f"v_cmp_ne_u32 {sr(sMK)}, v{vTAB}, v{vNR}")
    e("s_cbranch_vccnz L_zeroctx")
    e("L_zeroctx_ret:")
    e(f"v_readfirstlane_b32 s{sT1}, v{vCTXG}")
    e(f"v_min_u32 v{vTAB}, 639, v{vTAB}")
    e(f"v_lshlrev_b32 v{vTAB}, 4, v{vTAB}")
    e(f"v_sub_u32 v{vTAB}, v{vTAB}, v{vCOL}")
    e(f"s_cmp_eq_u32 s{sSH}, 0")
    e(f"s_cselect_b32 s{sT1}, 4096, s{sT1}")
    e(f"s_min_u32 s{sJ1}, s{sJ1}, s{sT1}")
    e(f"v_min_u32 v{vU}, s{sJ1}, v{vU}")
    e(f"v_max_u32 v{vU}, v{vU}, v{vT}")
    e(f"v_add_u32 v{vNR}, v{vTAB}, v{vU}")
    e(f"v_add_u32 v{vTAB}, v{vTAB}, v{vT}")
    e(f"v_lshlrev_b32 v{vNR}, 12, v{vNR}")
    e(f"v_lshl_add_u32 v{vTAB}, v{vTAB}, 12, s{sH512}")
    e(f"v_cmp_lt_u32 vcc, v{vT}, v{vU}")
    e(f"v_lshl_or_b32 v{vCOL}, v{vU}, 16, v{vT}")
    e(f"s_add_u32 s{sCNT}, s{sJ1}, 15"); e(f"s_lshr_b32 s{sCNT}, s{sCNT}, 4")
    e(f"v_cndmask_b32 v{vTAB}, 0, v{vTAB}, vcc")
    e(f"v_cndmask_b32 v{vNR}, 0, v{vNR}, vcc")
    e(f"s_and_b32 s{sFB}, s{sMK}, vcc_lo")
    e(f"v_readlane_b32 s{sT2}, v{vTAB}, 0")
    e(f"v_readlane_b32 s{sT3}, v{vTAB}, 1")
    e(f"s_sub_i32 s{sCNT}, s{sCNT}, s{sT0}"); e(f"s_max_i32 s{sCNT}, s{sCNT}, 1")
    e("s_waitcnt lgkmcnt(0)")
    e(f"s_cmp_lg_u32 s{sT2}, s{sSPEC}"); e("s_cbranch_scc1 L_respec")
    if cfg.earlyk:
        e(f"s_cmp_lg_u32 s{sT3}, s{sSPEC1}"); e("s_cbranch_scc1 L_respec")
        e(f"s_mov_b32 s{sSPEC}, 1")
    e(f"s_cmp_eq_u32 s{sSH}, 0")
    e("s_cbranch_scc1 L_sh_setup")
    if cfg.earlyk: e("s_branch L_pr_first")

    def loop(tag, pairs, stubs):
        shared = len(pairs) > 1
        e(f"L_{tag}_loop:")
        e("s_waitcnt vmcnt(8)")
        kreads()
        if cfg.earlyk: e(f"s_mov_b32 s{sSPEC}, 0")
        e(f"L_{tag}_first:")
        e(f"s_add_u32 s{sINX}, s{sI}, 1")
        e(f"v_readlane_b32 s{sCOL}, v{vCOL}, s{sI}")
        e(f"v_readlane_b32 s{sSOFF}, v{vTAB}, s{sINX}")
        e(f"v_readlane_b32 s{sKSRD+2}, v{vNR}, s{sINX}")
        e(f"v_readlane_b32 s{sVSRD+2}, v{vNR}, s{sINX}")
        e(f"s_lshr_b32 s{sT3}, s{sCOL}, 16"); e(f"s_and_b32 s{sCOL}, s{sCOL}, 0xffff")
        if shared:
            e(f"s_lshr_b32 s{sT2}, s{sI}, 3")
            e(f"s_lshl_b64 {sr(sLM)}, {sr(sONE)}, s{sT2}")
            e(f"s_cmp_eq_u32 s{sFB}, 0")
            e(f"s_cselect_b64 {sr(sLM)}, -1, {sr(sLM)}")
            e(f"v_min_u32 v{vLIM}, s{sT3}, v{vCTXG}")
            e(f"v_subrev_u32 v{vLIM}, s{sCOL}, v{vLIM}")
            e(f"v_sub_u32 v{vLIM}, v{vLIM}, v{vG4}")
            e(f"v_cndmask_b32 v{vLIM}, 0, v{vLIM}, {sr(sLM)}")
        else:
            e(f"s_sub_u32 s{sT3}, s{sT3}, s{sCOL}")
            e(f"v_sub_u32 v{vLIM}, s{sT3}, v{vG4}")
        for r in range(4):
            e(f"v_cmp_lt_i32 {sr(sMK+2*r)}, {r}, v{vLIM}")
        e(f"s_mov_b32 s{sI}, s{sINX}")
        e(f"s_mov_b32 m0, s{sM0A}")
        if cfg.earlyk:
            e(f"s_cmp_ge_u32 s{sINX}, s{sCNT}")
            e(f"s_cselect_b32 s{sSPEC}, 1, s{sSPEC}")
            e(f"s_cmp_eq_u32 s{sSPEC}, 1")
        else:
            e(f"s_cmp_ge_u32 s{sINX}, s{sCNT}")
        for i in range(8):
            e(f"s_waitcnt lgkmcnt({7-i})")
            e(f"v_mfma_f32_16x16x32_bf16 {vr(vS)}, {vr(vKF+4*i)}, {vr(vQF+4*i)}, " + ("0" if i == 0 else vr(vS)))
        e(f"s_cbranch_scc1 L_{tag}_skipk")
        kloads(True)
        e(f"s_branch L_{tag}_sm")
        if "k" in stubs: stub(stubs["k"])
        e(f"L_{tag}_skipk:")
        e(f"s_cmp_ge_u32 s{sINX}, s{sCNT}")
        e("s_nop 5")
        e(f"L_{tag}_sm:")
        for r in range(4):
            e(f"v_cndmask_b32 v{vS+r}, v{vNINF}, v{vS+r}, {sr(sMK+2*r)}")
        e(f"v_max3_f32 v{vT}, v{vS}, v{vS+1}, v{vS+2}")
        e(f"v_max3_f32 v{vT}, v{vT}, v{vS+3}, v{vM}")
        e(f"v_mov_b32 v{vU}, v{vT}"); e("s_nop 1")
        e(f"v_permlane32_swap_b32 v{vT}, v{vU}"); e("s_nop 0")
        e(f"v_max_f32 v{vT}, v{vT}, v{vU}")
        e(f"v_mov_b32 v{vU}, v{vT}"); e("s_nop 1")
        e(f"v_permlane16_swap_b32 v{vT}, v{vU}"); e("s_nop 0")
        e(f"v_max_f32 v{vT}, v{vT}, v{vU}")
        e(f"v_sub_f32 v{vAL}, v{vM}, v{vT}")
        e(f"v_mul_f32 v{vNMC}, s{sC}, v{vT}")
        e(f"v_mul_f32 v{vAL}, s{sC}, v{vAL}")
        e(f"v_mov_b32 v{vM}, v{vT}")
        e(f"v_exp_f32 v{vAL}, v{vAL}")
        for r in range(4):
            e(f"v_fma_f32 v{vS+r}, v{vS+r}, s{sC}, -v{vNMC}")
        for r in range(4):
            e(f"v_exp_f32 v{vS+r}, v{vS+r}")
        for p in pairs:
            e(f"v_mov_b32_dpp v{vA+2*p}, v{vAL} row_newbcast:{p} row_mask:0x3 bank_mask:0xf")
            e(f"v_mov_b32_dpp v{vA+2*p}, v{vAL} row_newbcast:{8+p} row_mask:0xc bank_mask:0xf")
        e(f"v_fma_f32 v{vL}, v{vL}, v{vAL}, v{vS}")
        e(f"v_add_f32 v{vT}, v{vS+1}, v{vS+2}")
        for r in range(4):
            e(f"v_cvt_pk_bf16_f32 v{vP+r}, v{vS+r}, v{vS+r}")
        e(f"v_add_f32 v{vL}, v{vL}, v{vS+3}")
        e(f"v_add_f32 v{vL}, v{vL}, v{vT}")
        for p in pairs:
            for k in range(0, 8, 2):
                e(f"v_pk_mul_f32 {vr(vACC+8*p+k,2)}, {vr(vACC+8*p+k,2)}, {vr(vA+2*p,2)} op_sel_hi:[1,0]")
        for r in range(4):
            for p in pairs:
                for k in range(4):
                    if shared:
                        e(f"v_and_b32_dpp v{vA+4*p+k}, v{vP+r}, v{vMSK+k} quad_perm:[{p},{p},{p},{p}] row_mask:0xf bank_mask:0xf")
                    else:
                        e(f"v_and_b32 v{vA+4*(r&1)+k}, v{vP+r}, v{vMSK+k}")
            e(f"s_cbranch_scc1 L_{tag}_last{r}")
            if r > 0:
                vload(r - 1, 0); vload(r - 1, 1)
            e("s_waitcnt vmcnt(14)")
            e(f"s_branch L_{tag}_pv{r}")
            if r in stubs: stub(stubs[r])
            e(f"L_{tag}_last{r}:")
            if r == 0:
                e(f"v_mov_b32 v{vU}, v{vL}"); e("s_nop 1")
                e(f"v_permlane32_swap_b32 v{vL}, v{vU}"); e("s_nop 0")
                e(f"v_add_f32 v{vL}, v{vL}, v{vU}")
                e(f"v_mov_b32 v{vU}, v{vL}"); e("s_nop 1")
                e(f"v_permlane16_swap_b32 v{vL}, v{vU}"); e("s_nop 0")
                if shared:
                    e(f"v_add_f32 v{vW+1}, v{vL}, v{vU}")
                    e(f"v_mov_b32 v{vW}, v{vM}")
                else:
                    e(f"v_add_f32 v{vL}, v{vL}, v{vU}")
                    e(f"v_and_b32 v{vU}, 3, v{vN}")
                    e(f"v_cmp_eq_u32 vcc, s{sB}, v{vU}")
                    e(f"v_mov_b32 v{vU}, {NEG:#x}")
                    e("s_nop 0")
                    e(f"v_cndmask_b32 v{vW}, v{vU}, v{vM}, vcc")
                    e(f"v_cndmask_b32 v{vW+1}, 0, v{vL}, vcc")
                e(f"ds_write_b64 v{vHA}, {vr(vW,2)}")
            if cfg.pf == r:
                e(f"s_mov_b64 exec, {sr(sPFX)}")
                e(f"global_load_dword v{vPF}, v{vPF}, {sr(sSLOT)} {cfg.pff}")
                e("s_mov_b64 exec, -1")
            e(f"s_waitcnt vmcnt({6-2*r + (1 if cfg.pf is not None and cfg.pf <= r else 0)})")
            e(f"L_{tag}_pv{r}:")
            for hf in range(2):
                for p in pairs:
                    a = vA + 4 * p if shared else vA + 4 * (r & 1)
                    e(f"v_mfma_f32_16x16x32_bf16 {vr(vACC+8*p+4*hf)}, {vr(a)}, {vr(vVF+8*r+4*hf)}, {vr(vACC+8*p+4*hf)}")
        e(f"s_cbranch_scc1 L_{tag}_done")
        vload(3, 0); vload(3, 1)
        e(f"s_branch L_{tag}_loop")
        if "e" in stubs: stub(stubs["e"])
        e(f"L_{tag}_done:")
        stamp(4)
        order = [(p, hf) for hf in range(2) for p in pairs]
        e("s_nop 6" if not shared else "s_nop 1")
        for n, (p, hf) in enumerate(order):
            e(f"ds_write_b128 v{vDEP}, {vr(vACC+8*p+4*hf)} offset:{2048*p+1024*hf}")

    loop("pr", [0], {"k": "pr1", "e": "red"})
    e("L_reduce:")
    e(f"s_cmp_eq_u32 s{sCM}, 0")
    e("s_waitcnt lgkmcnt(0)")
    e("s_barrier")
    stamp(5)
    e("s_cbranch_scc1 L_fin2")
    HG = vP
    e(f"ds_read_b64 {vr(vW,2)}, v{vFA}")
    e(f"ds_read_b128 {vr(vA)}, v{vHR}"); e(f"ds_read_b128 {vr(vA+4)}, v{vHR} offset:16")
    for w in range(4):
        e(f"ds_read_b128 {vr(vRD+8*w)}, v{vRA+w}")
        e(f"ds_read_b128 {vr(vRD+8*w+4)}, v{vRA+w} offset:1024")
    e("s_waitcnt lgkmcnt(8)")
    e(f"v_max3_f32 v{HG}, v{vA}, v{vA+2}, v{vA+4}")
    e(f"v_max_f32 v{HG}, v{HG}, v{vA+6}")
    e(f"v_and_b32 v{HG}, 0xffffff00, v{HG}")
    for w in range(4): e(f"v_sub_f32 v{vA+2*w}, v{vA+2*w}, v{HG}")
    for w in range(4): e(f"v_mul_f32 v{vA+2*w}, s{sC}, v{vA+2*w}")
    for w in range(4): e(f"v_exp_f32 v{vA+2*w}, v{vA+2*w}")
    e(f"v_cmp_eq_u32 vcc, 0, v{vW+1}")
    e(f"v_mul_f32 v{HG+1}, v{vA}, v{vA+1}")
    e(f"v_bfi_b32 v{HG}, s{sFF}, v{vW}, v{HG}")
    for w in range(1, 4): e(f"v_fmac_f32 v{HG+1}, v{vA+2*w}, v{vA+2*w+1}")
    e("s_waitcnt lgkmcnt(6)")
    for k in range(0, 8, 2): e(f"v_pk_mul_f32 {vr(vKF+k,2)}, {vr(vRD+k,2)}, {vr(vA,2)} op_sel_hi:[1,0]")
    e(f"v_mov_b32 v{HG+2}, v{vW}"); e(f"v_mov_b32 v{HG+3}, v{vW}")
    e(f"v_bfi_b32 v{HG+1}, s{sFF}, v{vW}, v{HG+1}")
    for w in range(1, 4):
        e(f"s_waitcnt lgkmcnt({6-2*w})")
        for k in range(0, 8, 2): e(f"v_pk_fma_f32 {vr(vKF+k,2)}, {vr(vRD+8*w+k,2)}, {vr(vA+2*w,2)}, {vr(vKF+k,2)} op_sel_hi:[1,0,1]")
    def publish(fl):
        for k in range(4): e(f"v_bfi_b32 v{vKF+k}, s{sFF}, v{vW}, v{vKF+k}")
        e(f"global_store_dwordx4 v{vL16}, {vr(vKF)}, {sr(sSLOT)} {fl}")
        for k in range(4, 8): e(f"v_bfi_b32 v{vKF+k}, s{sFF}, v{vW}, v{vKF+k}")
        e(f"global_store_dwordx4 v{vL16}, {vr(vKF+4)}, {sr(sSLOT)} offset:1024 {fl}")
        e("s_mov_b32 exec_lo, 1"); e("s_mov_b32 exec_hi, 1")
        e(f"global_store_dwordx4 v{vGH}, {vr(HG)}, {sr(sWS)} {fl}")
    e("s_cbranch_vccnz L_pubsafe")
    publish(cfg.dst)
    stamp(6)
    e("L_fin2:")
    if dbg: e("s_branch L_fin")
    else: e("s_endpgm")
    e("L_pubsafe:")
    publish("sc0 sc1")
    stamp(6)
    e("s_branch L_fin2")
    e("L_respec:")
    e("s_waitcnt vmcnt(0)")
    e(f"s_mov_b32 s{sSOFF}, s{sT2}")
    e(f"v_readlane_b32 s{sKSRD+2}, v{vNR}, 0")
    e(f"v_readlane_b32 s{sVSRD+2}, v{vNR}, 0")
    e("s_nop 4")
    kloads(False)
    for r in range(4):
        vload(r, 0); vload(r, 1)
    e(f"s_cmp_eq_u32 s{sSH}, 1")
    e("s_cbranch_scc1 L_pr_loop")
    e(f"s_cmp_lg_u32 s{sFB}, 0")
    e(f"s_cselect_b32 s{sCNT}, 32, s{sCNT}")
    e("s_branch L_sh_loop")
    e("L_zeroctx:")
    e("s_waitcnt lgkmcnt(0)")
    e("s_mov_b64 exec, vcc")
    e(f"v_mov_b32 v{vCTXG}, 4096")
    for k in range(0, 32, 2): e(f"v_mov_b64 {vr(vQF+k,2)}, 0")
    e("s_mov_b64 exec, -1")
    e("s_nop 0")
    e("s_branch L_zeroctx_ret")

    e(".p2align 12" if cfg.pad else ".p2align 6")
    stub("sh0")
    e("L_sh_setup:")
    e(f"s_cmp_lg_u32 s{sFB}, 0")
    e(f"s_cselect_b32 s{sCNT}, 32, s{sCNT}")
    if cfg.earlyk: e("s_branch L_sh_first")
    loop("sh", [0, 1, 2, 3], {0: "sh1"})
    e("s_branch L_reduce")

    nsh = [s for s in range(32) if any(seg_of_wave[4*s+w] < 0 for w in range(4))]
    assert nsh == list(range(len(nsh)))
    a = len(nsh)
    lo = []; hi = []
    for p in range(4):
        sl = [s for s in range(32) if any(seg_of_wave[4*s+w] == p for w in range(4)) and s >= a]
        assert sl == list(range(sl[0], sl[-1] + 1)) and 13 <= a + len(sl) <= 16, (p, sl)
        lo.append(sl[0]); hi.append(sl[-1] + 1)
    D, H, DA, HA, CL = vQF, vQF + 16, vKF, vKF + 4, vVF
    e("L_helper:")
    e(f"s_getreg_b32 s{sT1}, hwreg(HW_REG_XCC_ID, 0, 4)")
    e(f"s_sub_u32 s{sT3}, s{sT3}, 1024")
    e(f"v_and_b32 v{vT}, 31, v{vLANE}")
    e(f"v_lshl_add_u32 v{vCOL}, v{vT}, 2, s{sT3}")
    e(f"s_lshl_b32 s{sT2}, s{sSPL}, 2"); e(f"s_add_u32 s{sT2}, s{sT2}, s{sT3}")
    e(f"v_mov_b32 v{vU}, s{sT2}")
    e("s_waitcnt vmcnt(0)")
    e("s_barrier")
    stamp(3)
    e("s_setprio 0")
    e("s_waitcnt lgkmcnt(0)")
    e(f"s_add_u32 s{sTAG}, s{sTAG}, 1")
    e(f"s_lshl_b32 s{sB}, s{sTAG}, 4"); e(f"s_or_b32 s{sB}, s{sB}, s{sT1}")
    e(f"v_mov_b32 v{vT}, s{sB}")
    e("s_mov_b64 exec, 1")
    e(f"global_store_dword v{vU}, v{vT}, {sr(sWS)}")
    e("s_mov_b64 exec, -1")
    e(f"s_and_b32 s{sT8}, s{sTAG}, 0xff")
    e(f"s_mov_b32 s{sFF}, 0xff")
    e(f"v_mov_b32 v{vW}, s{sTAG}")
    e(f"s_mov_b32 s{sC}, {f2u(CF):#x}")
    e(f"s_lshl_b32 s{sT2}, s{sH}, 18")
    e(f"s_add_u32 s{sHB}, s{sWS}, s{sT2}"); e(f"s_addc_u32 s{sHB+1}, s{sWS+1}, 0")
    e(f"v_bfe_u32 v{vG}, v{vLANE}, 2, 2")
    e(f"v_lshrrev_b32 v{vN}, 4, v{vLANE}"); e(f"v_and_b32 v{vAL}, 3, v{vLANE}")
    e(f"v_lshl_or_b32 v{vN}, v{vN}, 2, v{vAL}")
    e(f"s_lshr_b32 s{sT0}, s{sSPL}, 3")
    lop = sum((lo[p] - a) << (8 * p) for p in range(4)); hip_ = sum(hi[p] << (8 * p) for p in range(4))
    e(f"s_lshl_b32 s{sT1}, s{sT0}, 3")
    e(f"s_lshr_b32 s{sT2}, {lop:#x}, s{sT1}"); e(f"s_and_b32 s{sT2}, s{sT2}, 0xff")
    e(f"s_lshr_b32 s{sT3}, {hip_:#x}, s{sT1}"); e(f"s_and_b32 s{sT3}, s{sT3}, 0xff")
    e(f"s_lshl_b32 s{sI}, s{sT0}, 11")
    e(f"s_bfe_u32 s{sINX}, s{sSPL}, 0x10001"); e(f"s_lshl_b32 s{sCOL}, s{sINX}, 10"); e(f"s_add_u32 s{sI}, s{sI}, s{sCOL}")
    e(f"s_bfe_u32 s{sCNT}, s{sSPL}, 0x10002"); e(f"s_lshl_b32 s{sCOL}, s{sCNT}, 9"); e(f"s_add_u32 s{sI}, s{sI}, s{sCOL}")
    e(f"s_and_b32 s{sSOFF}, s{sSPL}, 1"); e(f"s_lshl_b32 s{sCOL}, s{sSOFF}, 7"); e(f"s_add_u32 s{sI}, s{sI}, s{sCOL}")
    e(f"v_and_b32 v{vT}, 7, v{vN}"); e(f"v_lshrrev_b32 v{vU}, 3, v{vN}")
    e(f"v_lshlrev_b32 v{vL}, 4, v{vT}"); e(f"v_lshl_add_u32 v{vL}, v{vU}, 8, v{vL}"); e(f"v_add_u32 v{vL}, s{sI}, v{vL}")
    def slot_of(idxreg, mask):
        e(f"v_add_u32 v{vF}, s{sT2}, v{idxreg}")
        e(f"v_cmp_gt_u32 vcc, {a}, v{idxreg}"); e("s_nop 1")
        e(f"v_cndmask_b32 v{idxreg}, v{vF}, v{idxreg}, vcc")
        e(f"v_cmp_gt_u32 {sr(mask)}, s{sT3}, v{idxreg}")
    for k in range(4):
        e(f"v_add_u32 v{vM}, {4*k}, v{vG}")
        if 4 * k + 3 >= a:
            slot_of(vM, sEX + 2 * k)
            for j in range(4): e(f"v_mov_b32 v{D+4*k+j}, s{sT8}")
        e(f"v_lshl_add_u32 v{DA+k}, v{vM}, 13, v{vL}")
    e(f"v_lshl_add_u32 v{vM}, v{vAL}, 2, v{vG}")
    slot_of(vM, sLM)
    e(f"s_lshl_b32 s{sCOL}, s{sH}, 3"); e(f"s_lshr_b32 s{sI}, s{sSPL}, 2"); e(f"s_add_u32 s{sCOL}, s{sCOL}, s{sI}")
    e(f"s_lshl_b32 s{sCOL}, s{sCOL}, 9"); e(f"s_add_u32 s{sCOL}, s{sCOL}, {HDR}")
    e(f"v_lshl_add_u32 v{HA}, v{vM}, 4, s{sCOL}")
    e(f"v_mov_b32 v{H}, {NEG:#x}"); e(f"v_mov_b32 v{H+1}, 0")
    e(f"s_lshl_b32 s{sI}, s{sT0}, 13"); e(f"s_lshl_b32 s{sCOL}, s{sH}, 10"); e(f"s_add_u32 s{sI}, s{sI}, s{sCOL}")
    e(f"s_lshl_b32 s{sCOL}, s{sCNT}, 9"); e(f"s_add_u32 s{sI}, s{sI}, s{sCOL}")
    e(f"s_and_b32 s{sCOL}, s{sSPL}, 3"); e(f"s_lshl_b32 s{sCOL}, s{sCOL}, 7"); e(f"s_add_u32 s{sI}, s{sI}, s{sCOL}")
    e(f"v_lshlrev_b32 v{vT}, 4, v{vT}"); e(f"v_lshl_add_u32 v{vT}, v{vU}, 3, v{vT}"); e(f"v_add_u32 v{vLIM}, s{sI}, v{vT}")
    e(f"s_mov_b32 s{sJ0}, {cfg.spin}")
    e(f"s_mov_b32 s{sT2}, {cfg.hello_tries}")
    e(f"v_mov_b32 v{vW+1}, 1")
    e("L_hello:")
    e(f"s_sleep {cfg.hello_sleep}")
    e(f"global_load_dword v{vU}, v{vCOL}, {sr(sWS)} sc1")
    e("s_waitcnt vmcnt(0)")
    e(f"v_cmp_ne_u32 vcc, s{sB}, v{vU}")
    e(f"s_sub_u32 s{sT2}, s{sT2}, 1")
    if not cfg.force_safe: e("s_cbranch_vccz L_hello_ok")
    e("s_cbranch_scc0 L_hello")
    e(f"v_mov_b32 v{vW+1}, 0")
    e(f"s_mov_b32 s{sSH}, 0")
    e("s_branch L_hello_done")
    e("L_hello_ok:")
    e(f"s_mov_b32 s{sSH}, 1")
    e(f"s_cmp_lg_u32 s{sSPL}, 0"); e("s_cbranch_scc1 L_hello_done")
    e("s_mov_b64 exec, 1")
    e(f"global_store_dword v{vCOL}, v{vW}, {sr(sWS)} offset:1024")
    e("s_mov_b64 exec, -1")
    e("L_hello_done:")
    e(f"v_mov_b32 v{vF}, {LDS_F}")
    e(f"ds_write_b64 v{vF}, {vr(vW,2)}")
    e(f"s_mov_b64 exec, {sr(sLM)}")
    e(f"global_load_dwordx4 {vr(H)}, v{HA}, {sr(sWS)} sc1")
    if cfg.dwarm is None:
        e("s_mov_b64 exec, 1")
        e(f"global_load_dword v{vF}, v{DA}, {sr(sHB)} sc1 nt")
    else:
        for k in range(4):
            e(f"s_mov_b64 exec, " + (sr(sEX+2*k) if 4 * k + 3 >= a else "-1"))
            e(f"global_load_dword v{vF}, v{DA+k}, {sr(sHB)} {cfg.dwarm}")
    e(f"s_mov_b64 exec, {sr(sLM)}")
    stamp(2)
    e("s_setprio 3")
    e("s_waitcnt lgkmcnt(0)")
    e("s_barrier")
    stamp(5)
    if cfg.nopoll: e("s_branch L_fin")
    e("L_poll:")
    e(f"global_load_dwordx4 {vr(H)}, v{HA}, {sr(sWS)} sc1")
    e(f"s_sub_u32 s{sJ0}, s{sJ0}, 1"); e("s_cbranch_scc1 L_fin")
    e("s_waitcnt vmcnt(0)")
    e(f"v_bitop3_b32 v{vA}, v{H}, v{H+1}, s{sTAG} bitop3:0x7e")
    e(f"v_bitop3_b32 v{vA+1}, v{H+2}, v{H+3}, s{sTAG} bitop3:0x7e")
    e(f"v_and_or_b32 v{vA}, v{vA}, s{sFF}, v{vA+1}")
    e(f"v_cmp_ne_u32 vcc, 0, v{vA}")
    e("s_cbranch_vccnz L_poll")
    stamp(7)
    e("L_data:")
    for k in range(4):
        e(f"s_mov_b64 exec, " + (sr(sEX+2*k) if 4 * k + 3 >= a else "-1")) if (k == 0 or 4 * k + 3 >= a) else None
        e(f"global_load_dwordx4 {vr(D+4*k)}, v{DA+k}, {sr(sHB)} {cfg.dld}")
    e("s_mov_b64 exec, -1")
    dpp = ["quad_perm:[1,0,3,2]", "quad_perm:[2,3,0,1]", "row_ror:4", "row_ror:8"]
    e(f"v_and_b32 v{vM}, 0xffffff00, v{H}")
    e(f"v_and_b32 v{vL}, 0xffffff00, v{H+1}")
    e(f"s_sub_u32 s{sJ0}, s{sJ0}, 1"); e("s_cbranch_scc1 L_fin")
    e(f"v_max_f32_dpp v{vT}, v{vM}, v{vM} {dpp[0]} row_mask:0xf bank_mask:0xf")
    for x in dpp[1:]:
        e("s_nop 1")
        e(f"v_max_f32_dpp v{vT}, v{vT}, v{vT} {x} row_mask:0xf bank_mask:0xf")
    e(f"v_sub_f32 v{vM}, v{vM}, v{vT}")
    e(f"v_mul_f32 v{vM}, s{sC}, v{vM}")
    e(f"v_exp_f32 v{vM}, v{vM}")
    e("s_nop 0")
    e(f"v_mul_f32 v{vL}, v{vL}, v{vM}")
    for x in dpp:
        e("s_nop 1")
        e(f"v_add_f32_dpp v{vL}, v{vL}, v{vL} {x} row_mask:0xf bank_mask:0xf")
    e(f"v_rcp_f32 v{vL}, v{vL}")
    e("s_nop 0")
    e(f"v_mul_f32 v{vM}, v{vM}, v{vL}")
    e("s_nop 1")
    for k in range(4):
        e(f"v_mov_b32_dpp v{vA+8+2*k}, v{vM} quad_perm:[{k},{k},{k},{k}] row_mask:0xf bank_mask:0xf")
    for k in range(4):
        e(f"s_waitcnt vmcnt({3-k})")
        for j in range(4): e(f"v_xor_b32 v{CL+4*k+j}, s{sT8}, v{D+4*k+j}")
        for j in range(0, 4, 2):
            if k == 0: e(f"v_pk_mul_f32 {vr(vA+j,2)}, {vr(CL+j,2)}, {vr(vA+8,2)} op_sel_hi:[1,0]")
            else: e(f"v_pk_fma_f32 {vr(vA+j,2)}, {vr(CL+4*k+j,2)}, {vr(vA+8+2*k,2)}, {vr(vA+j,2)} op_sel_hi:[1,0,1]")
        if k == 0:
            e(f"v_or3_b32 v{vU}, v{CL}, v{CL+1}, v{CL+2}")
            e(f"v_or_b32 v{vU}, v{vU}, v{CL+3}")
        else:
            e(f"v_or3_b32 v{vU}, v{vU}, v{CL+4*k}, v{CL+4*k+1}")
            e(f"v_or3_b32 v{vU}, v{vU}, v{CL+4*k+2}, v{CL+4*k+3}")
    for j in range(4):
        e(f"v_add_f32_dpp v{vA+j}, v{vA+j}, v{vA+j} row_ror:4 row_mask:0xf bank_mask:0xf")
    e(f"v_and_b32 v{vU}, 0xff, v{vU}")
    for j in range(4):
        e(f"v_add_f32_dpp v{vA+j}, v{vA+j}, v{vA+j} row_ror:8 row_mask:0xf bank_mask:0xf")
    e(f"v_cmp_ne_u32 vcc, 0, v{vU}")
    e(f"v_cvt_pk_bf16_f32 v{vS}, v{vA}, v{vA+1}")
    e(f"v_cvt_pk_bf16_f32 v{vS+1}, v{vA+2}, v{vA+3}")
    e("s_mov_b32 exec_lo, 0x000f000f"); e("s_mov_b32 exec_hi, 0x000f000f")
    e("s_cbranch_vccnz L_data")
    e(f"global_store_dwordx2 v{vLIM}, {vr(vS,2)}, {sr(sOUT)} {cfg.out_flags}")
    e(f"s_or_b32 s{sT2}, s{sSH}, s{sSPL}"); e("s_cbranch_scc1 L_fin")
    e("s_mov_b64 exec, -1")
    firstp = [min(p for p in range(4) if (cms[t] >> (4 * p)) & 15) for t in range(32)]
    e(f"v_and_b32 v{vT}, 31, v{vLANE}")
    e(f"s_lshl_b32 s{sT2}, s{sH}, 12"); e(f"s_add_u32 s{sT2}, s{sT2}, {HDR + 8 + 1024 * firstp[0]}")
    e(f"v_lshl_add_u32 v{vU}, v{vT}, 4, s{sT2}")
    for t in range(1, 32):
        if firstp[t] != firstp[t - 1]:
            e(f"v_cmp_le_u32 vcc, {t}, v{vT}")
            e(f"v_add_u32 v{vF}, {1024 * (firstp[t] - firstp[t-1])}, v{vU}")
            e("s_nop 0")
            e(f"v_cndmask_b32 v{vU}, v{vU}, v{vF}, vcc")
    e("L_ep:")
    e(f"s_sub_u32 s{sJ0}, s{sJ0}, 1"); e("s_cbranch_scc1 L_fin")
    e(f"global_load_dword v{vF}, v{vU}, {sr(sWS)} sc1")
    e("s_waitcnt vmcnt(0)")
    e(f"v_cmp_ne_u32 vcc, s{sTAG}, v{vF}")
    e("s_nop 1")
    e("s_cbranch_vccnz L_ep")
    e("s_mov_b64 exec, 1")
    e(f"global_store_dword v{vCOL}, v{vW}, {sr(sWS)} offset:1024")
    e("L_fin:")
    if cfg.probe:
        k, mult = cfg.probe
        if k == 8:
            e("s_waitcnt vmcnt(0)"); e(f"s_memrealtime {sr(sST+2)}"); k = 1
        e("s_waitcnt lgkmcnt(0)")
        if k > 0:
            e(f"s_sub_u32 s{sT0}, s{sST+2*k}, s{sST}")
            e(f"s_cmp_gt_u32 s{sT0}, 3000"); e(f"s_cselect_b32 s{sT0}, 0, s{sT0}")
            e(f"s_mul_i32 s{sT0}, s{sT0}, {mult}")
        else:
            e(f"s_mov_b32 s{sT0}, 0")
        e(f"s_add_u32 s{sT0}, s{sT0}, 4000")
        e("L_probe:")
        e("s_sleep 8")
        e(f"s_memrealtime {sr(sMK)}"); e("s_waitcnt lgkmcnt(0)")
        e(f"s_sub_u32 s{sT1}, s{sMK}, s{sST}")
        e(f"s_cmp_lt_u32 s{sT1}, s{sT0}"); e("s_cbranch_scc1 L_probe")
    if cfg.stamps:
        e("s_mov_b64 exec, -1")
        e("s_waitcnt vmcnt(0)")
        e(f"s_memrealtime {sr(sMK)}")
        e("s_waitcnt lgkmcnt(0)")
        e(f"s_min_u32 s{sWAVE}, s{sWAVE}, 4")
        e(f"s_lshl_b32 s{sT2}, s2, 4"); e(f"s_add_u32 s{sT2}, s{sT2}, s{sWAVE}"); e(f"s_lshl_b32 s{sT2}, s{sT2}, 6")
        e(f"s_add_u32 s{sT2}, s{sT2}, 0x8000000")
        e(f"v_mov_b32 v{vT}, s{sT2}")
        e(f"s_getreg_b32 s{sT3}, hwreg(HW_REG_XCC_ID)")
        for k in range(8): e(f"v_mov_b32 v{vKF+k}, s{sST+2*k}")
        e(f"v_mov_b32 v{vKF+8}, s{sMK}"); e(f"v_mov_b32 v{vKF+9}, s{sT3}"); e(f"v_mov_b32 v{vKF+10}, 0x12345678"); e(f"v_mov_b32 v{vKF+11}, s{sJ0}")
        for k in range(3):
            e(f"global_store_dwordx4 v{vT}, {vr(vKF+4*k)}, {sr(sWS)} offset:{16*k}")
    e("s_endpgm")
    e(".p2align 12" if cfg.pad else ".p2align 6")
    e(".fill 128, 4, 0xbf800000")
    e('.section .rodata,"a"'); e(".p2align 6"); e(f".amdhsa_kernel {NAME}")
    e(f"  .amdhsa_next_free_vgpr {NV}"); e("  .amdhsa_next_free_sgpr 102"); e(f"  .amdhsa_accum_offset {NV}")
    e("  .amdhsa_group_segment_fixed_size 0"); e("  .amdhsa_kernarg_size 64"); e("  .amdhsa_user_sgpr_count 2")
    e("  .amdhsa_user_sgpr_kernarg_segment_ptr 1"); e("  .amdhsa_system_sgpr_workgroup_id_x 1"); e(".end_amdhsa_kernel")
    out = []
    for x in L:
        if x.endswith(":") or x.startswith(".") or x.startswith(";") or x.startswith("  ."): out.append(x)
        else: out.append("    " + x)
    return "\n".join(out) + "\n"

if __name__ == "__main__":
    ap = argparse.ArgumentParser()
    ap.add_argument("out"); ap.add_argument("opts", nargs="*")
    a = ap.parse_args()
    cfg = Cfg()
    for o in a.opts:
        k, v = o.split("=", 1)
        assert hasattr(cfg, k), k
        setattr(cfg, k, eval(v))
    open(a.out, "w").write(gen(cfg))
```

```python
import sys, math, argparse, struct
NAME = "standalone__paged_block_table_kv_radixattention__decode_kernel"
HEADER = open("standalone__paged_block_table_kv_radixattention__decode.s.ref").read().split("; Override launch")[0]
STOK = 2048
CTX = [3663, 3230, 3821, 3388]
SLOT = 8192
HDR = 256 * SLOT
HELLO = HDR + 32768
EPO = HELLO + 1024
KVBYTES = 41943040
CF = math.log2(math.e) / 16.0
def f2u(x): return struct.unpack("<I", struct.pack("<f", x))[0]
NEG = f2u(-1e30) & ~0xff

class Cfg:
    segs = [(-1, 33), (2, 28), (0, 26), (1, 19), (3, 22)]
    dep = 2; pfn = 12; redu = 3; lag = (0, 0)
    inred = True; redat = 2; tl = False; ilv = True
    dld = "sc1"; dst = ""; dwarm = None; pf = 0; pff = ""
    gran = 1
    stamps = False
    lds = 143360
    out_flags = ""
    spin = 20000
    probe = None
    pad = 0xd00
    touch = True
    l2warm = False
    hprio = 3; mprio = None
    ldnt = "nt"
    hflags = ""
    force_safe = False; hello_tries = 4; hello_sleep = 2
    earlyk = True
    nopoll = False

def partition(cfg):
    ws = []; acc = 0
    for b, nw in cfg.segs:
        n = STOK if b < 0 else CTX[b] - STOK
        M = -(-65536 * n // nw)
        assert (nw * M) >> 16 == n and nw * M < 2**32
        assert (M >> 16) >= 33 and (M >> 16) + 1 + 15 <= 8 * 16
        ws.append((b, acc, nw, M)); acc += nw
    assert acc == 128
    seg_of_wave = []
    for b, st, nw, M in ws: seg_of_wave += [b] * nw
    return ws, seg_of_wave

sWAVE = 3
sQ, sK, sV, sBT, sCTX, sOUT, sDBG, sWS = 4, 6, 8, 10, 12, 14, 16, 18
sKSRD, sVSRD = 20, 24
sPC = 28; sTAG = 30; sFF = 31
sH, sSPL, sB, sJ0, sJ1, sSH = 32, 33, 34, 35, 36, 37
sSOFF, sM0A, sM0B, sCNT, sI, sINX, sCOL, sH512 = 38, 39, 40, 41, 42, 43, 44, 45
sC, sT0, sT1, sT2, sT3, sSPEC, sFB = 46, 47, 48, 49, 50, 51, 56
sLM = 52; sONE = 54; sCM = 57; sSLOT = 58; sMK = 60; sT8 = 68; sSPEC1 = 69; sEX = 76; sHB = 84; sST = 86

vLANE, vN, vG = 1, 2, 3
vKOFF = 4; vVOFF = 12; vKRD = 16; vMSK = 20
vTAB, vCOL, vCTXG, vM, vL, vLIM, vT, vU, vAL, vNMC, vF, vL16 = 24, 25, 26, 27, 28, 29, 30, 31, 32, 33, 34, 35
vHG = 36; vNINF = 40; vHA = 41; vHC = 42; vHR = 43; vGH = 44; vDEP = 45; vW = 46; vA = 48; vKF = 64; vVF = 96
vQF = 160; vACC = 192; vS = 224; vRA = 240; vFA = 244; vNR = 245; vG4 = 246; vPF = 247; vCTXE = 248; vJUNK = 249
NV = 256
sPFX = 70; sPAIR = 72; sROLE = 73; sOWN = 74
sSO = 76; sNRS = 80; sTT = 28
TT = [28, 29, 30, 69]
sLAST = 40
MISC = 131072
LDS_Q = MISC; LDS_T = MISC + 4096; LDS_C = MISC + 8192; LDS_H = MISC + 8448; LDS_F = MISC + 8704; LDS_Z = MISC + 8768

def vr(b, n=4): return f"v[{b}:{b+n-1}]"
def sr(b, n=2): return f"s[{b}:{b+n-1}]"

def gen(cfg):
    L = []
    e = L.append
    ws, seg_of_wave = partition(cfg)
    dbg = cfg.stamps or cfg.probe
    def stamp(k):
        if cfg.stamps or (cfg.probe and k in (0, cfg.probe[0])): e(f"s_memrealtime {sr(sST+2*k)}")
    cms = []
    for s in range(32):
        m = 0
        for w in range(4):
            sg = seg_of_wave[4 * s + w]
            for p in range(4):
                if sg < 0 or sg == p: m |= 1 << (4 * p + w)
        cms.append(m)
    wds = []
    for s_ in range(32):
        segs4 = seg_of_wave[4 * s_:4 * s_ + 4]
        x = 0
        for w in range(4):
            if cfg.inred and min(segs4) >= 0:
                isred = all(segs4[w2] != segs4[w] for w2 in range(w + 1, 4))
                m = (16 | sum(1 << j for j in range(4) if segs4[(w + j) & 3] == segs4[w])) if isred else 0
            else:
                m = sum(1 << j for j in range(4) if segs4[(w + j) & 3] in (-1, w))
            x |= m << (8 * w)
        wds.append(x)
    def kblock(u, preset=False):
        if not preset:
            e(f"s_add_u32 m0, s{sM0A}, {8192*u}")
            e(f"s_mov_b32 s{sKSRD+2}, s{sNRS+u}")
        for j in range(8):
            if j == 4:
                e(f"s_bitset1_b32 m0, 12"); e("s_nop 0")
            e(f"buffer_load_dwordx4 v{vKOFF+j}, {sr(sKSRD,4)}, s{sSO+u} offen offset:{(j&3)*1024} {cfg.ldnt} lds")
    def vload(u, r, hf):
        e(f"buffer_load_dwordx4 {vr(vVF+32*(u&1)+8*r+4*hf)}, v{vVOFF+r}, {sr(sVSRD,4)}, s{sSO+u} offen offset:{256*hf} {cfg.ldnt}")
    def vblock(u):
        e(f"s_mov_b32 s{sVSRD+2}, s{sNRS+u}")
        for r in range(4):
            vload(u, r, 0); vload(u, r, 1)
    def block(n):
        if n < 4: kblock(n)
        elif n < 6: vblock(n - 4)
    def descr():
        for u in range(4):
            if u: e(f"s_add_u32 s{sT2}, s{sI}, {u}")
            ix = sT2 if u else sI
            e(f"v_readlane_b32 s{sSO+u}, v{vTAB}, s{ix}")
            e(f"v_readlane_b32 s{sNRS+u}, v{vNR}, s{ix}")
            e(f"v_readlane_b32 s{TT[u]}, v{vCOL}, s{ix}")
        e(f"s_add_u32 s{sT2}, s{sI}, 4")
        e(f"s_cmp_ge_u32 s{sT2}, s{sCNT}")
        e(f"s_cselect_b32 s{sLAST}, 1, 0")
    def stub(name):
        e(f"T_{name}:"); e("s_branch " + ("T_pr0" if name == "sh0" else "L_touch_ret"))

    e(HEADER.rstrip())
    e(f"; @launch grid=(256,1,1) block=(320,1,1) lds={cfg.lds}")
    e('.amdgcn_target "amdgcn-amd-amdhsa--gfx950"')
    e(".text"); e(f".globl {NAME}")
    if cfg.pad:
        e(".p2align 12"); e(f".fill {cfg.pad//4}, 4, 0xbf800000")
    e(".p2align 8"); e(f".type {NAME},@function"); e(f"{NAME}:")
    stamp(0)
    e(f"s_load_dwordx16 s[4:19], s[0:1], 0")
    e("s_cmp_ge_u32 s2, 256"); e("s_cbranch_scc1 L_end0")
    e(f"v_lshrrev_b32 v{vT}, 6, v0")
    e(f"v_and_b32 v{vLANE}, 63, v0")
    e(f"v_readfirstlane_b32 s{sWAVE}, v{vT}")
    e(f"s_and_b32 s{sH}, s2, 7"); e(f"s_lshr_b32 s{sSPL}, s2, 3")
    e(f"v_lshrrev_b32 v{vT}, 5, v{vLANE}")
    e(f"s_sub_u32 s{sWAVE}, s{sWAVE}, 1")
    e("s_cbranch_scc0 L_main")
    e(f"s_setprio {cfg.hprio}")
    e(f"v_lshlrev_b32 v{vT}, 1, v{vT}")
    e(f"v_xor_b32 v{vT}, v{vT}, v{vLANE}")
    e(f"s_lshl_b32 s{sT2}, s{sH}, 10")
    e(f"v_lshl_add_u32 v{vA}, v{vT}, 4, s{sT2}")
    for b in range(1, 4):
        e(f"v_xor_b32 v{vA+b}, {64*b}, v{vA}")
        e(f"v_add_u32 v{vA+b}, {8192*b-1024*b}, v{vA+b}")
    e(f"v_lshlrev_b32 v{vL16}, 4, v{vLANE}")
    e(f"v_and_b32 v{vU}, 3, v{vLANE}"); e(f"v_lshlrev_b32 v{vU}, 2, v{vU}")
    e(f"s_lshl_b32 s{sT3}, s{sH}, 7"); e(f"s_add_u32 s{sT3}, s{sT3}, {EPO}")
    e(f"s_mov_b32 m0, {LDS_Q}")
    e("s_waitcnt lgkmcnt(0)")
    stamp(1)
    for b in range(4):
        e(f"global_load_lds_dwordx4 v{vA+b}, {sr(sQ)} offset:{1024*b} {cfg.hflags}")
    e(f"s_mov_b32 m0, {LDS_T}")
    e(f"s_load_dword s{sTAG}, {sr(sWS)}, s{sT3}")
    for b in range(4):
        e(f"global_load_lds_dwordx4 v{vL16}, {sr(sBT)} offset:{1024*b} {cfg.hflags}")
    e(f"s_mov_b32 m0, {LDS_C}"); e("s_nop 0")
    e(f"global_load_lds_dword v{vU}, {sr(sCTX)} {cfg.hflags}")
    e("s_branch L_helper")
    e("L_end0:"); e("s_endpgm")
    e("L_main:")
    if cfg.mprio == "w3":
        e(f"s_cmp_lg_u32 s{sWAVE}, 3"); e("s_cbranch_scc1 L_np"); e("s_setprio 3"); e("L_np:")
    if cfg.mprio == "all":
        e("s_setprio 1")
    if cfg.l2warm:
        e(f"s_cmp_lg_u32 s{sWAVE}, 3"); e("s_cbranch_scc1 L_nowarm")
        e(f"s_getpc_b64 {sr(sPC)}")
        e(f"v_lshlrev_b32 v{vU}, 7, v{vLANE}")
        e(f"global_load_dword v{vAL}, v{vU}, {sr(sPC)}")
        e("L_nowarm:")
    e(f"s_lshl_b32 s{sH512}, s{sH}, 9")
    e(f"v_and_b32 v{vU}, 31, v{vLANE}")
    e(f"v_xor_b32 v{vU}, v{vU}, v{vT}")
    e(f"v_lshlrev_b32 v{vU}, 4, v{vU}")
    e(f"v_lshl_or_b32 v{vKOFF}, v{vT}, 12, v{vU}")
    e(f"s_lshl_b32 s{sT0}, s{sSPL}, 2"); e(f"s_add_u32 s{sT0}, s{sT0}, s{sWAVE}")
    def pack(b, st, nw): return st | ((st + nw - 1) << 8) | ((max(b, 0)) << 16) | ((0 if b < 0 else 1) << 24)
    b, st, nw, M = ws[0]
    e(f"s_mov_b32 s{sT1}, {pack(b, st, nw)}"); e(f"s_mov_b32 s{sT2}, {M}")
    for b, st, nw, M in ws[1:]:
        e(f"s_cmp_ge_u32 s{sT0}, {st}")
        e(f"s_cselect_b32 s{sT1}, {pack(b, st, nw)}, s{sT1}")
        e(f"s_cselect_b32 s{sT2}, {M}, s{sT2}")
    e(f"s_and_b32 s{sT3}, s{sT1}, 0xff")
    e(f"s_sub_u32 s{sT3}, s{sT0}, s{sT3}")
    e(f"s_mul_i32 s{sT3}, s{sT3}, s{sT2}")
    e(f"s_lshr_b32 s{sJ0}, s{sT3}, 16")
    if cfg.gran > 1: e(f"s_and_b32 s{sJ0}, s{sJ0}, {-cfg.gran}")
    e(f"s_add_u32 s{sJ1}, s{sT3}, s{sT2}")
    e(f"s_bfe_u32 s{sB}, s{sT1}, 0x80010")
    e(f"s_lshr_b32 s{sSH}, s{sT1}, 24")
    e(f"s_add_u32 s{sT2}, s{sB}, s{sSH}")
    e(f"s_lshl_b32 s{sT2}, s{sT2}, 11")
    e(f"s_add_u32 s{sT2}, s{sJ0}, s{sT2}")
    e(f"s_lshl_b32 s{sT2}, s{sT2}, 12")
    e(f"s_add_u32 s{sSO}, s{sT2}, s{sH512}")
    e(f"s_add_u32 s{sKSRD+2}, s{sT2}, {0x10000*cfg.dep}")
    for u in range(1, cfg.dep):
        e(f"s_add_u32 s{sSO+u}, s{sSO}, {0x10000*u}"); e(f"s_mov_b32 s{sNRS+u}, s{sKSRD+2}")
    e(f"s_lshl_b32 s{sM0A}, s{sWAVE}, 15")
    for j in range(1, 8):
        e(f"v_xor_b32 v{vKOFF+j}, {32*j}, v{vKOFF}")
        e(f"v_add_u32 v{vKOFF+j}, {8192*j - (j&3)*1024}, v{vKOFF+j}")
    e(f"s_mov_b32 s{sKSRD+3}, 0x20000"); e(f"s_mov_b32 s{sVSRD+3}, 0x20000")
    e(f"s_mov_b32 m0, s{sM0A}")
    e(f"v_and_b32 v{vN}, 15, v{vLANE}"); e(f"v_lshrrev_b32 v{vG}, 4, v{vLANE}")
    e(f"v_lshlrev_b32 v{vVOFF}, 4, v{vN}"); e(f"v_lshl_or_b32 v{vVOFF}, v{vG}, 14, v{vVOFF}")
    for r in range(1, 4): e(f"v_add_u32 v{vVOFF+r}, {4096*r}, v{vVOFF}")
    e("s_waitcnt lgkmcnt(0)")
    stamp(1)
    e(f"s_mov_b32 s{sKSRD}, s{sK}"); e(f"s_mov_b32 s{sKSRD+1}, s{sK+1}")
    e(f"s_mov_b32 s{sVSRD}, s{sV}"); e(f"s_mov_b32 s{sVSRD+1}, s{sV+1}")
    kblock(0, True)
    for u in range(1, cfg.dep): kblock(u)
    if cfg.touch:
        e(f"s_lshl_b32 s{sT2}, s{sSH}, 2"); e(f"s_add_u32 s{sT2}, s{sT2}, s{sWAVE}")
        for k, nm in ((0, "sh0"), (1, "sh1"), (2, "sh2"), (3, "sh3"), (5, "pr0")):
            e(f"s_cmp_le_u32 s{sT2}, {k}"); e(f"s_cbranch_scc1 T_{nm}")
        e("s_branch T_pr1")
    e("L_touch_ret:")
    e(f"s_lshr_b32 s{sJ1}, s{sJ1}, 16")
    if cfg.gran > 1: e(f"s_and_b32 s{sJ1}, s{sJ1}, {-cfg.gran}")
    e(f"s_lshl_b32 s{sT2}, s{sSH}, 11")
    e(f"s_add_u32 s{sJ0}, s{sJ0}, s{sT2}"); e(f"s_add_u32 s{sJ1}, s{sJ1}, s{sT2}")
    e(f"s_bfe_u32 s{sT2}, s{sT1}, 0x80008")
    e(f"s_cmp_eq_u32 s{sT2}, s{sT0}")
    e(f"s_cselect_b32 s{sT2}, s{sSH}, 0")
    e(f"s_cmp_eq_u32 s{sT2}, 1")
    e(f"s_cselect_b32 s{sJ1}, 4096, s{sJ1}")
    e(f"s_cmp_eq_u32 s{sSH}, 0")
    e(f"s_cselect_b32 s{sT2}, 3, 0")
    e(f"s_cselect_b32 s{sT3}, 7, 63")
    e(f"s_lshr_b32 s{sT0}, s{sJ0}, 4")
    e(f"v_and_b32 v{vCOL}, s{sT3}, v{vLANE}")
    e(f"v_add_u32 v{vCOL}, s{sT0}, v{vCOL}")
    e(f"v_lshrrev_b32 v{vT}, 3, v{vLANE}")
    e(f"v_and_b32 v{vT}, s{sT2}, v{vT}")
    e(f"v_or_b32 v{vT}, s{sB}, v{vT}")
    e(f"v_min_u32 v{vU}, 255, v{vCOL}")
    e(f"v_lshlrev_b32 v{vNR}, 2, v{vU}")
    e(f"v_add_u32 v{vNR}, {MISC}, v{vNR}")
    e(f"v_lshl_add_u32 v{vTAB}, v{vT}, 10, v{vNR}")
    e(f"v_lshlrev_b32 v{vCOL}, 4, v{vCOL}")
    e(f"v_add_u32 v{vF}, s{sWAVE}, v{vLANE}")
    e(f"v_and_b32 v{vF}, s{sT2}, v{vF}")
    e(f"v_or_b32 v{vF}, s{sB}, v{vF}")
    e(f"v_lshlrev_b32 v{vCTXG}, 2, v{vF}")
    e(f"v_add_u32 v{vCTXG}, {MISC}, v{vCTXG}")
    e(f"s_mov_b32 s{sCM}, {wds[0]:#x}")
    for s in range(1, 32):
        if wds[s] != wds[s - 1]:
            e(f"s_cmp_ge_u32 s{sSPL}, {s}"); e(f"s_cselect_b32 s{sCM}, {wds[s]:#x}, s{sCM}")
    e(f"s_lshl_b32 s{sT2}, s{sWAVE}, 3")
    e(f"s_lshr_b32 s{sCM}, s{sCM}, s{sT2}")
    e(f"s_bfe_u32 s{sROLE}, s{sCM}, 0x10004")
    e(f"s_cselect_b32 s{sPAIR}, s{sB}, s{sWAVE}")
    e(f"s_and_b32 s{sCM}, s{sCM}, 15")
    e(f"s_lshl_b32 s{sT2}, s{sH}, 5"); e(f"s_add_u32 s{sT2}, s{sT2}, s{sSPL}"); e(f"s_lshl_b32 s{sT2}, s{sT2}, 13")
    e(f"s_add_u32 s{sSLOT}, s{sWS}, s{sT2}"); e(f"s_addc_u32 s{sSLOT+1}, s{sWS+1}, 0")
    e(f"s_lshl_b32 s{sT2}, s{sPAIR}, 11")
    e(f"v_lshl_add_u32 v{vL16}, v{vLANE}, 4, s{sT2}")
    e(f"v_lshl_add_u32 v{vPF}, v{vN}, 7, s{sT2}")
    e(f"s_mov_b32 s{sC}, {f2u(CF):#x}")
    e(f"s_mov_b32 s{sI}, 0")
    e(f"v_mov_b32 v{vNINF}, 0xff800000")
    e(f"v_mov_b32 v{vM}, {NEG:#x}"); e(f"v_mov_b32 v{vL}, 0")
    e(f"v_lshlrev_b32 v{vT}, 9, v{vN}"); e(f"v_add_u32 v{vT}, s{sM0A}, v{vT}")
    e(f"v_xor_b32 v{vU}, v{vG}, v{vN}")
    for k in range(4):
        e(f"v_xor_b32 v{vKRD+k}, {4*k}, v{vU}")
        e(f"v_lshl_add_u32 v{vKRD+k}, v{vKRD+k}, 4, v{vT}")
    e(f"v_and_b32 v{vT}, 1, v{vLANE}"); e(f"v_lshlrev_b32 v{vT}, 4, v{vT}")
    e(f"v_mov_b32 v{vU}, 0xffff"); e(f"v_lshlrev_b32 v{vT}, v{vT}, v{vU}")
    e(f"v_bfe_u32 v{vU}, v{vLANE}, 1, 2")
    for k in range(4):
        e(f"v_cmp_eq_u32 {sr(sMK+2*k)}, {k}, v{vU}")
    for k in range(0, 32, 2): e(f"v_mov_b64 {vr(vACC+k,2)}, 0")
    for k in range(4):
        e(f"v_cndmask_b32 v{vMSK+k}, 0, v{vT}, {sr(sMK+2*k)}")
    e(f"v_mov_b32 v{vT}, {LDS_Z}")
    e(f"ds_write_b128 v{vT}, {vr(vACC)}"); e(f"ds_write_b128 v{vT}, {vr(vACC)} offset:1024")
    e(f"v_lshlrev_b32 v{vLIM}, 4, v{vLANE}")
    for w in range(4):
        e(f"s_add_u32 s{sT2}, s{sWAVE}, {w}"); e(f"s_and_b32 s{sT2}, s{sT2}, 3")
        e(f"s_sub_u32 s{sT3}, s{sPAIR}, s{sT2}"); e(f"s_and_b32 s{sT3}, s{sT3}, 3")
        e(f"s_lshl_b32 s{sT2}, s{sT2}, 4"); e(f"s_add_u32 s{sT2}, s{sT2}, s{sT3}"); e(f"s_lshl_b32 s{sT2}, s{sT2}, 11")
        e(f"s_bitcmp1_b32 s{sCM}, {w}"); e(f"s_cselect_b64 vcc, -1, 0")
        e(f"v_add_u32 v{vU}, s{sT2}, v{vLIM}")
        e(f"v_cndmask_b32 v{vRA+w}, v{vT}, v{vU}, vcc")
    e(f"s_sub_u32 s{sT2}, s{sB}, s{sWAVE}"); e(f"s_and_b32 s{sT2}, s{sT2}, 3"); e(f"s_mul_i32 s{sT2}, s{sT2}, s{sSH}")
    e(f"s_lshl_b32 s{sT2}, s{sT2}, 11"); e(f"s_add_u32 s{sT2}, s{sT2}, s{sM0A}")
    e(f"v_add_u32 v{vDEP}, s{sT2}, v{vLIM}")
    e(f"v_lshrrev_b32 v{vT}, 1, v{vG}")
    e(f"s_lshl_b32 s{sT2}, s{sPAIR}, 5"); e(f"s_add_u32 s{sT2}, s{sT2}, {LDS_H}")
    e(f"v_lshl_add_u32 v{vHR}, v{vT}, 4, s{sT2}")
    e(f"s_lshl_b32 s{sT2}, s{sH}, 2"); e(f"s_add_u32 s{sT2}, s{sT2}, s{sPAIR}"); e(f"s_lshl_b32 s{sT2}, s{sT2}, 6")
    e(f"s_add_u32 s{sT2}, s{sT2}, s{sSPL}"); e(f"s_lshl_b32 s{sT2}, s{sT2}, 4"); e(f"s_add_u32 s{sT2}, s{sT2}, {HDR}")
    e(f"v_lshl_add_u32 v{vGH}, v{vT}, 9, s{sT2}")
    e(f"v_mov_b32 v{vFA}, {LDS_F}")
    e(f"s_mov_b32 s{sFF}, 0xff")
    e(f"v_lshlrev_b32 v{vG4}, 2, v{vG}")
    e(f"s_cmp_eq_u32 s{sCM}, 0")
    e(f"s_cselect_b64 {sr(sPFX)}, 1, 0xffff")
    e(f"s_sub_u32 s{sT2}, 1, s{sSH}"); e(f"s_mul_i32 s{sT2}, s{sT2}, s{sWAVE}")
    e(f"v_add_u32 v{vT}, s{sT2}, v{vN}"); e(f"v_and_b32 v{vT}, 3, v{vT}")
    e(f"v_cmp_eq_u32 {sr(sOWN)}, v{vT}, v{vF}")
    e(f"v_lshrrev_b32 v{vU}, 3, v{vN}")
    e(f"v_lshl_add_u32 v{vT}, v{vT}, 1, v{vU}")
    e(f"s_lshl_b32 s{sT2}, s{sWAVE}, 2"); e(f"s_add_u32 s{sT2}, s{sT2}, {LDS_H}")
    e(f"v_lshl_add_u32 v{vHA}, v{vT}, 4, s{sT2}")
    e(f"v_lshl_add_u32 v{vT}, v{vF}, 1, v{vU}")
    e(f"v_lshlrev_b32 v{vHC}, 4, v{vT}"); e(f"v_add_u32 v{vHC}, {LDS_H}, v{vHC}")
    e(f"v_lshlrev_b32 v{vU}, 1, v{vT}"); e(f"v_xor_b32 v{vU}, v{vU}, v{vG}")
    e(f"v_lshlrev_b32 v{vT}, 9, v{vT}"); e(f"v_add_u32 v{vT}, {MISC}, v{vT}")
    for k in range(4):
        e(f"v_xor_b32 v{vA+4+k}, {4*k}, v{vU}")
        e(f"v_lshl_add_u32 v{vA+4+k}, v{vA+4+k}, 4, v{vT}")
    e("s_barrier")
    stamp(3)
    e(f"ds_read_b32 v{vTAB}, v{vTAB} offset:{LDS_T-MISC}")
    e(f"ds_read_b32 v{vNR}, v{vNR} offset:{LDS_T-MISC}")
    e(f"ds_read_b32 v{vCTXG}, v{vCTXG} offset:{LDS_C-MISC}")
    for i in range(8):
        e(f"ds_read_b128 {vr(vQF+4*i)}, v{vA+4+(i&3)} offset:{LDS_Q-MISC+256*(i>>2)}")
    e(f"v_max_u32 v{vT}, s{sJ0}, v{vCOL}")
    e(f"v_add_u32 v{vU}, 16, v{vCOL}")
    e("s_waitcnt lgkmcnt(8)")
    e(f"v_cmp_gt_i32 vcc, 1, v{vCTXG}")
    e(f"v_min_i32 v{vCTXG}, 4096, v{vCTXG}")
    e(f"v_cmp_ne_u32 {sr(sMK)}, v{vTAB}, v{vNR}")
    e("s_cbranch_vccnz L_zeroctx")
    e("L_zeroctx_ret:")
    e(f"v_readfirstlane_b32 s{sT1}, v{vCTXG}")
    e(f"v_min_u32 v{vTAB}, 639, v{vTAB}")
    e(f"v_lshlrev_b32 v{vTAB}, 4, v{vTAB}")
    e(f"v_sub_u32 v{vTAB}, v{vTAB}, v{vCOL}")
    e(f"s_cmp_eq_u32 s{sSH}, 0")
    e(f"s_cselect_b32 s{sT1}, 4096, s{sT1}")
    e(f"s_min_u32 s{sJ1}, s{sJ1}, s{sT1}")
    e(f"v_min_u32 v{vU}, s{sJ1}, v{vU}")
    e(f"s_lshl_b32 s{sT2}, s{sB}, 11")
    e(f"v_cmp_lt_u32 vcc, v{vT}, v{vU}")
    e(f"v_cmp_ne_u32 {sr(sMK+2)}, s{sT2}, v{vTAB}")
    e(f"s_sub_i32 s{sCNT}, s{sJ1}, s{sJ0}")
    e(f"s_cmp_lt_i32 s{sCNT}, 1")
    e("s_cbranch_scc1 L_respec")
    e(f"s_and_b64 {sr(sMK+2)}, {sr(sMK+2)}, vcc")
    e("s_cbranch_scc1 L_respec")
    e(f"v_lshl_add_u32 v{vT}, v{vLANE}, 4, s{sJ0}")
    e(f"s_add_u32 s{sCNT}, s{sCNT}, 15"); e(f"s_lshr_b32 s{sCNT}, s{sCNT}, 4")
    e(f"v_add_u32 v{vU}, 16, v{vT}")
    e(f"v_min_u32 v{vU}, s{sJ1}, v{vU}")
    e(f"v_add_u32 v{vTAB}, s{sT2}, v{vT}")
    e(f"v_add_u32 v{vNR}, s{sT2}, v{vU}")
    e(f"v_lshl_or_b32 v{vCOL}, v{vU}, 16, v{vT}")
    e(f"v_cmp_lt_u32 vcc, v{vT}, v{vU}")
    e(f"v_lshl_add_u32 v{vTAB}, v{vTAB}, 12, s{sH512}")
    e(f"v_lshlrev_b32 v{vNR}, 12, v{vNR}")
    e(f"v_cndmask_b32 v{vTAB}, 0, v{vTAB}, vcc")
    e(f"v_cndmask_b32 v{vNR}, 0, v{vNR}, vcc")
    e(f"s_mov_b32 s{sFB}, 0")
    e(f"v_mov_b32 v{vCTXE}, v{vCTXG}")
    descr()
    e("s_waitcnt lgkmcnt(0)")
    e("L_go:")
    def mask(u):
        e(f"s_lshr_b32 s{sT3}, s{TT[u]}, 16"); e(f"s_and_b32 s{sT2}, s{TT[u]}, 0xffff")
        e(f"v_min_u32 v{vLIM}, s{sT3}, v{vCTXE}")
        e(f"v_subrev_u32 v{vLIM}, s{sT2}, v{vLIM}")
        e(f"v_sub_u32 v{vLIM}, v{vLIM}, v{vG4}")
        for r in range(4): e(f"v_cmp_lt_i32 {sr(sMK+2*r)}, {r}, v{vLIM}")
        for r in range(4): e(f"v_cndmask_b32 v{vS+4*u+r}, v{vNINF}, v{vS+4*u+r}, {sr(sMK+2*r)}")
    for u in range(4):
        e(f"s_waitcnt vmcnt({8*(min(u+cfg.dep,6)-u-1)})")
        if u == 0: stamp(2)
        for i in range(8):
            e(f"ds_read_b128 {vr(vKF+4*i)}, v{vKRD+(i&3)} offset:{8192*u+256*(i>>2)}")
        block(u + cfg.dep)
        if u: mask(u - 1)
        for i in range(8):
            e(f"s_waitcnt lgkmcnt({7-i})")
            e(f"v_mfma_f32_16x16x32_bf16 {vr(vS+4*u)}, {vr(vKF+4*i)}, {vr(vQF+4*i)}, " + ("0" if i == 0 else vr(vS+4*u)))
    e(f"v_max3_f32 v{vT}, v{vS}, v{vS+1}, v{vM}")
    for k in range(2, 12, 2): e(f"v_max3_f32 v{vT}, v{vS+k}, v{vS+k+1}, v{vT}")
    mask(3)
    for k in range(12, 16, 2): e(f"v_max3_f32 v{vT}, v{vS+k}, v{vS+k+1}, v{vT}")
    def cross(op, reg):
        for sw in ("v_permlane32_swap_b32", "v_permlane16_swap_b32"):
            e(f"v_mov_b32 v{vU}, v{reg}"); e("s_nop 1")
            e(f"{sw} v{reg}, v{vU}"); e("s_nop 0")
            e(f"{op} v{reg}, v{reg}, v{vU}")
    cross("v_max_f32", vT)
    e(f"s_cmp_eq_u32 s{sLAST}, 0"); e("s_cbranch_scc1 L_nox")
    e(f"v_mov_b32 v{vU}, {NEG:#x}")
    e(f"v_cndmask_b32 v{vU}, v{vU}, v{vT}, {sr(sOWN)}")
    e(f"ds_write_b32 v{vHA}, v{vU}")
    e("s_waitcnt lgkmcnt(0)")
    e("s_barrier")
    e(f"ds_read_b128 {vr(vA)}, v{vHC}")
    e(f"ds_read_b128 {vr(vA+4)}, v{vHR}")
    e(f"ds_read_b32 v{vW}, v{vFA}")
    e("s_waitcnt lgkmcnt(0)")
    e(f"v_max3_f32 v{vT}, v{vA}, v{vA+1}, v{vA+2}")
    e(f"v_max3_f32 v{vHG}, v{vA+4}, v{vA+5}, v{vA+6}")
    e(f"v_max_f32 v{vT}, v{vT}, v{vA+3}")
    e(f"v_max_f32 v{vHG}, v{vHG}, v{vA+7}")
    e(f"v_mov_b32 v{vHG+2}, v{vW}"); e(f"v_mov_b32 v{vHG+3}, v{vW}")
    e(f"v_bfi_b32 v{vHG}, s{sFF}, v{vW}, v{vHG}")
    e("s_branch L_nox")
    e(".p2align 12")
    stub("pr0")
    e("L_nox:")
    e(f"v_and_b32 v{vT}, 0xffffff00, v{vT}")
    e(f"s_cmp_lg_u32 s{sI}, 0"); e("s_cbranch_scc1 L_rescale")
    e("L_rescale_ret:")
    e(f"v_mul_f32 v{vNMC}, s{sC}, v{vT}")
    e(f"v_mov_b32 v{vM}, v{vT}")
    for k in range(16): e(f"v_fma_f32 v{vS+k}, v{vS+k}, s{sC}, -v{vNMC}")
    for k in range(16): e(f"v_exp_f32 v{vS+k}, v{vS+k}")
    e(f"v_pk_add_f32 {vr(vA,2)}, {vr(vS,2)}, {vr(vS+2,2)}")
    for k in range(4, 16, 2): e(f"v_pk_add_f32 {vr(vA,2)}, {vr(vA,2)}, {vr(vS+k,2)}")
    for k in range(16): e(f"v_cvt_pk_bf16_f32 v{vS+k}, v{vS+k}, v{vS+k}")
    e(f"v_add_f32 v{vL}, v{vL}, v{vA}")
    e(f"v_add_f32 v{vL}, v{vL}, v{vA+1}")
    e(f"v_mov_b32 v{vT}, v{vL}")
    cross("v_add_f32", vT)
    e(f"v_cndmask_b32 v{vT}, 0, v{vT}, {sr(sOWN)}")
    e(f"ds_write_b32 v{vHA}, v{vT} offset:128")
    e(f"s_and_b32 s{sT0}, s{sROLE}, s{sLAST}")
    e(f"s_cmp_eq_u32 s{sSH}, 0")
    e("s_cbranch_scc1 L_sh_v")

    RD = vKF
    def reduce_():
        e(f"ds_read_b128 {vr(vA+8)}, v{vHR} offset:128")
        e(f"ds_read_b32 v{vW+1}, v{vFA} offset:4")
        for w in range(1, 4):
            e(f"ds_read_b128 {vr(RD+8*w)}, v{vRA+w}")
            e(f"ds_read_b128 {vr(RD+8*w+4)}, v{vRA+w} offset:1024")
        e("s_waitcnt lgkmcnt(6)")
        e(f"v_pk_add_f32 {vr(vA+8,2)}, {vr(vA+8,2)}, {vr(vA+10,2)}")
        e(f"v_cmp_eq_u32 vcc, 0, v{vW+1}")
        e(f"v_add_f32 v{vHG+1}, v{vA+8}, v{vA+9}")
        e(f"v_bfi_b32 v{vHG+1}, s{sFF}, v{vW}, v{vHG+1}")
        for w in range(1, 4):
            for hf in range(2):
                e(f"s_waitcnt lgkmcnt({7-2*w-hf})")
                for k in range(4*hf, 4*hf+4, 2): e(f"v_pk_add_f32 {vr(vACC+k,2)}, {vr(vACC+k,2)}, {vr(RD+8*w+k,2)}")
    def publish(fl):
        for k in range(4): e(f"v_bfi_b32 v{vACC+k}, s{sFF}, v{vW}, v{vACC+k}")
        e(f"global_store_dwordx4 v{vL16}, {vr(vACC)}, {sr(sSLOT)} {fl}")
        for k in range(4, 8): e(f"v_bfi_b32 v{vACC+k}, s{sFF}, v{vW}, v{vACC+k}")
        e(f"global_store_dwordx4 v{vL16}, {vr(vACC+4)}, {sr(sSLOT)} offset:1024 {fl}")
        e("s_mov_b32 exec_lo, 1"); e("s_mov_b32 exec_hi, 1")
        e(f"global_store_dwordx4 v{vGH}, {vr(vHG)}, {sr(sWS)} {fl}")
    def fin():
        if dbg: e("s_branch L_fin")
        else: e("s_endpgm")

    def vphase(tag, pairs, stubs):
        shared = len(pairs) > 1
        ab = lambda n: (vA if n % 2 == 0 else vKF) if shared else vA + 4 * (n & 1)
        def andop(n, p, k):
            if shared: e(f"v_and_b32_dpp v{ab(n)+4*p+k}, v{vS+n}, v{vMSK+k} quad_perm:[{p},{p},{p},{p}] row_mask:0xf bank_mask:0xf")
            else: e(f"v_and_b32 v{ab(n)+k}, v{vS+n}, v{vMSK+k}")
        e(f"L_{tag}_v:")
        for p in pairs:
            for k in range(4): andop(0, p, k)
        lag = cfg.lag[1 if shared else 0]
        q = list(range(8))
        for u in range(4):
            if u in stubs:
                e(f"s_branch L_{tag}_u{u}"); stub(stubs[u]); e(f"L_{tag}_u{u}:")
            for r in range(4):
                n = 4 * u + r
                if n == cfg.pfn:
                    e(f"s_mov_b64 exec, {sr(sPFX)}")
                    e(f"global_load_dword v{vJUNK}, v{vPF}, {sr(sSLOT)} {cfg.pff}")
                    e("s_mov_b64 exec, -1")
                    q.append("p")
                isred = not shared and cfg.inred and (u, r) == (cfg.redu, cfg.redat)
                if isred:
                    e(f"s_cmp_eq_u32 s{sT0}, 0"); e("s_cbranch_scc1 L_nored")
                    e("s_waitcnt lgkmcnt(0)")
                    e("s_barrier")
                    stamp(5)
                    reduce_()
                    e("L_nored:")
                e(f"s_waitcnt vmcnt({sum(1 if x == 'p' else 2 for x in q[q.index(n)+1:])})")
                if n == 0 or isred: e("s_nop 0")
                todo = [(p, k) for p in pairs for k in range(4)] if n < 15 else []
                for hf in range(2):
                    for p in pairs:
                        e(f"v_mfma_f32_16x16x32_bf16 {vr(vACC+8*p+4*hf)}, {vr(ab(n)+4*p)}, {vr(vVF+32*(u&1)+8*r+4*hf)}, {vr(vACC+8*p+4*hf)}")
                        for pk in todo[:2]: andop(n + 1, *pk)
                        todo = todo[2:]
                m = n + 8 - lag
                if 8 <= m < 16:
                    if m % 4 == 0: e(f"s_mov_b32 s{sVSRD+2}, s{sNRS+(m>>2)}")
                    vload(m >> 2, m & 3, 0); vload(m >> 2, m & 3, 1)
                    q.append(m)
                elif n < 15 and not shared: e("s_nop 0")
        stamp(4)

    vphase("pr", [0], {2: "pr1"})
    e(f"s_cmp_eq_u32 s{sT0}, 0"); e("s_cbranch_scc1 L_pr_dep")
    e("s_nop 3")
    e("s_cbranch_vccnz L_pubsafe")
    publish(cfg.dst)
    stamp(6)
    fin()
    e("L_pr_dep:")
    e(f"s_cmp_eq_u32 s{sLAST}, 0"); e("s_cbranch_scc1 L_next")
    e("s_nop 2")
    e(f"ds_write_b128 v{vDEP}, {vr(vACC)}")
    e(f"ds_write_b128 v{vDEP}, {vr(vACC+4)} offset:1024")
    e(f"s_cmp_eq_u32 s{sCM}, 0")
    e("s_waitcnt lgkmcnt(0)")
    e("s_barrier")
    stamp(5)
    e("s_cbranch_scc1 L_fin2")
    e(f"ds_read_b128 {vr(vACC)}, v{vRA}")
    e(f"ds_read_b128 {vr(vACC+4)}, v{vRA} offset:1024")
    e("s_branch L_reduce")
    e("L_fin2:")
    fin()

    nsh = [s for s in range(32) if any(seg_of_wave[4*s+w] < 0 for w in range(4))]
    assert nsh == list(range(len(nsh)))
    a = len(nsh)
    lo = []; hi = []
    for p in range(4):
        sl = [s for s in range(32) if any(seg_of_wave[4*s+w] == p for w in range(4)) and s >= a]
        assert sl == list(range(sl[0], sl[-1] + 1)) and 13 <= a + len(sl) <= 16, (p, sl)
        lo.append(sl[0]); hi.append(sl[-1] + 1)
    D, H, DA, HA, CL = vQF, vQF + 16, vKF, vKF + 4, vVF
    e("L_helper:")
    e(f"s_getreg_b32 s{sT1}, hwreg(HW_REG_XCC_ID, 0, 4)")
    e(f"s_sub_u32 s{sT3}, s{sT3}, 1024")
    e(f"v_and_b32 v{vT}, 31, v{vLANE}")
    e(f"v_lshl_add_u32 v{vCOL}, v{vT}, 2, s{sT3}")
    e(f"s_lshl_b32 s{sT2}, s{sSPL}, 2"); e(f"s_add_u32 s{sT2}, s{sT2}, s{sT3}")
    e(f"v_mov_b32 v{vU}, s{sT2}")
    e("s_waitcnt lgkmcnt(0)")
    e(f"s_add_u32 s{sTAG}, s{sTAG}, 1")
    e(f"s_lshl_b32 s{sB}, s{sTAG}, 4"); e(f"s_or_b32 s{sB}, s{sB}, s{sT1}")
    e(f"v_mov_b32 v{vT}, s{sB}")
    e("s_mov_b64 exec, 1")
    e(f"global_store_dword v{vU}, v{vT}, {sr(sWS)}")
    e("s_mov_b64 exec, -1")
    e("s_waitcnt vmcnt(1)")
    e("s_barrier")
    stamp(3)
    e("s_setprio 0")
    e(f"s_and_b32 s{sT8}, s{sTAG}, 0xff")
    e(f"s_mov_b32 s{sFF}, 0xff")
    e(f"v_mov_b32 v{vW}, s{sTAG}")
    e(f"v_mov_b32 v{vFA}, {LDS_F}")
    e(f"ds_write_b32 v{vFA}, v{vW}")
    e(f"s_mov_b32 s{sC}, {f2u(CF):#x}")
    e(f"s_lshl_b32 s{sT2}, s{sH}, 18")
    e(f"s_add_u32 s{sHB}, s{sWS}, s{sT2}"); e(f"s_addc_u32 s{sHB+1}, s{sWS+1}, 0")
    e(f"v_bfe_u32 v{vG}, v{vLANE}, 2, 2")
    e(f"v_lshrrev_b32 v{vN}, 4, v{vLANE}"); e(f"v_and_b32 v{vAL}, 3, v{vLANE}")
    e(f"v_lshl_or_b32 v{vN}, v{vN}, 2, v{vAL}")
    e(f"s_lshr_b32 s{sT0}, s{sSPL}, 3")
    lop = sum((lo[p] - a) << (8 * p) for p in range(4)); hip_ = sum(hi[p] << (8 * p) for p in range(4))
    e(f"s_lshl_b32 s{sT1}, s{sT0}, 3")
    e(f"s_lshr_b32 s{sT2}, {lop:#x}, s{sT1}"); e(f"s_and_b32 s{sT2}, s{sT2}, 0xff")
    e(f"s_lshr_b32 s{sT3}, {hip_:#x}, s{sT1}"); e(f"s_and_b32 s{sT3}, s{sT3}, 0xff")
    e(f"s_lshl_b32 s{sI}, s{sT0}, 11")
    e(f"s_bfe_u32 s{sINX}, s{sSPL}, 0x10001"); e(f"s_lshl_b32 s{sCOL}, s{sINX}, 10"); e(f"s_add_u32 s{sI}, s{sI}, s{sCOL}")
    e(f"s_bfe_u32 s{sCNT}, s{sSPL}, 0x10002"); e(f"s_lshl_b32 s{sCOL}, s{sCNT}, 9"); e(f"s_add_u32 s{sI}, s{sI}, s{sCOL}")
    e(f"s_and_b32 s{sSOFF}, s{sSPL}, 1"); e(f"s_lshl_b32 s{sCOL}, s{sSOFF}, 7"); e(f"s_add_u32 s{sI}, s{sI}, s{sCOL}")
    e(f"v_and_b32 v{vT}, 7, v{vN}"); e(f"v_lshrrev_b32 v{vU}, 3, v{vN}")
    e(f"v_lshlrev_b32 v{vL}, 4, v{vT}"); e(f"v_lshl_add_u32 v{vL}, v{vU}, 8, v{vL}"); e(f"v_add_u32 v{vL}, s{sI}, v{vL}")
    def slot_of(idxreg, mask):
        e(f"v_add_u32 v{vF}, s{sT2}, v{idxreg}")
        e(f"v_cmp_gt_u32 vcc, {a}, v{idxreg}"); e("s_nop 1")
        e(f"v_cndmask_b32 v{idxreg}, v{vF}, v{idxreg}, vcc")
        e(f"v_cmp_gt_u32 {sr(mask)}, s{sT3}, v{idxreg}")
    for k in range(4):
        e(f"v_add_u32 v{vM}, {4*k}, v{vG}")
        if 4 * k + 3 >= a:
            slot_of(vM, sEX + 2 * k)
            for j in range(4): e(f"v_mov_b32 v{D+4*k+j}, s{sT8}")
        e(f"v_lshl_add_u32 v{DA+k}, v{vM}, 13, v{vL}")
    e(f"v_lshl_add_u32 v{vM}, v{vAL}, 2, v{vG}")
    slot_of(vM, sLM)
    e(f"s_lshl_b32 s{sCOL}, s{sH}, 3"); e(f"s_lshr_b32 s{sI}, s{sSPL}, 2"); e(f"s_add_u32 s{sCOL}, s{sCOL}, s{sI}")
    e(f"s_lshl_b32 s{sCOL}, s{sCOL}, 9"); e(f"s_add_u32 s{sCOL}, s{sCOL}, {HDR}")
    e(f"v_lshl_add_u32 v{HA}, v{vM}, 4, s{sCOL}")
    e(f"v_mov_b32 v{H}, {NEG:#x}"); e(f"v_mov_b32 v{H+1}, 0")
    e(f"s_lshl_b32 s{sI}, s{sT0}, 13"); e(f"s_lshl_b32 s{sCOL}, s{sH}, 10"); e(f"s_add_u32 s{sI}, s{sI}, s{sCOL}")
    e(f"s_lshl_b32 s{sCOL}, s{sCNT}, 9"); e(f"s_add_u32 s{sI}, s{sI}, s{sCOL}")
    e(f"s_and_b32 s{sCOL}, s{sSPL}, 3"); e(f"s_lshl_b32 s{sCOL}, s{sCOL}, 7"); e(f"s_add_u32 s{sI}, s{sI}, s{sCOL}")
    e(f"v_lshlrev_b32 v{vT}, 4, v{vT}"); e(f"v_lshl_add_u32 v{vT}, v{vU}, 3, v{vT}"); e(f"v_add_u32 v{vLIM}, s{sI}, v{vT}")
    e(f"s_mov_b32 s{sJ0}, {cfg.spin}")
    e(f"s_mov_b32 s{sT2}, {cfg.hello_tries}")
    e(f"v_mov_b32 v{vW+1}, 1")
    e(f"s_mov_b64 exec, {sr(sLM)}")
    e(f"global_load_dwordx4 {vr(H)}, v{HA}, {sr(sWS)} sc1")
    e("s_mov_b64 exec, 1")
    e(f"global_load_dword v{vF}, v{DA}, {sr(sHB)} sc1 nt")
    e("s_mov_b64 exec, -1")
    e("s_waitcnt vmcnt(0)")
    e(f"global_load_dword v{vU}, v{vCOL}, {sr(sWS)} sc1")
    e("s_waitcnt lgkmcnt(0)")
    e("s_barrier")
    e("s_branch L_hello1")
    e("L_hello:")
    e(f"global_load_dword v{vU}, v{vCOL}, {sr(sWS)} sc1")
    e("L_hello1:")
    e("s_waitcnt vmcnt(0)")
    e(f"v_cmp_ne_u32 vcc, s{sB}, v{vU}")
    e(f"s_sub_u32 s{sT2}, s{sT2}, 1")
    if not cfg.force_safe: e("s_cbranch_vccz L_hello_ok")
    e("s_cbranch_scc0 L_hello")
    e(f"v_mov_b32 v{vW+1}, 0")
    e(f"s_mov_b32 s{sSH}, 0")
    e("s_branch L_hello_done")
    e("L_hello_ok:")
    e(f"s_mov_b32 s{sSH}, 1")
    e(f"s_cmp_lg_u32 s{sSPL}, 0"); e("s_cbranch_scc1 L_hello_done")
    e("s_mov_b64 exec, 1")
    e(f"global_store_dword v{vCOL}, v{vW}, {sr(sWS)} offset:1024")
    e("s_mov_b64 exec, -1")
    e("L_hello_done:")
    e(f"ds_write_b32 v{vFA}, v{vW+1} offset:4")
    e(f"s_mov_b64 exec, {sr(sLM)}")
    stamp(2)
    e("s_setprio 3")
    e("s_waitcnt lgkmcnt(0)")
    e("s_barrier")
    stamp(5)
    if cfg.nopoll: e("s_branch L_fin")
    e("L_poll:")
    e(f"global_load_dwordx4 {vr(H)}, v{HA}, {sr(sWS)} sc1")
    e(f"s_sub_u32 s{sJ0}, s{sJ0}, 1"); e("s_cbranch_scc1 L_fin")
    e("s_waitcnt vmcnt(0)")
    e(f"v_bitop3_b32 v{vA}, v{H}, v{H+1}, s{sTAG} bitop3:0x7e")
    e(f"v_bitop3_b32 v{vA+1}, v{H+2}, v{H+3}, s{sTAG} bitop3:0x7e")
    e(f"v_and_or_b32 v{vA}, v{vA}, s{sFF}, v{vA+1}")
    e(f"v_cmp_ne_u32 vcc, 0, v{vA}")
    e("s_cbranch_vccnz L_poll")
    stamp(7)
    e("L_data:")
    for k in range(4):
        e(f"s_mov_b64 exec, " + (sr(sEX+2*k) if 4 * k + 3 >= a else "-1")) if (k == 0 or 4 * k + 3 >= a) else None
        e(f"global_load_dwordx4 {vr(D+4*k)}, v{DA+k}, {sr(sHB)} {cfg.dld}")
    e("s_mov_b64 exec, -1")
    dpp = ["quad_perm:[1,0,3,2]", "quad_perm:[2,3,0,1]", "row_ror:4", "row_ror:8"]
    e(f"v_and_b32 v{vM}, 0xffffff00, v{H}")
    e(f"v_and_b32 v{vL}, 0xffffff00, v{H+1}")
    e(f"s_sub_u32 s{sJ0}, s{sJ0}, 1"); e("s_cbranch_scc1 L_fin")
    e(f"v_max_f32_dpp v{vT}, v{vM}, v{vM} {dpp[0]} row_mask:0xf bank_mask:0xf")
    for x in dpp[1:]:
        e("s_nop 1")
        e(f"v_max_f32_dpp v{vT}, v{vT}, v{vT} {x} row_mask:0xf bank_mask:0xf")
    e(f"v_sub_f32 v{vM}, v{vM}, v{vT}")
    e(f"v_mul_f32 v{vM}, s{sC}, v{vM}")
    e(f"v_exp_f32 v{vM}, v{vM}")
    e("s_nop 0")
    e(f"v_mul_f32 v{vL}, v{vL}, v{vM}")
    for x in dpp:
        e("s_nop 1")
        e(f"v_add_f32_dpp v{vL}, v{vL}, v{vL} {x} row_mask:0xf bank_mask:0xf")
    e(f"v_rcp_f32 v{vL}, v{vL}")
    e("s_nop 0")
    e(f"v_mul_f32 v{vM}, v{vM}, v{vL}")
    e("s_nop 1")
    for k in range(4):
        e(f"v_mov_b32_dpp v{vA+8+2*k}, v{vM} quad_perm:[{k},{k},{k},{k}] row_mask:0xf bank_mask:0xf")
    for k in range(4):
        e(f"s_waitcnt vmcnt({3-k})")
        for j in range(4): e(f"v_xor_b32 v{CL+4*k+j}, s{sT8}, v{D+4*k+j}")
        for j in range(0, 4, 2):
            if k == 0: e(f"v_pk_mul_f32 {vr(vA+j,2)}, {vr(CL+j,2)}, {vr(vA+8,2)} op_sel_hi:[1,0]")
            else: e(f"v_pk_fma_f32 {vr(vA+j,2)}, {vr(CL+4*k+j,2)}, {vr(vA+8+2*k,2)}, {vr(vA+j,2)} op_sel_hi:[1,0,1]")
        if k == 0:
            e(f"v_or3_b32 v{vU}, v{CL}, v{CL+1}, v{CL+2}")
            e(f"v_or_b32 v{vU}, v{vU}, v{CL+3}")
        else:
            e(f"v_or3_b32 v{vU}, v{vU}, v{CL+4*k}, v{CL+4*k+1}")
            e(f"v_or3_b32 v{vU}, v{vU}, v{CL+4*k+2}, v{CL+4*k+3}")
    for j in range(4):
        e(f"v_add_f32_dpp v{vA+j}, v{vA+j}, v{vA+j} row_ror:4 row_mask:0xf bank_mask:0xf")
    e(f"v_and_b32 v{vU}, 0xff, v{vU}")
    for j in range(4):
        e(f"v_add_f32_dpp v{vA+j}, v{vA+j}, v{vA+j} row_ror:8 row_mask:0xf bank_mask:0xf")
    e(f"v_cmp_ne_u32 vcc, 0, v{vU}")
    e(f"v_cvt_pk_bf16_f32 v{vS}, v{vA}, v{vA+1}")
    e(f"v_cvt_pk_bf16_f32 v{vS+1}, v{vA+2}, v{vA+3}")
    e("s_mov_b32 exec_lo, 0x000f000f"); e("s_mov_b32 exec_hi, 0x000f000f")
    e("s_cbranch_vccnz L_data")
    e(f"global_store_dwordx2 v{vLIM}, {vr(vS,2)}, {sr(sOUT)} {cfg.out_flags}")
    e(f"s_or_b32 s{sT2}, s{sSH}, s{sSPL}"); e("s_cbranch_scc1 L_fin")
    e("s_mov_b64 exec, -1")
    firstp = [min(p for p in range(4) if (cms[t] >> (4 * p)) & 15) for t in range(32)]
    e(f"v_and_b32 v{vT}, 31, v{vLANE}")
    e(f"s_lshl_b32 s{sT2}, s{sH}, 12"); e(f"s_add_u32 s{sT2}, s{sT2}, {HDR + 8 + 1024 * firstp[0]}")
    e(f"v_lshl_add_u32 v{vU}, v{vT}, 4, s{sT2}")
    for t in range(1, 32):
        if firstp[t] != firstp[t - 1]:
            e(f"v_cmp_le_u32 vcc, {t}, v{vT}")
            e(f"v_add_u32 v{vF}, {1024 * (firstp[t] - firstp[t-1])}, v{vU}")
            e("s_nop 0")
            e(f"v_cndmask_b32 v{vU}, v{vU}, v{vF}, vcc")
    e("L_ep:")
    e(f"s_sub_u32 s{sJ0}, s{sJ0}, 1"); e("s_cbranch_scc1 L_fin")
    e(f"global_load_dword v{vF}, v{vU}, {sr(sWS)} sc1")
    e("s_waitcnt vmcnt(0)")
    e(f"v_cmp_ne_u32 vcc, s{sTAG}, v{vF}")
    e("s_nop 1")
    e("s_cbranch_vccnz L_ep")
    e("s_mov_b64 exec, 1")
    e(f"global_store_dword v{vCOL}, v{vW}, {sr(sWS)} offset:1024")
    e("L_fin:")
    if cfg.probe:
        k, mult = cfg.probe
        if k == 8:
            e("s_waitcnt vmcnt(0)"); e(f"s_memrealtime {sr(sST+2)}"); k = 1
        e("s_waitcnt lgkmcnt(0)")
        if k > 0:
            e(f"s_sub_u32 s{sT0}, s{sST+2*k}, s{sST}")
            e(f"s_cmp_gt_u32 s{sT0}, 3000"); e(f"s_cselect_b32 s{sT0}, 0, s{sT0}")
            e(f"s_mul_i32 s{sT0}, s{sT0}, {mult}")
        else:
            e(f"s_mov_b32 s{sT0}, 0")
        e(f"s_add_u32 s{sT0}, s{sT0}, 4000")
        e("L_probe:")
        e("s_sleep 8")
        e(f"s_memrealtime {sr(sMK)}"); e("s_waitcnt lgkmcnt(0)")
        e(f"s_sub_u32 s{sT1}, s{sMK}, s{sST}")
        e(f"s_cmp_lt_u32 s{sT1}, s{sT0}"); e("s_cbranch_scc1 L_probe")
    if cfg.stamps:
        e("s_mov_b64 exec, -1")
        e("s_waitcnt vmcnt(0)")
        e(f"s_memrealtime {sr(sMK)}")
        e("s_waitcnt lgkmcnt(0)")
        e(f"s_min_u32 s{sWAVE}, s{sWAVE}, 4")
        e(f"s_lshl_b32 s{sT2}, s2, 4"); e(f"s_add_u32 s{sT2}, s{sT2}, s{sWAVE}"); e(f"s_lshl_b32 s{sT2}, s{sT2}, 6")
        e(f"s_add_u32 s{sT2}, s{sT2}, 0x8000000")
        e(f"v_mov_b32 v{vT}, s{sT2}")
        e(f"s_getreg_b32 s{sT3}, hwreg(HW_REG_XCC_ID)")
        for k in range(8): e(f"v_mov_b32 v{vKF+k}, s{sST+2*k}")
        e(f"v_mov_b32 v{vKF+8}, s{sMK}"); e(f"v_mov_b32 v{vKF+9}, s{sT3}"); e(f"v_mov_b32 v{vKF+10}, 0x12345678"); e(f"v_mov_b32 v{vKF+11}, s{sJ0}")
        for k in range(3):
            e(f"global_store_dwordx4 v{vT}, {vr(vKF+4*k)}, {sr(sWS)} offset:{16*k}")
    e("s_endpgm")
    e(".p2align 12")
    stub("sh0")
    vphase("sh", [0, 1, 2, 3], {1: "sh1", 2: "sh2", 3: "sh3"})
    e(f"s_cmp_eq_u32 s{sLAST}, 0"); e("s_cbranch_scc1 L_next")
    for hf in range(2):
        for p in range(1, 4):
            if (p, hf) == (1, 1): e("s_nop 0")
            e(f"ds_write_b128 v{vDEP}, {vr(vACC+8*p+4*hf)} offset:{2048*p+1024*hf}")
    e("s_waitcnt lgkmcnt(0)")
    e("s_barrier")
    stamp(5)
    e("L_reduce:")
    reduce_()
    e("s_cbranch_vccnz L_pubsafe")
    publish(cfg.dst)
    stamp(6)
    fin()
    e("L_pubsafe:")
    publish("sc0 sc1")
    stamp(6)
    fin()
    e("L_respec:")
    e(f"v_max_u32 v{vU}, v{vU}, v{vT}")
    e(f"v_add_u32 v{vNR}, v{vTAB}, v{vU}")
    e(f"v_add_u32 v{vTAB}, v{vTAB}, v{vT}")
    e(f"v_lshlrev_b32 v{vNR}, 12, v{vNR}")
    e(f"v_lshl_add_u32 v{vTAB}, v{vTAB}, 12, s{sH512}")
    e(f"v_lshl_or_b32 v{vCOL}, v{vU}, 16, v{vT}")
    e(f"v_cndmask_b32 v{vTAB}, 0, v{vTAB}, vcc")
    e(f"v_cndmask_b32 v{vNR}, 0, v{vNR}, vcc")
    e(f"s_and_b32 s{sFB}, s{sMK}, vcc_lo")
    e(f"s_add_u32 s{sCNT}, s{sJ1}, 15"); e(f"s_lshr_b32 s{sCNT}, s{sCNT}, 4")
    e(f"s_sub_i32 s{sCNT}, s{sCNT}, s{sT0}"); e(f"s_max_i32 s{sCNT}, s{sCNT}, 1")
    e(f"s_cmp_eq_u32 s{sSH}, 1")
    e(f"s_cselect_b32 s{sFB}, 0, s{sFB}")
    e(f"s_cmp_lg_u32 s{sFB}, 0")
    e(f"s_cselect_b32 s{sCNT}, 32, s{sCNT}")
    e(f"s_mov_b32 s{sI}, -4")
    e("L_next:")
    e(f"s_add_u32 s{sI}, s{sI}, 4")
    e(f"s_lshr_b32 s{sT2}, s{sI}, 3")
    e(f"v_cmp_eq_u32 vcc, s{sT2}, v{vF}")
    e(f"s_cmp_eq_u32 s{sFB}, 0")
    e("s_nop 3")
    e("s_cselect_b64 vcc, -1, vcc")
    e(f"v_cndmask_b32 v{vCTXE}, 0, v{vCTXG}, vcc")
    descr()
    e("s_waitcnt vmcnt(0) lgkmcnt(0)")
    e("s_nop 4")
    for u in range(cfg.dep): kblock(u)
    e("s_branch L_go")
    e("L_rescale:")
    e(f"v_sub_f32 v{vAL}, v{vM}, v{vT}")
    e(f"v_mul_f32 v{vAL}, s{sC}, v{vAL}")
    e(f"v_exp_f32 v{vAL}, v{vAL}")
    e("s_nop 1")
    for p in range(4):
        e(f"v_mov_b32_dpp v{vA+2*p}, v{vAL} row_newbcast:{p} row_mask:0x3 bank_mask:0xf")
        e(f"v_mov_b32_dpp v{vA+2*p}, v{vAL} row_newbcast:{8+p} row_mask:0xc bank_mask:0xf")
    e(f"v_mul_f32 v{vL}, v{vL}, v{vAL}")
    for p in range(4):
        for k in range(0, 8, 2):
            e(f"v_pk_mul_f32 {vr(vACC+8*p+k,2)}, {vr(vACC+8*p+k,2)}, {vr(vA+2*p,2)} op_sel_hi:[1,0]")
    e("s_branch L_rescale_ret")
    e("L_zeroctx:")
    e("s_waitcnt lgkmcnt(0)")
    e("s_mov_b64 exec, vcc")
    e(f"v_mov_b32 v{vCTXG}, 4096")
    for k in range(0, 32, 2): e(f"v_mov_b64 {vr(vQF+k,2)}, 0")
    e("s_mov_b64 exec, -1")
    e("s_nop 0")
    e("s_branch L_zeroctx_ret")

    e(".fill 64, 4, 0xbf800000")
    e('.section .rodata,"a"'); e(".p2align 6"); e(f".amdhsa_kernel {NAME}")
    e(f"  .amdhsa_next_free_vgpr {NV}"); e("  .amdhsa_next_free_sgpr 102"); e(f"  .amdhsa_accum_offset {NV}")
    e("  .amdhsa_group_segment_fixed_size 0"); e("  .amdhsa_kernarg_size 64"); e("  .amdhsa_user_sgpr_count 2")
    e("  .amdhsa_user_sgpr_kernarg_segment_ptr 1"); e("  .amdhsa_system_sgpr_workgroup_id_x 1"); e(".end_amdhsa_kernel")
    out = []
    for x in L:
        if x.endswith(":") or x.startswith(".") or x.startswith(";") or x.startswith("  ."): out.append(x)
        else: out.append("    " + x)
    return "\n".join(out) + "\n"

if __name__ == "__main__":
    ap = argparse.ArgumentParser()
    ap.add_argument("out"); ap.add_argument("opts", nargs="*")
    a = ap.parse_args()
    cfg = Cfg()
    for o in a.opts:
        k, v = o.split("=", 1)
        assert hasattr(cfg, k), k
        setattr(cfg, k, eval(v))
    open(a.out, "w").write(gen(cfg))
```

```python
import sys, math, argparse, struct
NAME = "standalone__paged_block_table_kv_radixattention__decode_kernel"
HEADER = open("standalone__paged_block_table_kv_radixattention__decode.s.ref").read().split("; Override launch")[0]
STOK = 2048
CTX = [3663, 3230, 3821, 3388]
SLOT = 8192
HDR = 256 * SLOT
HELLO = HDR + 32768
EPO = HELLO + 1024
KVBYTES = 41943040
CF = math.log2(math.e) / 16.0
def f2u(x): return struct.unpack("<I", struct.pack("<f", x))[0]
NEG = f2u(-1e30) & ~0xff

class Cfg:
    segs = [(-1, 33), (2, 28), (0, 26), (1, 19), (3, 22)]
    dep = 2; pfn = 12; redu = 3; lag = (0, 0); hwait = True; dskip = False; pipe = 2; pre = 3; defer = 12; jobw = 0; b3 = 0; nostore = False; nohelp = False
    inred = True; redat = 2; tl = False; ilv = True
    dld = "sc1"; dst = ""; dwarm = None; pf = 0; pff = ""
    gran = 1
    stamps = False
    lds = 143360
    out_flags = ""
    spin = 20000
    probe = None
    pad = 0xd00
    touch = True
    l2warm = False
    hprio = 3; mprio = None
    ldnt = "nt"
    hflags = ""
    force_safe = False; hello_tries = 4; hello_sleep = 2
    earlyk = True
    nopoll = False

def partition(cfg):
    ws = []; acc = 0
    for b, nw in cfg.segs:
        n = STOK if b < 0 else CTX[b] - STOK
        M = -(-65536 * n // nw)
        assert (nw * M) >> 16 == n and nw * M < 2**32
        assert (M >> 16) >= 33 and (M >> 16) + 1 + 15 <= 8 * 16
        ws.append((b, acc, nw, M)); acc += nw
    assert acc == 128
    seg_of_wave = []
    for b, st, nw, M in ws: seg_of_wave += [b] * nw
    return ws, seg_of_wave

sWAVE = 3
sQ, sK, sV, sBT, sCTX, sOUT, sDBG, sWS = 4, 6, 8, 10, 12, 14, 16, 18
sKSRD, sVSRD = 20, 24
sPC = 28; sTAG = 30; sFF = 31
sH, sSPL, sB, sJ0, sJ1, sSH = 32, 33, 34, 35, 36, 37
sSOFF, sM0A, sM0B, sCNT, sI, sINX, sCOL, sH512 = 38, 39, 40, 41, 42, 43, 44, 45
sC, sT0, sT1, sT2, sT3, sSPEC, sFB = 46, 47, 48, 49, 50, 51, 56
sLM = 52; sONE = 54; sCM = 57; sSLOT = 58; sMK = 60; sT8 = 68; sSPEC1 = 69; sEX = 76; sHB = 84; sST = 86

vLANE, vN, vG = 1, 2, 3
vKOFF = 4; vVOFF = 12; vKRD = 16; vMSK = 20
vTAB, vCOL, vCTXG, vM, vL, vLIM, vT, vU, vAL, vNMC, vF, vL16 = 24, 25, 26, 27, 28, 29, 30, 31, 32, 33, 34, 35
vHG = 36; vNINF = 40; vHA = 41; vHC = 42; vHR = 43; vGH = 44; vDEP = 45; vW = 46; vA = 48; vKF = 64; vVF = 96
vQF = 160; vACC = 192; vS = 224; vRA = 240; vFA = 244; vNR = 245; vG4 = 246; vPF = 247; vCTXE = 248; vJUNK = 249
NV = 256
sPFX = 70; sPAIR = 72; sROLE = 73; sOWN = 74
sSO = 76; sNRS = 80; sTT = 28
TT = [28, 29, 30, 69]
sLAST = 40
MISC = 131072
LDS_Q = MISC; LDS_T = MISC + 4096; LDS_C = MISC + 8192; LDS_H = MISC + 8448; LDS_F = MISC + 8704; LDS_Z = MISC + 8768

def vr(b, n=4): return f"v[{b}:{b+n-1}]"
def sr(b, n=2): return f"s[{b}:{b+n-1}]"

def gen(cfg):
    L = []
    e = L.append
    ws, seg_of_wave = partition(cfg)
    dbg = cfg.stamps or cfg.probe
    def stamp(k):
        if cfg.stamps or (cfg.probe and k in (0, cfg.probe[0])): e(f"s_memrealtime {sr(sST+2*k)}")
    cms = []
    for s in range(32):
        m = 0
        for w in range(4):
            sg = seg_of_wave[4 * s + w]
            for p in range(4):
                if sg < 0 or sg == p: m |= 1 << (4 * p + w)
        cms.append(m)
    wds = []
    for s_ in range(32):
        segs4 = seg_of_wave[4 * s_:4 * s_ + 4]
        x = 0
        for w in range(4):
            if min(segs4) >= 0:
                ps = sorted(set(segs4)); assert len(ps) <= 2
                jobs = [(p, hf) for p in ps for hf in range(2)]
                jw = w if len(ps) == 2 else w - cfg.jobw
                if 0 <= jw < len(jobs):
                    p, hf = jobs[jw]
                    m = 16 | (p << 5) | (hf << 7) | sum(1 << j for j in range(4) if segs4[(w + j) & 3] == p)
                else: m = 0
            else:
                m = (w << 5) | sum(1 << j for j in range(4) if segs4[(w + j) & 3] in (-1, w))
            x |= m << (8 * w)
        wds.append(x)
    def kblock(u, preset=False):
        if not preset:
            e(f"s_add_u32 m0, s{sM0A}, {8192*u}")
            e(f"s_mov_b32 s{sKSRD+2}, s{sNRS+u}")
        for j in range(8):
            if j == 4:
                e(f"s_bitset1_b32 m0, 12"); e("s_nop 0")
            e(f"buffer_load_dwordx4 v{vKOFF+j}, {sr(sKSRD,4)}, s{sSO+u} offen offset:{(j&3)*1024} {cfg.ldnt} lds")
    def vload(u, r, hf):
        e(f"buffer_load_dwordx4 {vr(vVF+32*(u&1)+8*r+4*hf)}, v{vVOFF+r}, {sr(sVSRD,4)}, s{sSO+u} offen offset:{256*hf} {cfg.ldnt}")
    def vblock(u):
        e(f"s_mov_b32 s{sVSRD+2}, s{sNRS+u}")
        for r in range(4):
            vload(u, r, 0); vload(u, r, 1)
    def block(n):
        if n < 4: kblock(n)
        elif n < 6: vblock(n - 4)
    def descr():
        for u in range(4):
            if u: e(f"s_add_u32 s{sT2}, s{sI}, {u}")
            ix = sT2 if u else sI
            e(f"v_readlane_b32 s{sSO+u}, v{vTAB}, s{ix}")
            e(f"v_readlane_b32 s{sNRS+u}, v{vNR}, s{ix}")
            e(f"v_readlane_b32 s{TT[u]}, v{vCOL}, s{ix}")
        e(f"s_add_u32 s{sT2}, s{sI}, 4")
        e(f"s_cmp_ge_u32 s{sT2}, s{sCNT}")
        e(f"s_cselect_b32 s{sLAST}, 1, 0")
    def stub(name):
        e(f"T_{name}:"); e("s_branch " + ("T_pr0" if name == "sh0" else "L_touch_ret"))

    e(HEADER.rstrip())
    e(f"; @launch grid=(256,1,1) block=(320,1,1) lds={cfg.lds}")
    e('.amdgcn_target "amdgcn-amd-amdhsa--gfx950"')
    e(".text"); e(f".globl {NAME}")
    if cfg.pad:
        e(".p2align 12"); e(f".fill {cfg.pad//4}, 4, 0xbf800000")
    e(".p2align 8"); e(f".type {NAME},@function"); e(f"{NAME}:")
    stamp(0)
    e(f"s_load_dwordx16 s[4:19], s[0:1], 0")
    e("s_cmp_ge_u32 s2, 256"); e("s_cbranch_scc1 L_end0")
    e(f"v_lshrrev_b32 v{vT}, 6, v0")
    e(f"v_and_b32 v{vLANE}, 63, v0")
    e(f"v_readfirstlane_b32 s{sWAVE}, v{vT}")
    e(f"s_and_b32 s{sH}, s2, 7"); e(f"s_lshr_b32 s{sSPL}, s2, 3")
    e(f"v_lshrrev_b32 v{vT}, 5, v{vLANE}")
    e(f"s_sub_u32 s{sWAVE}, s{sWAVE}, 1")
    e("s_cbranch_scc0 L_main")
    e(f"s_setprio {cfg.hprio}")
    e(f"v_lshlrev_b32 v{vT}, 1, v{vT}")
    e(f"v_xor_b32 v{vT}, v{vT}, v{vLANE}")
    e(f"s_lshl_b32 s{sT2}, s{sH}, 10")
    e(f"v_lshl_add_u32 v{vA}, v{vT}, 4, s{sT2}")
    for b in range(1, 4):
        e(f"v_xor_b32 v{vA+b}, {64*b}, v{vA}")
        e(f"v_add_u32 v{vA+b}, {8192*b-1024*b}, v{vA+b}")
    e(f"v_lshlrev_b32 v{vL16}, 4, v{vLANE}")
    e(f"v_and_b32 v{vU}, 3, v{vLANE}"); e(f"v_lshlrev_b32 v{vU}, 2, v{vU}")
    e(f"s_lshl_b32 s{sT3}, s{sH}, 7"); e(f"s_add_u32 s{sT3}, s{sT3}, {EPO}")
    e(f"s_mov_b32 m0, {LDS_Q}")
    e("s_waitcnt lgkmcnt(0)")
    stamp(1)
    for b in range(4):
        e(f"global_load_lds_dwordx4 v{vA+b}, {sr(sQ)} offset:{1024*b} {cfg.hflags}")
    e(f"s_mov_b32 m0, {LDS_T}")
    e(f"s_load_dword s{sTAG}, {sr(sWS)}, s{sT3}")
    for b in range(4):
        e(f"global_load_lds_dwordx4 v{vL16}, {sr(sBT)} offset:{1024*b} {cfg.hflags}")
    e(f"s_mov_b32 m0, {LDS_C}"); e("s_nop 0")
    e(f"global_load_lds_dword v{vU}, {sr(sCTX)} {cfg.hflags}")
    e("s_branch L_helper")
    e("L_end0:"); e("s_endpgm")
    e("L_main:")
    e(f"s_load_dwordx2 {sr(sKSRD)}, s[0:1], 8")
    e(f"s_lshl_b32 s{sT0}, s{sSPL}, 2"); e(f"s_add_u32 s{sT0}, s{sT0}, s{sWAVE}")
    cc = lambda b, st, M: ((((b + 1) * STOK) << 16) - st * M) % 2**32
    b, st, nw, M = ws[0]
    e(f"s_mov_b32 s{sT3}, {cc(b, st, M):#x}"); e(f"s_mov_b32 s{sT2}, {M}")
    for b, st, nw, M in ws[1:]:
        e(f"s_cmp_ge_u32 s{sT0}, {st}")
        e(f"s_cselect_b32 s{sT3}, {cc(b, st, M):#x}, s{sT3}")
        e(f"s_cselect_b32 s{sT2}, {M}, s{sT2}")
    e(f"s_mul_i32 s{sJ0}, s{sT0}, s{sT2}")
    e(f"v_and_b32 v{vU}, 31, v{vLANE}")
    e(f"s_add_u32 s{sJ0}, s{sJ0}, s{sT3}")
    e(f"v_xor_b32 v{vU}, v{vU}, v{vT}")
    e(f"s_lshr_b32 s{sT3}, s{sJ0}, 16")
    e(f"v_lshlrev_b32 v{vU}, 4, v{vU}")
    e(f"s_lshl_b32 s{sT3}, s{sT3}, 12")
    e(f"v_lshl_or_b32 v{vKOFF}, v{vT}, 12, v{vU}")
    e(f"s_lshl_b32 s{sH512}, s{sH}, 9")
    e(f"s_add_u32 s{sSO}, s{sT3}, s{sH512}")
    e(f"s_add_u32 s{sKSRD+2}, s{sT3}, {0x10000*cfg.dep}")
    e(f"s_mov_b32 s{sKSRD+3}, 0x20000")
    e(f"s_lshl_b32 s{sM0A}, s{sWAVE}, 15")
    e(f"s_mov_b32 m0, s{sM0A}")
    def koff(j):
        e(f"v_xor_b32 v{vKOFF+j}, {32*j}, v{vKOFF}")
        e(f"v_add_u32 v{vKOFF+j}, {8192*j - (j&3)*1024}, v{vKOFF+j}")
    for j in range(1, cfg.pre + 1): koff(j)
    e("s_waitcnt lgkmcnt(0)")
    stamp(1)
    for j in range(8):
        if j == 4: e(f"s_bitset1_b32 m0, 12")
        if j > cfg.pre: koff(j)
        elif j == 4: e("s_nop 0")
        e(f"buffer_load_dwordx4 v{vKOFF+j}, {sr(sKSRD,4)}, s{sSO} offen offset:{(j&3)*1024} {cfg.ldnt} lds")
    for u in range(1, cfg.dep):
        e(f"s_add_u32 s{sSO+u}, s{sSO}, {0x10000*u}"); e(f"s_mov_b32 s{sNRS+u}, s{sKSRD+2}")
        kblock(u)
    def pack(b, st, nw): return ((st + nw - 1) << 8) | ((max(b, 0)) << 16) | ((0 if b < 0 else 1) << 24)
    b, st, nw, M = ws[0]
    e(f"s_mov_b32 s{sT1}, {pack(b, st, nw)}")
    for b, st, nw, M in ws[1:]:
        e(f"s_cmp_ge_u32 s{sT0}, {st}")
        e(f"s_cselect_b32 s{sT1}, {pack(b, st, nw)}, s{sT1}")
    e(f"s_add_u32 s{sJ1}, s{sJ0}, s{sT2}")
    e(f"s_bfe_u32 s{sB}, s{sT1}, 0x80010")
    e(f"s_lshr_b32 s{sSH}, s{sT1}, 24")
    if cfg.touch:
        e(f"s_lshl_b32 s{sT2}, s{sSH}, 2"); e(f"s_add_u32 s{sT2}, s{sT2}, s{sWAVE}")
        for k, nm in ((0, "sh0"), (1, "sh1"), (2, "sh2"), (3, "sh3"), (5, "pr0")):
            e(f"s_cmp_le_u32 s{sT2}, {k}"); e(f"s_cbranch_scc1 T_{nm}")
        e("s_branch T_pr1")
    e("L_touch_ret:")
    e(f"s_mov_b32 s{sVSRD}, s{sV}"); e(f"s_mov_b32 s{sVSRD+1}, s{sV+1}"); e(f"s_mov_b32 s{sVSRD+3}, 0x20000")
    e(f"v_and_b32 v{vN}, 15, v{vLANE}"); e(f"v_lshrrev_b32 v{vG}, 4, v{vLANE}")
    e(f"v_lshlrev_b32 v{vVOFF}, 4, v{vN}"); e(f"v_lshl_or_b32 v{vVOFF}, v{vG}, 14, v{vVOFF}")
    for r in range(1, 4): e(f"v_add_u32 v{vVOFF+r}, {4096*r}, v{vVOFF}")
    e(f"s_lshr_b32 s{sJ0}, s{sJ0}, 16"); e(f"s_lshr_b32 s{sJ1}, s{sJ1}, 16")
    e(f"s_lshl_b32 s{sT2}, s{sB}, 11")
    e(f"s_sub_u32 s{sJ0}, s{sJ0}, s{sT2}"); e(f"s_sub_u32 s{sJ1}, s{sJ1}, s{sT2}")
    e(f"s_bfe_u32 s{sT2}, s{sT1}, 0x80008")
    e(f"s_cmp_eq_u32 s{sT2}, s{sT0}")
    e(f"s_cselect_b32 s{sT2}, s{sSH}, 0")
    e(f"s_cmp_eq_u32 s{sT2}, 1")
    e(f"s_cselect_b32 s{sJ1}, 4096, s{sJ1}")
    e(f"s_cmp_eq_u32 s{sSH}, 0")
    e(f"s_cselect_b32 s{sT2}, 3, 0")
    e(f"s_cselect_b32 s{sT3}, 7, 63")
    e(f"s_lshr_b32 s{sT0}, s{sJ0}, 4")
    e(f"v_and_b32 v{vCOL}, s{sT3}, v{vLANE}")
    e(f"v_add_u32 v{vCOL}, s{sT0}, v{vCOL}")
    e(f"v_lshrrev_b32 v{vT}, 3, v{vLANE}")
    e(f"v_and_b32 v{vT}, s{sT2}, v{vT}")
    e(f"v_or_b32 v{vT}, s{sB}, v{vT}")
    e(f"v_min_u32 v{vU}, 255, v{vCOL}")
    e(f"v_lshlrev_b32 v{vNR}, 2, v{vU}")
    e(f"v_add_u32 v{vNR}, {MISC}, v{vNR}")
    e(f"v_lshl_add_u32 v{vTAB}, v{vT}, 10, v{vNR}")
    e(f"v_lshlrev_b32 v{vCOL}, 4, v{vCOL}")
    e(f"v_add_u32 v{vF}, s{sWAVE}, v{vLANE}")
    e(f"v_and_b32 v{vF}, s{sT2}, v{vF}")
    e(f"v_or_b32 v{vF}, s{sB}, v{vF}")
    e(f"v_lshlrev_b32 v{vCTXG}, 2, v{vF}")
    e(f"v_add_u32 v{vCTXG}, {MISC}, v{vCTXG}")
    e(f"s_mov_b32 s{sCM}, {wds[0]:#x}")
    for s in range(1, 32):
        if wds[s] != wds[s - 1]:
            e(f"s_cmp_ge_u32 s{sSPL}, {s}"); e(f"s_cselect_b32 s{sCM}, {wds[s]:#x}, s{sCM}")
    e(f"s_lshl_b32 s{sT2}, s{sWAVE}, 3")
    e(f"s_lshr_b32 s{sCM}, s{sCM}, s{sT2}")
    e(f"s_bfe_u32 s{sROLE}, s{sCM}, 0x10004")
    e(f"s_bfe_u32 s{sPAIR}, s{sCM}, 0x20005")
    e(f"s_bfe_u32 s{sINX}, s{sCM}, 0x10007"); e(f"s_lshl_b32 s{sINX}, s{sINX}, 10")
    e(f"s_and_b32 s{sCM}, s{sCM}, 15")
    e(f"s_lshl_b32 s{sT2}, s{sH}, 5"); e(f"s_add_u32 s{sT2}, s{sT2}, s{sSPL}"); e(f"s_lshl_b32 s{sT2}, s{sT2}, 13")
    e(f"s_add_u32 s{sSLOT}, s{sWS}, s{sT2}"); e(f"s_addc_u32 s{sSLOT+1}, s{sWS+1}, 0")
    e(f"s_lshl_b32 s{sT2}, s{sPAIR}, 11"); e(f"s_add_u32 s{sT2}, s{sT2}, s{sINX}")
    e(f"v_lshl_add_u32 v{vL16}, v{vLANE}, 4, s{sT2}")
    e(f"v_lshl_add_u32 v{vPF}, v{vN}, 7, s{sT2}")
    e(f"s_mov_b32 s{sC}, {f2u(CF):#x}")
    e(f"s_mov_b32 s{sI}, 0")
    e(f"v_mov_b32 v{vNINF}, 0xff800000")
    e(f"v_mov_b32 v{vM}, {NEG:#x}"); e(f"v_mov_b32 v{vL}, 0")
    e(f"v_lshlrev_b32 v{vT}, 9, v{vN}"); e(f"v_add_u32 v{vT}, s{sM0A}, v{vT}")
    e(f"v_xor_b32 v{vU}, v{vG}, v{vN}")
    for k in range(4):
        e(f"v_xor_b32 v{vKRD+k}, {4*k}, v{vU}")
        e(f"v_lshl_add_u32 v{vKRD+k}, v{vKRD+k}, 4, v{vT}")
    e(f"v_and_b32 v{vT}, 1, v{vLANE}"); e(f"v_lshlrev_b32 v{vT}, 4, v{vT}")
    e(f"v_mov_b32 v{vU}, 0xffff"); e(f"v_lshlrev_b32 v{vT}, v{vT}, v{vU}")
    e(f"v_bfe_u32 v{vU}, v{vLANE}, 1, 2")
    for k in range(4):
        e(f"v_cmp_eq_u32 {sr(sMK+2*k)}, {k}, v{vU}")
    for k in range(0, 32, 2): e(f"v_mov_b64 {vr(vACC+k,2)}, 0")
    for k in range(4):
        e(f"v_cndmask_b32 v{vMSK+k}, 0, v{vT}, {sr(sMK+2*k)}")
    e(f"v_mov_b32 v{vT}, {LDS_Z}")
    e(f"ds_write_b128 v{vT}, {vr(vACC)}"); e(f"ds_write_b128 v{vT}, {vr(vACC)} offset:1024")
    e(f"v_lshlrev_b32 v{vLIM}, 4, v{vLANE}")
    for w in range(4):
        e(f"s_add_u32 s{sT2}, s{sWAVE}, {w}"); e(f"s_and_b32 s{sT2}, s{sT2}, 3")
        e(f"s_sub_u32 s{sT3}, s{sPAIR}, s{sT2}"); e(f"s_and_b32 s{sT3}, s{sT3}, 3")
        e(f"s_lshl_b32 s{sT2}, s{sT2}, 4"); e(f"s_add_u32 s{sT2}, s{sT2}, s{sT3}"); e(f"s_lshl_b32 s{sT2}, s{sT2}, 11")
        e(f"s_add_u32 s{sT2}, s{sT2}, s{sINX}")
        e(f"s_bitcmp1_b32 s{sCM}, {w}"); e(f"s_cselect_b64 vcc, -1, 0")
        e(f"v_add_u32 v{vU}, s{sT2}, v{vLIM}")
        e(f"v_cndmask_b32 v{vRA+w}, v{vT}, v{vU}, vcc")
    e(f"s_sub_u32 s{sT2}, s{sB}, s{sWAVE}"); e(f"s_and_b32 s{sT2}, s{sT2}, 3"); e(f"s_mul_i32 s{sT2}, s{sT2}, s{sSH}")
    e(f"s_lshl_b32 s{sT2}, s{sT2}, 11"); e(f"s_add_u32 s{sT2}, s{sT2}, s{sM0A}")
    e(f"v_add_u32 v{vDEP}, s{sT2}, v{vLIM}")
    e(f"v_mov_b32 v{vFA}, {LDS_F}")
    e(f"s_mov_b32 s{sFF}, 0xff")
    e(f"v_lshlrev_b32 v{vG4}, 2, v{vG}")
    e(f"s_cmp_eq_u32 s{sROLE}, 1")
    e(f"s_cselect_b64 {sr(sPFX)}, 0xff, 0xffff".replace("0xff, 0xffff", "0xff, -1"))
    e(f"s_and_b64 {sr(sPFX)}, {sr(sPFX)}, 0xffff")
    e(f"s_cmp_eq_u32 s{sCM}, 0")
    e(f"s_cselect_b64 {sr(sPFX)}, 1, {sr(sPFX)}")
    e(f"s_sub_u32 s{sT2}, 1, s{sSH}"); e(f"s_mul_i32 s{sT2}, s{sT2}, s{sWAVE}")
    e(f"v_add_u32 v{vT}, s{sT2}, v{vN}"); e(f"v_and_b32 v{vT}, 3, v{vT}")
    e(f"v_cmp_eq_u32 {sr(sOWN)}, v{vT}, v{vF}")
    e(f"v_lshrrev_b32 v{vU}, 3, v{vN}")
    e(f"v_lshl_add_u32 v{vT}, v{vT}, 1, v{vU}")
    e(f"s_lshl_b32 s{sT2}, s{sWAVE}, 2"); e(f"s_add_u32 s{sT2}, s{sT2}, {LDS_H}")
    e(f"v_lshl_add_u32 v{vHA}, v{vT}, 4, s{sT2}")
    e(f"v_lshl_add_u32 v{vT}, v{vF}, 1, v{vU}")
    e(f"v_lshlrev_b32 v{vHC}, 4, v{vT}"); e(f"v_add_u32 v{vHC}, {LDS_H}, v{vHC}")
    e(f"v_lshlrev_b32 v{vU}, 1, v{vT}"); e(f"v_xor_b32 v{vU}, v{vU}, v{vG}")
    e(f"v_lshlrev_b32 v{vT}, 9, v{vT}"); e(f"v_add_u32 v{vT}, {MISC}, v{vT}")
    for k in range(4):
        e(f"v_xor_b32 v{vA+4+k}, {4*k}, v{vU}")
        e(f"v_lshl_add_u32 v{vA+4+k}, v{vA+4+k}, 4, v{vT}")
    e("s_barrier")
    stamp(3)
    e(f"ds_read_b32 v{vTAB}, v{vTAB} offset:{LDS_T-MISC}")
    e(f"ds_read_b32 v{vNR}, v{vNR} offset:{LDS_T-MISC}")
    e(f"ds_read_b32 v{vCTXG}, v{vCTXG} offset:{LDS_C-MISC}")
    for i in range(8):
        e(f"ds_read_b128 {vr(vQF+4*i)}, v{vA+4+(i&3)} offset:{LDS_Q-MISC+256*(i>>2)}")
    e(f"v_max_u32 v{vT}, s{sJ0}, v{vCOL}")
    e(f"v_add_u32 v{vU}, 16, v{vCOL}")
    e("s_waitcnt lgkmcnt(8)")
    e(f"v_cmp_gt_i32 vcc, 1, v{vCTXG}")
    e(f"v_min_i32 v{vCTXG}, 4096, v{vCTXG}")
    e(f"v_cmp_ne_u32 {sr(sMK)}, v{vTAB}, v{vNR}")
    e("s_cbranch_vccnz L_zeroctx")
    e("L_zeroctx_ret:")
    e(f"v_readfirstlane_b32 s{sT1}, v{vCTXG}")
    e(f"v_min_u32 v{vTAB}, 639, v{vTAB}")
    e(f"v_lshlrev_b32 v{vTAB}, 4, v{vTAB}")
    e(f"v_sub_u32 v{vTAB}, v{vTAB}, v{vCOL}")
    e(f"s_cmp_eq_u32 s{sSH}, 0")
    e(f"s_cselect_b32 s{sT1}, 4096, s{sT1}")
    e(f"s_min_u32 s{sJ1}, s{sJ1}, s{sT1}")
    e(f"v_min_u32 v{vU}, s{sJ1}, v{vU}")
    e(f"s_lshl_b32 s{sT2}, s{sB}, 11")
    e(f"v_cmp_lt_u32 vcc, v{vT}, v{vU}")
    e(f"v_cmp_ne_u32 {sr(sMK+2)}, s{sT2}, v{vTAB}")
    e(f"s_sub_i32 s{sCNT}, s{sJ1}, s{sJ0}")
    e(f"s_cmp_lt_i32 s{sCNT}, 1")
    e("s_cbranch_scc1 L_respec")
    e(f"s_and_b64 {sr(sMK+2)}, {sr(sMK+2)}, vcc")
    e("s_cbranch_scc1 L_respec")
    e(f"v_lshl_add_u32 v{vT}, v{vLANE}, 4, s{sJ0}")
    e(f"s_add_u32 s{sCNT}, s{sCNT}, 15"); e(f"s_lshr_b32 s{sCNT}, s{sCNT}, 4")
    e(f"v_add_u32 v{vU}, 16, v{vT}")
    e(f"v_min_u32 v{vU}, s{sJ1}, v{vU}")
    e(f"v_add_u32 v{vTAB}, s{sT2}, v{vT}")
    e(f"v_add_u32 v{vNR}, s{sT2}, v{vU}")
    e(f"v_lshl_or_b32 v{vCOL}, v{vU}, 16, v{vT}")
    e(f"v_cmp_lt_u32 vcc, v{vT}, v{vU}")
    e(f"v_lshl_add_u32 v{vTAB}, v{vTAB}, 12, s{sH512}")
    e(f"v_lshlrev_b32 v{vNR}, 12, v{vNR}")
    e(f"v_cndmask_b32 v{vTAB}, 0, v{vTAB}, vcc")
    e(f"v_cndmask_b32 v{vNR}, 0, v{vNR}, vcc")
    e(f"s_mov_b32 s{sFB}, 0")
    e(f"v_mov_b32 v{vCTXE}, v{vCTXG}")
    descr()
    e("s_waitcnt lgkmcnt(0)")
    e("L_go:")
    def mask(u):
        e(f"s_lshr_b32 s{sT3}, s{TT[u]}, 16"); e(f"s_and_b32 s{sT2}, s{TT[u]}, 0xffff")
        e(f"v_min_u32 v{vLIM}, s{sT3}, v{vCTXE}")
        e(f"v_subrev_u32 v{vLIM}, s{sT2}, v{vLIM}")
        e(f"v_sub_u32 v{vLIM}, v{vLIM}, v{vG4}")
        for r in range(4): e(f"v_cmp_lt_i32 {sr(sMK+2*r)}, {r}, v{vLIM}")
        for r in range(4): e(f"v_cndmask_b32 v{vS+4*u+r}, v{vNINF}, v{vS+4*u+r}, {sr(sMK+2*r)}")
    for u in range(4):
        e(f"s_waitcnt vmcnt({8*(min(u+cfg.dep,6)-u-1)})")
        if u == 0: stamp(2)
        for i in range(8):
            e(f"ds_read_b128 {vr(vKF+4*i)}, v{vKRD+(i&3)} offset:{8192*u+256*(i>>2)}")
        block(u + cfg.dep)
        if u: mask(u - 1)
        for i in range(8):
            e(f"s_waitcnt lgkmcnt({7-i})")
            e(f"v_mfma_f32_16x16x32_bf16 {vr(vS+4*u)}, {vr(vKF+4*i)}, {vr(vQF+4*i)}, " + ("0" if i == 0 else vr(vS+4*u)))
    e(f"v_max3_f32 v{vT}, v{vS}, v{vS+1}, v{vM}")
    for k in range(2, 12, 2): e(f"v_max3_f32 v{vT}, v{vS+k}, v{vS+k+1}, v{vT}")
    mask(3)
    for k in range(12, 16, 2): e(f"v_max3_f32 v{vT}, v{vS+k}, v{vS+k+1}, v{vT}")
    def cross(op, reg):
        for sw in ("v_permlane32_swap_b32", "v_permlane16_swap_b32"):
            e(f"v_mov_b32 v{vU}, v{reg}"); e("s_nop 1")
            e(f"{sw} v{reg}, v{vU}"); e("s_nop 0")
            e(f"{op} v{reg}, v{reg}, v{vU}")
    cross("v_max_f32", vT)
    e(f"s_cmp_eq_u32 s{sLAST}, 0"); e("s_cbranch_scc1 L_nox")
    e(f"v_mov_b32 v{vU}, {NEG:#x}")
    e(f"v_cndmask_b32 v{vU}, v{vU}, v{vT}, {sr(sOWN)}")
    e(f"ds_write_b32 v{vHA}, v{vU}")
    e("s_waitcnt lgkmcnt(0)")
    e("s_barrier")
    e(f"ds_read_b128 {vr(vA)}, v{vHC}")
    e("s_waitcnt lgkmcnt(0)")
    e(f"v_max3_f32 v{vT}, v{vA}, v{vA+1}, v{vA+2}")
    e(f"v_max_f32 v{vT}, v{vT}, v{vA+3}")
    e("s_branch L_nox")
    e(".p2align 12")
    stub("pr0")
    e("L_nox:")
    e(f"s_cmp_lg_u32 s{sI}, 0"); e("s_cbranch_scc1 L_rescale")
    e("L_rescale_ret:")
    e(f"v_mul_f32 v{vNMC}, s{sC}, v{vT}")
    e(f"v_mov_b32 v{vM}, v{vT}")
    for k in range(16): e(f"v_fma_f32 v{vS+k}, v{vS+k}, s{sC}, -v{vNMC}")
    for k in range(16): e(f"v_exp_f32 v{vS+k}, v{vS+k}")
    e(f"v_pk_add_f32 {vr(vA,2)}, {vr(vS,2)}, {vr(vS+2,2)}")
    for k in range(4, 16, 2): e(f"v_pk_add_f32 {vr(vA,2)}, {vr(vA,2)}, {vr(vS+k,2)}")
    for k in range(16): e(f"v_cvt_pk_bf16_f32 v{vS+k}, v{vS+k}, v{vS+k}")
    e(f"v_add_f32 v{vL}, v{vL}, v{vA}")
    e(f"v_add_f32 v{vL}, v{vL}, v{vA+1}")
    e(f"v_mov_b32 v{vT}, v{vL}")
    cross("v_add_f32", vT)
    e(f"v_cndmask_b32 v{vT}, 0, v{vT}, {sr(sOWN)}")
    e(f"ds_write_b32 v{vHA}, v{vT} offset:128")
    e(f"s_cmp_eq_u32 s{sLAST}, 0"); e("s_cbranch_scc1 L_nol")
    e("s_waitcnt lgkmcnt(0)")
    e("s_barrier")
    e("L_nol:")
    e(f"s_cmp_eq_u32 s{sSH}, 0")
    e("s_cbranch_scc1 L_sh_v")

    RD = vKF
    def reduce_():
        e(f"ds_read_b64 {vr(vW,2)}, v{vFA}")
        for w in range(1, 4):
            e(f"ds_read_b128 {vr(RD+8*w)}, v{vRA+w}")
            e(f"ds_read_b128 {vr(RD+8*w+4)}, v{vRA+w} offset:1024")
        e("s_waitcnt lgkmcnt(6)")
        e(f"v_cmp_eq_u32 vcc, 0, v{vW+1}")
        for w in range(1, 4):
            for hf in range(2):
                e(f"s_waitcnt lgkmcnt({7-2*w-hf})")
                for k in range(4*hf, 4*hf+4, 2): e(f"v_pk_add_f32 {vr(vACC+k,2)}, {vr(vACC+k,2)}, {vr(RD+8*w+k,2)}")
    def publish(fl):
        for k in range(0, 4, 2): e(f"v_bfi_b32 v{vACC+k}, s{sFF}, v{vW}, v{vACC+k}")
        e(f"global_store_dwordx4 v{vL16}, {vr(vACC)}, {sr(sSLOT)} {fl}")
        for k in range(4, 8, 2): e(f"v_bfi_b32 v{vACC+k}, s{sFF}, v{vW}, v{vACC+k}")
        e(f"global_store_dwordx4 v{vL16}, {vr(vACC+4)}, {sr(sSLOT)} offset:1024 {fl}")
    def fin():
        if cfg.b3 == 1 and dbg: e("s_barrier")
        if dbg: e("s_branch L_fin")
        else: e("s_endpgm")

    def vphase(tag, pairs, stubs):
        shared = len(pairs) > 1
        ab = lambda n: (vA if n % 2 == 0 else vKF) if shared else vA + 4 * (n & 1)
        def areg(n, p):
            return vVF + 4 * (n - 12) if shared and p == 0 and n >= cfg.defer else ab(n) + 4 * p
        def andop(n, p, k):
            if shared: e(f"v_and_b32_dpp v{areg(n,p)+k}, v{vS+n}, v{vMSK+k} quad_perm:[{p},{p},{p},{p}] row_mask:0xf bank_mask:0xf")
            else: e(f"v_and_b32 v{ab(n)+k}, v{vS+n}, v{vMSK+k}")
        e(f"L_{tag}_v:")
        for p in pairs:
            for k in range(4): andop(0, p, k)
        lag = cfg.lag[1 if shared else 0]
        q = list(range(8))
        for u in range(4):
            if u in stubs:
                e(f"s_branch L_{tag}_u{u}"); stub(stubs[u]); e(f"L_{tag}_u{u}:")
            for r in range(4):
                n = 4 * u + r
                if n == cfg.pfn:
                    e(f"s_mov_b64 exec, {sr(sPFX)}")
                    e(f"global_load_dword v{vJUNK}, v{vPF}, {sr(sSLOT)} {cfg.pff}")
                    e("s_mov_b64 exec, -1")
                    q.append("p")
                isred = False
                if isred:
                    e(f"s_cmp_eq_u32 s{sT0}, 0"); e("s_cbranch_scc1 L_nored")
                    e("s_waitcnt lgkmcnt(0)")
                    e("s_barrier")
                    stamp(5)
                    reduce_()
                    e("L_nored:")
                e(f"s_waitcnt vmcnt({sum(1 if x == 'p' else 2 for x in q[q.index(n)+1:])})")
                if n == 0 or isred: e("s_nop 0")
                todo = [(p, k) for p in pairs for k in range(4)] if n < 15 else []
                order = [(hf, p) for hf in range(2) for p in pairs]
                if shared and n >= cfg.defer: order = [x for x in order if x[1]]
                if shared and n + 1 >= cfg.defer: todo = todo[4:] + todo[:4]
                per = -(-len(todo) // len(order))
                for hf, p in order:
                    e(f"v_mfma_f32_16x16x32_bf16 {vr(vACC+8*p+4*hf)}, {vr(areg(n,p))}, {vr(vVF+32*(u&1)+8*r+4*hf)}, {vr(vACC+8*p+4*hf)}")
                    for pk in todo[:per]: andop(n + 1, *pk)
                    todo = todo[per:]
                m = n + 8 - lag
                if 8 <= m < 16:
                    if m % 4 == 0: e(f"s_mov_b32 s{sVSRD+2}, s{sNRS+(m>>2)}")
                    vload(m >> 2, m & 3, 0); vload(m >> 2, m & 3, 1)
                    q.append(m)
                elif n < 15 and not shared: e("s_nop 0")
        stamp(4)

    vphase("pr", [0], {2: "pr1"})
    e(f"s_cmp_eq_u32 s{sLAST}, 0"); e("s_cbranch_scc1 L_next")
    e(f"s_cmp_eq_u32 s{sROLE}, 0")
    e("s_nop 3")
    e(f"ds_write_b128 v{vDEP}, {vr(vACC)}")
    e(f"ds_write_b128 v{vDEP}, {vr(vACC+4)} offset:1024")
    e("s_waitcnt lgkmcnt(0)")
    e("s_barrier")
    stamp(5)
    e("s_cbranch_scc1 L_pr_old")
    for w in range(4): e(f"ds_read_b128 {vr(vKF+4*w)}, v{vRA+w}")
    e(f"ds_read_b64 {vr(vW,2)}, v{vFA}")
    e("s_waitcnt lgkmcnt(3)")
    for k in (0, 2): e(f"v_pk_add_f32 {vr(vKF+k,2)}, {vr(vKF+k,2)}, {vr(vKF+4+k,2)}")
    e("s_waitcnt lgkmcnt(0)")
    e(f"v_cmp_eq_u32 vcc, 0, v{vW+1}")
    for k in (0, 2): e(f"v_pk_add_f32 {vr(vKF+8+k,2)}, {vr(vKF+8+k,2)}, {vr(vKF+12+k,2)}")
    for k in (0, 2): e(f"v_pk_add_f32 {vr(vKF+k,2)}, {vr(vKF+k,2)}, {vr(vKF+8+k,2)}")
    for k in (0, 2): e(f"v_bfi_b32 v{vKF+k}, s{sFF}, v{vW}, v{vKF+k}")
    e("s_cbranch_vccnz L_pr_safe")
    e(f"global_store_dwordx4 v{vL16}, {vr(vKF)}, {sr(sSLOT)}")
    stamp(6)
    fin()
    e("L_pr_safe:")
    e(f"global_store_dwordx4 v{vL16}, {vr(vKF)}, {sr(sSLOT)} sc0 sc1")
    stamp(6)
    e("L_fin2:")
    fin()
    e("L_pr_old:")
    e(f"s_cmp_eq_u32 s{sCM}, 0"); e("s_cbranch_scc1 L_fin2")
    e(f"ds_read_b128 {vr(vACC)}, v{vRA}")
    e(f"ds_read_b128 {vr(vACC+4)}, v{vRA} offset:1024")
    e("s_branch L_reduce")

    nsh = [s for s in range(32) if any(seg_of_wave[4*s+w] < 0 for w in range(4))]
    assert nsh == list(range(len(nsh)))
    a = len(nsh)
    lo = []; hi = []
    for p in range(4):
        sl = [s for s in range(32) if any(seg_of_wave[4*s+w] == p for w in range(4)) and s >= a]
        assert sl == list(range(sl[0], sl[-1] + 1)) and 13 <= a + len(sl) <= 16, (p, sl)
        lo.append(sl[0]); hi.append(sl[-1] + 1)
    D, H, DA, HA, CL = vQF, vQF + 16, vKF, vKF + 4, vVF
    e("L_helper:")
    e(f"s_getreg_b32 s{sT1}, hwreg(HW_REG_XCC_ID, 0, 4)")
    e(f"s_sub_u32 s{sT3}, s{sT3}, 1024")
    e(f"v_and_b32 v{vT}, 31, v{vLANE}")
    e(f"v_lshl_add_u32 v{vCOL}, v{vT}, 2, s{sT3}")
    e(f"s_lshl_b32 s{sT2}, s{sSPL}, 2"); e(f"s_add_u32 s{sT2}, s{sT2}, s{sT3}")
    e(f"v_mov_b32 v{vU}, s{sT2}")
    e("s_waitcnt lgkmcnt(0)")
    e(f"s_add_u32 s{sTAG}, s{sTAG}, 1")
    e(f"s_and_b32 s{sB}, s{sTAG}, 0xfffffff"); e(f"s_lshl_b32 s{sT1}, s{sT1}, 28"); e(f"s_or_b32 s{sB}, s{sB}, s{sT1}")
    e(f"v_mov_b32 v{vT}, s{sB}")
    e("s_mov_b64 exec, 1")
    e(f"global_store_dword v{vU}, v{vT}, {sr(sWS)}")
    e("s_mov_b64 exec, -1")
    e("s_waitcnt vmcnt(1)")
    e("s_barrier")
    stamp(3)
    e("s_setprio 0")
    e(f"s_and_b32 s{sT8}, s{sTAG}, 0xff")
    e(f"s_mov_b32 s{sFF}, 0xff")
    e(f"v_mov_b32 v{vW}, s{sTAG}")
    e(f"v_mov_b32 v{vFA}, {LDS_F}")
    rows = [sum(3 << (2 * p) for p in range(4) if (cms[t] >> (4 * p)) & 15) for t in range(32)]
    e(f"s_mov_b32 s{sOWN}, {rows[0]}"); e(f"s_mov_b32 s{sOWN+1}, 0")
    for t in range(1, 32):
        if rows[t] != rows[t - 1]:
            e(f"s_cmp_ge_u32 s{sSPL}, {t}"); e(f"s_cselect_b32 s{sOWN}, {rows[t]}, s{sOWN}")
    e(f"v_and_b32 v{vT}, 7, v{vLANE}")
    e(f"v_lshlrev_b32 v{vHR}, 4, v{vT}"); e(f"v_add_u32 v{vHR}, {LDS_H}, v{vHR}")
    e(f"s_lshl_b32 s{sT2}, s{sH}, 8"); e(f"s_add_u32 s{sT2}, s{sT2}, s{sSPL}"); e(f"s_lshl_b32 s{sT2}, s{sT2}, 4"); e(f"s_add_u32 s{sT2}, s{sT2}, {HDR}")
    e(f"v_lshl_add_u32 v{vGH}, v{vT}, 9, s{sT2}")
    e(f"s_mov_b32 s{sC}, {f2u(CF):#x}")
    e(f"s_lshl_b32 s{sT2}, s{sH}, 18")
    e(f"s_add_u32 s{sHB}, s{sWS}, s{sT2}"); e(f"s_addc_u32 s{sHB+1}, s{sWS+1}, 0")
    e(f"v_bfe_u32 v{vG}, v{vLANE}, 2, 2")
    e(f"v_lshrrev_b32 v{vN}, 4, v{vLANE}"); e(f"v_and_b32 v{vAL}, 3, v{vLANE}")
    e(f"v_lshl_or_b32 v{vN}, v{vN}, 2, v{vAL}")
    e(f"s_lshr_b32 s{sT0}, s{sSPL}, 3")
    lop = sum((lo[p] - a) << (8 * p) for p in range(4)); hip_ = sum(hi[p] << (8 * p) for p in range(4))
    e(f"s_lshl_b32 s{sT1}, s{sT0}, 3")
    e(f"s_lshr_b32 s{sT2}, {lop:#x}, s{sT1}"); e(f"s_and_b32 s{sT2}, s{sT2}, 0xff")
    e(f"s_lshr_b32 s{sT3}, {hip_:#x}, s{sT1}"); e(f"s_and_b32 s{sT3}, s{sT3}, 0xff")
    e(f"s_lshl_b32 s{sI}, s{sT0}, 11")
    e(f"s_bfe_u32 s{sINX}, s{sSPL}, 0x10001"); e(f"s_lshl_b32 s{sCOL}, s{sINX}, 10"); e(f"s_add_u32 s{sI}, s{sI}, s{sCOL}")
    e(f"s_bfe_u32 s{sCNT}, s{sSPL}, 0x10002"); e(f"s_lshl_b32 s{sCOL}, s{sCNT}, 9"); e(f"s_add_u32 s{sI}, s{sI}, s{sCOL}")
    e(f"s_and_b32 s{sSOFF}, s{sSPL}, 1"); e(f"s_lshl_b32 s{sCOL}, s{sSOFF}, 7"); e(f"s_add_u32 s{sI}, s{sI}, s{sCOL}")
    e(f"v_and_b32 v{vT}, 7, v{vN}"); e(f"v_lshrrev_b32 v{vU}, 3, v{vN}")
    e(f"v_lshlrev_b32 v{vL}, 4, v{vT}"); e(f"v_lshl_add_u32 v{vL}, v{vU}, 8, v{vL}"); e(f"v_add_u32 v{vL}, s{sI}, v{vL}")
    def slot_of(idxreg, mask):
        e(f"v_add_u32 v{vF}, s{sT2}, v{idxreg}")
        e(f"v_cmp_gt_u32 vcc, {a}, v{idxreg}"); e("s_nop 1")
        e(f"v_cndmask_b32 v{idxreg}, v{vF}, v{idxreg}, vcc")
        e(f"v_cmp_gt_u32 {sr(mask)}, s{sT3}, v{idxreg}")
    for k in range(4):
        e(f"v_add_u32 v{vM}, {4*k}, v{vG}")
        if 4 * k + 3 >= a:
            slot_of(vM, sEX + 2 * k)
            for dd in (D, vACC, vACC + 16)[:cfg.pipe]:
                for j in range(4): e(f"v_mov_b32 v{dd+4*k+j}, " + (f"s{sT8}" if j % 2 == 0 else "0"))
        e(f"v_lshl_add_u32 v{DA+k}, v{vM}, 13, v{vL}")
    e(f"v_lshl_add_u32 v{vM}, v{vAL}, 2, v{vG}")
    slot_of(vM, sLM)
    e(f"s_lshl_b32 s{sCOL}, s{sH}, 3"); e(f"s_lshr_b32 s{sI}, s{sSPL}, 2"); e(f"s_add_u32 s{sCOL}, s{sCOL}, s{sI}")
    e(f"s_lshl_b32 s{sCOL}, s{sCOL}, 9"); e(f"s_add_u32 s{sCOL}, s{sCOL}, {HDR}")
    e(f"v_lshl_add_u32 v{HA}, v{vM}, 4, s{sCOL}")
    e(f"v_mov_b32 v{H}, {NEG:#x}"); e(f"v_mov_b32 v{H+1}, 0"); e(f"v_mov_b32 v{H+2}, 0")
    e(f"s_lshl_b32 s{sI}, s{sT0}, 13"); e(f"s_lshl_b32 s{sCOL}, s{sH}, 10"); e(f"s_add_u32 s{sI}, s{sI}, s{sCOL}")
    e(f"s_lshl_b32 s{sCOL}, s{sCNT}, 9"); e(f"s_add_u32 s{sI}, s{sI}, s{sCOL}")
    e(f"s_and_b32 s{sCOL}, s{sSPL}, 3"); e(f"s_lshl_b32 s{sCOL}, s{sCOL}, 7"); e(f"s_add_u32 s{sI}, s{sI}, s{sCOL}")
    e(f"v_lshlrev_b32 v{vT}, 4, v{vT}"); e(f"v_lshl_add_u32 v{vT}, v{vU}, 3, v{vT}"); e(f"v_add_u32 v{vLIM}, s{sI}, v{vT}")
    e(f"s_mov_b32 s{sJ0}, {cfg.spin}")
    e(f"v_mov_b32 v{vJUNK}, 0")
    e(f"s_mov_b32 s{sT2}, {cfg.hello_tries}")
    e(f"v_mov_b32 v{vW+1}, 1")
    e(f"s_mov_b64 exec, {sr(sLM)}")
    e(f"global_load_dwordx4 {vr(H)}, v{HA}, {sr(sWS)} sc1")
    e("s_mov_b64 exec, 1")
    e(f"global_load_dword v{vF}, v{DA}, {sr(sHB)} sc1 nt")
    e("s_mov_b64 exec, -1")
    e("s_waitcnt vmcnt(0)")
    e(f"global_load_dword v{vU}, v{vCOL}, {sr(sWS)} sc1")
    e("s_barrier")
    e("s_barrier")
    e(f"ds_read_b128 {vr(vA)}, v{vHR}")
    e(f"ds_read_b128 {vr(vA+4)}, v{vHR} offset:128")
    e("s_waitcnt lgkmcnt(0)")
    e(f"v_max3_f32 v{vHG}, v{vA}, v{vA+1}, v{vA+2}")
    e(f"v_pk_add_f32 {vr(vA+4,2)}, {vr(vA+4,2)}, {vr(vA+6,2)}")
    e(f"v_max_f32 v{vHG}, v{vHG}, v{vA+3}")
    e(f"v_add_f32 v{vHG+1}, v{vA+4}, v{vA+5}")
    e(f"v_lshlrev_b32 v{vHG+2}, 8, v{vHG}"); e(f"v_mov_b32 v{vHG+3}, v{vW}")
    for k in range(3): e(f"v_bfi_b32 v{vHG+k}, s{sFF}, v{vW}, v{vHG+k}")
    e("s_branch L_hello1")
    e("L_hello:")
    e(f"global_load_dword v{vU}, v{vCOL}, {sr(sWS)} sc1")
    e("L_hello1:")
    e("s_waitcnt vmcnt(0)")
    e(f"v_cmp_ne_u32 vcc, s{sB}, v{vU}")
    e(f"s_sub_u32 s{sT2}, s{sT2}, 1")
    if not cfg.force_safe: e("s_cbranch_vccz L_hello_ok")
    e("s_cbranch_scc0 L_hello")
    e(f"v_mov_b32 v{vW+1}, 0")
    e(f"s_mov_b32 s{sSH}, 0")
    e(f"s_mov_b64 exec, {sr(sOWN)}")
    e(f"global_store_dwordx4 v{vGH}, {vr(vHG)}, {sr(sWS)} sc0 sc1")
    e("s_branch L_hello_done")
    e("L_hello_ok:")
    e(f"s_mov_b32 s{sSH}, 1")
    e(f"s_mov_b64 exec, {sr(sOWN)}")
    e(f"global_store_dwordx4 v{vGH}, {vr(vHG)}, {sr(sWS)}")
    e(f"s_cmp_lg_u32 s{sSPL}, 0"); e("s_cbranch_scc1 L_hello_done")
    e("s_mov_b64 exec, 1")
    e(f"global_store_dword v{vCOL}, v{vW}, {sr(sWS)} offset:1024")
    e("L_hello_done:")
    e(f"s_mov_b64 exec, {sr(sLM)}")
    e(f"ds_write_b64 v{vFA}, {vr(vW,2)}")
    if cfg.hwait: e("s_waitcnt vmcnt(0)")
    e(f"global_load_dwordx4 {vr(H)}, v{HA}, {sr(sWS)} sc1")
    stamp(2)
    e("s_setprio 3")
    e("s_waitcnt lgkmcnt(0)")
    e("s_barrier")
    stamp(5)
    DS = [D, vACC, vACC + 16]
    def dloads(skip, D=D):
        for k in range(4):
            if skip:
                e(f"s_cmp_eq_u64 {sr(sMK+2*k)}, 0"); e(f"s_cbranch_scc1 L_dk{k}")
            if 4 * k + 3 >= a: e(f"s_mov_b64 exec, {sr(sEX+2*k)}")
            elif k == 0 and not skip: e("s_mov_b64 exec, -1")
            e(f"global_load_dwordx4 {vr(D+4*k)}, v{DA+k}, {sr(sHB)} {cfg.dld}")
            if skip: e(f"L_dk{k}:")
    if cfg.nopoll: e("s_branch L_fin")
    e("s_branch L_poll1")
    e("L_poll:")
    e(f"global_load_dwordx4 {vr(H)}, v{HA}, {sr(sWS)} sc1")
    e(f"s_sub_u32 s{sJ0}, s{sJ0}, 1"); e("s_cbranch_scc1 L_fin")
    e("L_poll1:")
    e("s_waitcnt vmcnt(0)")
    e(f"v_bitop3_b32 v{vA}, v{H}, v{H+1}, s{sTAG} bitop3:0x7e")
    e(f"v_xor_b32 v{vA+1}, s{sTAG}, v{H+3}")
    e(f"v_bitop3_b32 v{vA}, v{vA}, v{H+2}, s{sTAG} bitop3:0xf6")
    e(f"v_and_or_b32 v{vA}, v{vA}, s{sFF}, v{vA+1}")
    e(f"v_cmp_ne_u32 vcc, 0, v{vA}")
    e("s_cbranch_vccnz L_poll")
    if not cfg.b3: dloads(False)
    e("s_mov_b64 exec, -1")
    dpp = ["quad_perm:[1,0,3,2]", "quad_perm:[2,3,0,1]", "row_ror:4", "row_ror:8"]
    e(f"v_lshrrev_b32 v{vM}, 8, v{H+2}")
    e(f"v_bfi_b32 v{vM}, s{sFF}, v{vM}, v{H}")
    e(f"v_and_b32 v{vL}, 0xffffff00, v{H+1}")
    e("s_nop 0")
    e(f"v_max_f32_dpp v{vT}, v{vM}, v{vM} {dpp[0]} row_mask:0xf bank_mask:0xf")
    for x in dpp[1:]:
        e("s_nop 1")
        e(f"v_max_f32_dpp v{vT}, v{vT}, v{vT} {x} row_mask:0xf bank_mask:0xf")
    e(f"v_sub_f32 v{vM}, v{vM}, v{vT}")
    e(f"v_mul_f32 v{vM}, s{sC}, v{vM}")
    e(f"v_exp_f32 v{vM}, v{vM}")
    e("s_nop 0")
    e(f"v_mul_f32 v{vL}, v{vL}, v{vM}")
    for x in dpp:
        e("s_nop 1")
        e(f"v_add_f32_dpp v{vL}, v{vL}, v{vL} {x} row_mask:0xf bank_mask:0xf")
    if cfg.b3:
        if cfg.b3 == 1: e("s_barrier")
        dloads(False); e("s_mov_b64 exec, -1")
    e(f"v_rcp_f32 v{vL}, v{vL}")
    e("s_nop 0")
    e(f"v_mul_f32 v{vM}, v{vM}, v{vL}")
    e("s_nop 1")
    for k in range(4):
        e(f"v_mov_b32_dpp v{vA+8+2*k}, v{vM} quad_perm:[{k},{k},{k},{k}] row_mask:0xf bank_mask:0xf")
    def check(D):
        for k in range(4):
            e(f"v_bitop3_b32 v{CL+k}, v{D+4*k}, v{D+4*k+2}, s{sTAG} bitop3:0x7e")
        e(f"v_or3_b32 v{CL}, v{CL}, v{CL+1}, v{CL+2}")
        e(f"v_bitop3_b32 v{CL}, v{CL}, v{CL+3}, s{sFF} bitop3:0xa8")
        e(f"v_cmp_ne_u32 vcc, 0, v{CL}")
    def final(D):
        stamp(7)
        for k in range(4):
            for j in (0, 2): e(f"v_xor_b32 v{D+4*k+j}, s{sT8}, v{D+4*k+j}")
            for j in range(0, 4, 2):
                if k == 0: e(f"v_pk_mul_f32 {vr(vA+j,2)}, {vr(D+j,2)}, {vr(vA+8,2)} op_sel_hi:[1,0]")
                else: e(f"v_pk_fma_f32 {vr(vA+j,2)}, {vr(D+4*k+j,2)}, {vr(vA+8+2*k,2)}, {vr(vA+j,2)} op_sel_hi:[1,0,1]")
        e("s_nop 0")
        for ror in (4, 8):
            for j in range(4):
                e(f"v_add_f32_dpp v{vA+j}, v{vA+j}, v{vA+j} row_ror:{ror} row_mask:0xf bank_mask:0xf")
        e("s_mov_b32 exec_lo, 0x000f000f"); e("s_mov_b32 exec_hi, 0x000f000f")
        e(f"v_cvt_pk_bf16_f32 v{vS}, v{vA}, v{vA+1}")
        e(f"v_cvt_pk_bf16_f32 v{vS+1}, v{vA+2}, v{vA+3}")
        e(f"global_store_dwordx2 v{vLIM}, {vr(vS,2)}, {sr(sOUT)} {cfg.out_flags}")
    n = cfg.pipe
    for i in range(1, n):
        dloads(False, DS[i]); e("s_mov_b64 exec, -1")
    e("L_data:")
    for i in range(n):
        e(f"s_waitcnt vmcnt({4*(n-1)})")
        check(DS[i])
        e(f"s_cbranch_vccz L_final{i}")
        dloads(False, DS[i]); e("s_mov_b64 exec, -1")
    e(f"s_sub_u32 s{sJ0}, s{sJ0}, 1"); e("s_cbranch_scc0 L_data")
    e("s_branch L_fin")
    for i in range(n):
        e(f"L_final{i}:")
        final(DS[i])
        if i < n - 1: e("s_branch L_post")
    e("L_post:")
    e(f"s_or_b32 s{sT2}, s{sSH}, s{sSPL}"); e("s_cbranch_scc1 L_fin")
    e("s_mov_b64 exec, -1")
    firstp = [min(p for p in range(4) if (cms[t] >> (4 * p)) & 15) for t in range(32)]
    e(f"v_and_b32 v{vT}, 31, v{vLANE}")
    e(f"s_lshl_b32 s{sT2}, s{sH}, 12"); e(f"s_add_u32 s{sT2}, s{sT2}, {HDR + 12 + 1024 * firstp[0]}")
    e(f"v_lshl_add_u32 v{vU}, v{vT}, 4, s{sT2}")
    for t in range(1, 32):
        if firstp[t] != firstp[t - 1]:
            e(f"v_cmp_le_u32 vcc, {t}, v{vT}")
            e(f"v_add_u32 v{vF}, {1024 * (firstp[t] - firstp[t-1])}, v{vU}")
            e("s_nop 0")
            e(f"v_cndmask_b32 v{vU}, v{vU}, v{vF}, vcc")
    e("L_ep:")
    e(f"s_sub_u32 s{sJ0}, s{sJ0}, 1"); e("s_cbranch_scc1 L_fin")
    e(f"global_load_dword v{vF}, v{vU}, {sr(sWS)} sc1")
    e("s_waitcnt vmcnt(0)")
    e(f"v_cmp_ne_u32 vcc, s{sTAG}, v{vF}")
    e("s_nop 1")
    e("s_cbranch_vccnz L_ep")
    e("s_mov_b64 exec, 1")
    e(f"global_store_dword v{vCOL}, v{vW}, {sr(sWS)} offset:1024")
    e("L_fin:")
    if cfg.probe:
        k, mult = cfg.probe
        if k == 8:
            e("s_waitcnt vmcnt(0)"); e(f"s_memrealtime {sr(sST+2)}"); k = 1
        e("s_waitcnt lgkmcnt(0)")
        if k > 0:
            e(f"s_sub_u32 s{sT0}, s{sST+2*k}, s{sST}")
            e(f"s_cmp_gt_u32 s{sT0}, 3000"); e(f"s_cselect_b32 s{sT0}, 0, s{sT0}")
            e(f"s_mul_i32 s{sT0}, s{sT0}, {mult}")
        else:
            e(f"s_mov_b32 s{sT0}, 0")
        e(f"s_add_u32 s{sT0}, s{sT0}, 4000")
        e("L_probe:")
        e("s_sleep 8")
        e(f"s_memrealtime {sr(sMK)}"); e("s_waitcnt lgkmcnt(0)")
        e(f"s_sub_u32 s{sT1}, s{sMK}, s{sST}")
        e(f"s_cmp_lt_u32 s{sT1}, s{sT0}"); e("s_cbranch_scc1 L_probe")
    if cfg.stamps:
        e("s_mov_b64 exec, -1")
        e("s_waitcnt vmcnt(0)")
        e(f"s_memrealtime {sr(sMK)}")
        e("s_waitcnt lgkmcnt(0)")
        e(f"s_min_u32 s{sWAVE}, s{sWAVE}, 4")
        e(f"s_lshl_b32 s{sT2}, s2, 4"); e(f"s_add_u32 s{sT2}, s{sT2}, s{sWAVE}"); e(f"s_lshl_b32 s{sT2}, s{sT2}, 6")
        e(f"s_add_u32 s{sT2}, s{sT2}, 0x8000000")
        e(f"v_mov_b32 v{vT}, s{sT2}")
        e(f"s_getreg_b32 s{sT3}, hwreg(HW_REG_XCC_ID)")
        for k in range(8): e(f"v_mov_b32 v{vKF+k}, s{sST+2*k}")
        e(f"v_mov_b32 v{vKF+8}, s{sMK}"); e(f"v_mov_b32 v{vKF+9}, s{sT3}"); e(f"v_mov_b32 v{vKF+10}, 0x12345678"); e(f"v_mov_b32 v{vKF+11}, s{sJ0}")
        for k in range(3):
            e(f"global_store_dwordx4 v{vT}, {vr(vKF+4*k)}, {sr(sWS)} offset:{16*k}")
    e("s_endpgm")
    e(".p2align 12")
    stub("sh0")
    vphase("sh", [0, 1, 2, 3], {1: "sh1", 2: "sh2", 3: "sh3"})
    assert 12 <= cfg.defer <= 15
    own = [f"v_mfma_f32_16x16x32_bf16 {vr(vACC+4*hf)}, {vr(vVF+4*(n-12))}, {vr(vVF+32+8*(n&3)+4*hf)}, {vr(vACC+4*hf)}" for n in range(cfg.defer, 16) for hf in range(2)]
    for x in own[:2]: e(x)
    e(f"s_cmp_eq_u32 s{sLAST}, 0")
    for hf in range(2):
        for p in range(1, 4):
            e(f"ds_write_b128 v{vDEP}, {vr(vACC+8*p+4*hf)} offset:{2048*p+1024*hf}")
    for x in own[2:]: e(x)
    e("s_cbranch_scc1 L_next")
    e("s_waitcnt lgkmcnt(0)")
    e("s_barrier")
    stamp(5)
    e("L_reduce:")
    reduce_()
    e("s_cbranch_vccnz L_pubsafe")
    publish(cfg.dst)
    stamp(6)
    fin()
    e("L_pubsafe:")
    publish("sc0 sc1")
    stamp(6)
    fin()
    e("L_respec:")
    e(f"v_max_u32 v{vU}, v{vU}, v{vT}")
    e(f"v_add_u32 v{vNR}, v{vTAB}, v{vU}")
    e(f"v_add_u32 v{vTAB}, v{vTAB}, v{vT}")
    e(f"v_lshlrev_b32 v{vNR}, 12, v{vNR}")
    e(f"v_lshl_add_u32 v{vTAB}, v{vTAB}, 12, s{sH512}")
    e(f"v_lshl_or_b32 v{vCOL}, v{vU}, 16, v{vT}")
    e(f"v_cndmask_b32 v{vTAB}, 0, v{vTAB}, vcc")
    e(f"v_cndmask_b32 v{vNR}, 0, v{vNR}, vcc")
    e(f"s_and_b32 s{sFB}, s{sMK}, vcc_lo")
    e(f"s_add_u32 s{sCNT}, s{sJ1}, 15"); e(f"s_lshr_b32 s{sCNT}, s{sCNT}, 4")
    e(f"s_sub_i32 s{sCNT}, s{sCNT}, s{sT0}"); e(f"s_max_i32 s{sCNT}, s{sCNT}, 1")
    e(f"s_cmp_eq_u32 s{sSH}, 1")
    e(f"s_cselect_b32 s{sFB}, 0, s{sFB}")
    e(f"s_cmp_lg_u32 s{sFB}, 0")
    e(f"s_cselect_b32 s{sCNT}, 32, s{sCNT}")
    e(f"s_mov_b32 s{sI}, -4")
    e("L_next:")
    e(f"s_add_u32 s{sI}, s{sI}, 4")
    e(f"s_lshr_b32 s{sT2}, s{sI}, 3")
    e(f"v_cmp_eq_u32 vcc, s{sT2}, v{vF}")
    e(f"s_cmp_eq_u32 s{sFB}, 0")
    e("s_nop 3")
    e("s_cselect_b64 vcc, -1, vcc")
    e(f"v_cndmask_b32 v{vCTXE}, 0, v{vCTXG}, vcc")
    descr()
    e("s_waitcnt vmcnt(0) lgkmcnt(0)")
    e("s_nop 4")
    for u in range(cfg.dep): kblock(u)
    e("s_branch L_go")
    e("L_rescale:")
    e(f"v_sub_f32 v{vAL}, v{vM}, v{vT}")
    e(f"v_mul_f32 v{vAL}, s{sC}, v{vAL}")
    e(f"v_exp_f32 v{vAL}, v{vAL}")
    e("s_nop 1")
    for p in range(4):
        e(f"v_mov_b32_dpp v{vA+2*p}, v{vAL} row_newbcast:{p} row_mask:0x3 bank_mask:0xf")
        e(f"v_mov_b32_dpp v{vA+2*p}, v{vAL} row_newbcast:{8+p} row_mask:0xc bank_mask:0xf")
    e(f"v_mul_f32 v{vL}, v{vL}, v{vAL}")
    for p in range(4):
        for k in range(0, 8, 2):
            e(f"v_pk_mul_f32 {vr(vACC+8*p+k,2)}, {vr(vACC+8*p+k,2)}, {vr(vA+2*p,2)} op_sel_hi:[1,0]")
    e("s_branch L_rescale_ret")
    e("L_zeroctx:")
    e("s_waitcnt lgkmcnt(0)")
    e("s_mov_b64 exec, vcc")
    e(f"v_mov_b32 v{vCTXG}, 4096")
    for k in range(0, 32, 2): e(f"v_mov_b64 {vr(vQF+k,2)}, 0")
    e("s_mov_b64 exec, -1")
    e("s_nop 0")
    e("s_branch L_zeroctx_ret")

    e(".fill 64, 4, 0xbf800000")
    e('.section .rodata,"a"'); e(".p2align 6"); e(f".amdhsa_kernel {NAME}")
    e(f"  .amdhsa_next_free_vgpr {NV}"); e("  .amdhsa_next_free_sgpr 102"); e(f"  .amdhsa_accum_offset {NV}")
    e("  .amdhsa_group_segment_fixed_size 0"); e("  .amdhsa_kernarg_size 64"); e("  .amdhsa_user_sgpr_count 2")
    e("  .amdhsa_user_sgpr_kernarg_segment_ptr 1"); e("  .amdhsa_system_sgpr_workgroup_id_x 1"); e(".end_amdhsa_kernel")
    out = []
    if cfg.nostore: L = [x for x in L if not x.startswith(f"global_store_dwordx4 v{vL16},")]
    if cfg.nohelp: L = [x for x in L if not (x.startswith(f"global_store_dword v") or x.startswith(f"global_store_dwordx4 v{vGH},") or (x.startswith("global_load_dword") and "sc1" in x))]
    for x in L:
        if x.endswith(":") or x.startswith(".") or x.startswith(";") or x.startswith("  ."): out.append(x)
        else: out.append("    " + x)
    return "\n".join(out) + "\n"

if __name__ == "__main__":
    ap = argparse.ArgumentParser()
    ap.add_argument("out"); ap.add_argument("opts", nargs="*")
    a = ap.parse_args()
    cfg = Cfg()
    for o in a.opts:
        k, v = o.split("=", 1)
        assert hasattr(cfg, k), k
        setattr(cfg, k, eval(v))
    open(a.out, "w").write(gen(cfg))
```

```python
import sys, math, argparse, struct
NAME = "standalone__paged_block_table_kv_radixattention__decode_kernel"
HEADER = open("standalone__paged_block_table_kv_radixattention__decode.s.ref").read().split("; Override launch")[0]
STOK = 2048
CTX = [3663, 3230, 3821, 3388]
SLOT = 8192
HDR = 256 * SLOT
HELLO = HDR + 32768
EPO = HELLO + 1024
KVBYTES = 41943040
CF = math.log2(math.e) / 16.0
def f2u(x): return struct.unpack("<I", struct.pack("<f", x))[0]
NEG = f2u(-1e30) & ~0xff

DOC = """
Paged decode attention, one launch: 256 workgroups = 8 kv heads x 32 splits, 4 streaming waves + 1 helper wave each.
 streaming wave: owns a token range of the shared prefix (all 4 batches at once, 8 queries) or of one batch (2 queries).
   K tiles (16 tokens) go HBM -> LDS (swizzled) -> MFMA scores; all K first, then one softmax with the workgroup's true
   running max, then V straight to registers; P is expanded to a diagonal A operand so V needs no transpose.
   The first K tiles are issued for the usual table; the real block table / lengths are then checked and any
   difference (other blocks, unshared prefix, longer or shorter context) takes the general descriptor path.
 helper wave: stages q, block table, lengths; publishes (max, sum) headers; combines 1/32 of the head's output.
 hand-off through d_ws: every 8 bytes carry a tag derived from an epoch word read at entry (only to tell this launch's
   words from older ones). Stores stay in L2 only if all 32 workgroups of the head report the same XCD,
   otherwise they are written through; readers bypass L1.
"""

class Cfg:
    segs = [(-1, 33), (2, 28), (0, 26), (1, 19), (3, 22)]
    dep = 2; pfn = 12; redu = 3; lag = (0, 0); hwait = True; dskip = False; pipe = 2; pre = 3; defer = 12; jobw = 0; b3 = 0; hp2 = 3; mp2 = 0; gate = 6; tat = 2; owarm = 0; owf = ""; nostore = False; nohelp = False
    inred = True; redat = 2; tl = False; ilv = True
    dld = "sc1"; dst = ""; dwarm = None; pf = 0; pff = ""
    gran = 1
    stamps = False
    lds = 143360
    out_flags = ""
    spin = 20000
    probe = None
    pad = 0xd00
    touch = True
    l2warm = False
    hprio = 3; mprio = None
    ldnt = "nt"
    hflags = ""
    force_safe = False; hello_tries = 4; hello_sleep = 2
    earlyk = True
    nopoll = False

def partition(cfg):
    ws = []; acc = 0
    for b, nw in cfg.segs:
        n = STOK if b < 0 else CTX[b] - STOK
        M = -(-65536 * n // nw)
        assert (nw * M) >> 16 == n and nw * M < 2**32
        assert (M >> 16) >= 33 and (M >> 16) + 1 + 15 <= 8 * 16
        ws.append((b, acc, nw, M)); acc += nw
    assert acc == 128
    seg_of_wave = []
    for b, st, nw, M in ws: seg_of_wave += [b] * nw
    return ws, seg_of_wave

sWAVE = 3
sQ, sK, sV, sBT, sCTX, sOUT, sDBG, sWS = 4, 6, 8, 10, 12, 14, 16, 18
sKSRD, sVSRD = 20, 24
sPC = 28; sTAG = 30; sFF = 31
sH, sSPL, sB, sJ0, sJ1, sSH = 32, 33, 34, 35, 36, 37
sSOFF, sM0A, sM0B, sCNT, sI, sINX, sCOL, sH512 = 38, 39, 40, 41, 42, 43, 44, 45
sC, sT0, sT1, sT2, sT3, sSPEC, sFB = 46, 47, 48, 49, 50, 51, 56
sLM = 52; sONE = 54; sCM = 57; sSLOT = 58; sMK = 60; sT8 = 68; sSPEC1 = 69; sEX = 76; sHB = 84; sST = 86

vLANE, vN, vG = 1, 2, 3
vKOFF = 4; vVOFF = 12; vKRD = 16; vMSK = 20
vTAB, vCOL, vCTXG, vM, vL, vLIM, vT, vU, vAL, vNMC, vF, vL16 = 24, 25, 26, 27, 28, 29, 30, 31, 32, 33, 34, 35
vHG = 36; vNINF = 40; vHA = 41; vHC = 42; vHR = 43; vGH = 44; vDEP = 45; vW = 46; vA = 48; vKF = 64; vVF = 96
vQF = 160; vACC = 192; vS = 224; vRA = 240; vFA = 244; vNR = 245; vG4 = 246; vPF = 247; vCTXE = 248; vJUNK = 249
NV = 256
sPFX = 70; sPAIR = 72; sROLE = 73; sOWN = 74
sSO = 76; sNRS = 80; sTT = 28
TT = [28, 29, 30, 69]
sLAST = 40
MISC = 131072
LDS_Q = MISC; LDS_T = MISC + 4096; LDS_C = MISC + 8192; LDS_H = MISC + 8448; LDS_F = MISC + 8704; LDS_Z = MISC + 8768

def vr(b, n=4): return f"v[{b}:{b+n-1}]"
def sr(b, n=2): return f"s[{b}:{b+n-1}]"

def gen(cfg):
    L = []
    e = L.append
    ws, seg_of_wave = partition(cfg)
    dbg = cfg.stamps or cfg.probe
    def stamp(k):
        if cfg.stamps or (cfg.probe and k in (0, cfg.probe[0])): e(f"s_memrealtime {sr(sST+2*k)}")
    cms = []
    for s in range(32):
        m = 0
        for w in range(4):
            sg = seg_of_wave[4 * s + w]
            for p in range(4):
                if sg < 0 or sg == p: m |= 1 << (4 * p + w)
        cms.append(m)
    wds = []
    for s_ in range(32):
        segs4 = seg_of_wave[4 * s_:4 * s_ + 4]
        x = 0
        for w in range(4):
            if min(segs4) >= 0:
                ps = sorted(set(segs4)); assert len(ps) <= 2
                jobs = [(p, hf) for p in ps for hf in range(2)]
                jw = w if len(ps) == 2 else w - cfg.jobw
                if 0 <= jw < len(jobs):
                    p, hf = jobs[jw]
                    m = 16 | (p << 5) | (hf << 7) | sum(1 << j for j in range(4) if segs4[(w + j) & 3] == p)
                else: m = 0
            else:
                m = (w << 5) | sum(1 << j for j in range(4) if segs4[(w + j) & 3] in (-1, w))
            x |= m << (8 * w)
        wds.append(x)
    def kblock(u, preset=False):
        if not preset:
            e(f"s_add_u32 m0, s{sM0A}, {8192*u}")
            e(f"s_mov_b32 s{sKSRD+2}, s{sNRS+u}")
        for j in range(8):
            if j == 4:
                e(f"s_bitset1_b32 m0, 12"); e("s_nop 0")
            e(f"buffer_load_dwordx4 v{vKOFF+j}, {sr(sKSRD,4)}, s{sSO+u} offen offset:{(j&3)*1024} {cfg.ldnt} lds")
    def vload(u, r, hf):
        e(f"buffer_load_dwordx4 {vr(vVF+32*(u&1)+8*r+4*hf)}, v{vVOFF+r}, {sr(sVSRD,4)}, s{sSO+u} offen offset:{256*hf} {cfg.ldnt}")
    def vblock(u):
        e(f"s_mov_b32 s{sVSRD+2}, s{sNRS+u}")
        for r in range(4):
            vload(u, r, 0); vload(u, r, 1)
    def block(n):
        if n < 4: kblock(n)
        elif n < 6: vblock(n - 4)
    def descr():
        for u in range(4):
            if u: e(f"s_add_u32 s{sT2}, s{sI}, {u}")
            ix = sT2 if u else sI
            e(f"v_readlane_b32 s{sSO+u}, v{vTAB}, s{ix}")
            e(f"v_readlane_b32 s{sNRS+u}, v{vNR}, s{ix}")
            e(f"v_readlane_b32 s{TT[u]}, v{vCOL}, s{ix}")
        e(f"s_add_u32 s{sT2}, s{sI}, 4")
        e(f"s_cmp_ge_u32 s{sT2}, s{sCNT}")
        e(f"s_cselect_b32 s{sLAST}, 1, 0")
    def stub(name):
        e(f"T_{name}:"); e("s_branch " + ("L_htouch_ret" if name == "pr0" else "L_touch_ret"))

    e(HEADER.rstrip())
    e(f"; @launch grid=(256,1,1) block=(320,1,1) lds={cfg.lds}")
    for x in DOC.strip("\n").split("\n"): e(("; " + x).rstrip())
    e('.amdgcn_target "amdgcn-amd-amdhsa--gfx950"')
    e(".text"); e(f".globl {NAME}")
    if cfg.pad:
        e(".p2align 12"); e(f".fill {cfg.pad//4}, 4, 0xbf810000")
    e(".p2align 8"); e(f".type {NAME},@function"); e(f"{NAME}:")
    stamp(0)
    e(f"s_load_dwordx16 s[4:19], s[0:1], 0")
    e("s_cmp_ge_u32 s2, 256"); e("s_cbranch_scc1 L_end0")
    e(f"v_lshrrev_b32 v{vT}, 6, v0")
    e(f"v_and_b32 v{vLANE}, 63, v0")
    e(f"v_readfirstlane_b32 s{sWAVE}, v{vT}")
    e(f"s_and_b32 s{sH}, s2, 7"); e(f"s_lshr_b32 s{sSPL}, s2, 3")
    e(f"v_lshrrev_b32 v{vT}, 5, v{vLANE}")
    e(f"s_sub_u32 s{sWAVE}, s{sWAVE}, 1")
    e("s_cbranch_scc0 L_main")
    e(f"s_setprio {cfg.hprio}")
    e(f"v_lshlrev_b32 v{vT}, 1, v{vT}")
    e(f"v_xor_b32 v{vT}, v{vT}, v{vLANE}")
    e(f"s_lshl_b32 s{sT2}, s{sH}, 10")
    e(f"v_lshl_add_u32 v{vA}, v{vT}, 4, s{sT2}")
    for b in range(1, 4):
        e(f"v_xor_b32 v{vA+b}, {64*b}, v{vA}")
        e(f"v_add_u32 v{vA+b}, {8192*b-1024*b}, v{vA+b}")
    e(f"v_lshlrev_b32 v{vL16}, 4, v{vLANE}")
    e(f"v_and_b32 v{vU}, 3, v{vLANE}"); e(f"v_lshlrev_b32 v{vU}, 2, v{vU}")
    e(f"s_lshl_b32 s{sT3}, s{sH}, 7"); e(f"s_add_u32 s{sT3}, s{sT3}, {EPO}")
    e(f"s_mov_b32 m0, {LDS_Q}")
    e("s_waitcnt lgkmcnt(0)")
    stamp(1)
    for b in range(4):
        e(f"global_load_lds_dwordx4 v{vA+b}, {sr(sQ)} offset:{1024*b} {cfg.hflags}")
    e(f"s_mov_b32 m0, {LDS_T}")
    e(f"s_load_dword s{sTAG}, {sr(sWS)}, s{sT3}")
    for b in range(4):
        e(f"global_load_lds_dwordx4 v{vL16}, {sr(sBT)} offset:{1024*b} {cfg.hflags}")
    e(f"s_mov_b32 m0, {LDS_C}"); e("s_nop 0")
    e(f"global_load_lds_dword v{vU}, {sr(sCTX)} {cfg.hflags}")
    e("s_branch L_helper")
    e("L_end0:"); e("s_endpgm")
    e("L_main:")
    e(f"s_load_dwordx2 {sr(sKSRD)}, s[0:1], 8")
    e(f"s_lshl_b32 s{sT0}, s{sSPL}, 2"); e(f"s_add_u32 s{sT0}, s{sT0}, s{sWAVE}")
    cc = lambda b, st, M: ((((b + 1) * STOK) << 16) - st * M) % 2**32
    b, st, nw, M = ws[0]
    e(f"s_mov_b32 s{sT3}, {cc(b, st, M):#x}"); e(f"s_mov_b32 s{sT2}, {M}")
    for b, st, nw, M in ws[1:]:
        e(f"s_cmp_ge_u32 s{sT0}, {st}")
        e(f"s_cselect_b32 s{sT3}, {cc(b, st, M):#x}, s{sT3}")
        e(f"s_cselect_b32 s{sT2}, {M}, s{sT2}")
    e(f"s_mul_i32 s{sJ0}, s{sT0}, s{sT2}")
    e(f"v_and_b32 v{vU}, 31, v{vLANE}")
    e(f"s_add_u32 s{sJ0}, s{sJ0}, s{sT3}")
    e(f"v_xor_b32 v{vU}, v{vU}, v{vT}")
    e(f"s_lshr_b32 s{sT3}, s{sJ0}, 16")
    e(f"v_lshlrev_b32 v{vU}, 4, v{vU}")
    e(f"s_lshl_b32 s{sT3}, s{sT3}, 12")
    e(f"v_lshl_or_b32 v{vKOFF}, v{vT}, 12, v{vU}")
    e(f"s_lshl_b32 s{sH512}, s{sH}, 9")
    e(f"s_add_u32 s{sSO}, s{sT3}, s{sH512}")
    e(f"s_add_u32 s{sKSRD+2}, s{sT3}, {0x10000*cfg.dep}")
    e(f"s_mov_b32 s{sKSRD+3}, 0x20000")
    e(f"s_lshl_b32 s{sM0A}, s{sWAVE}, 15")
    e(f"s_mov_b32 m0, s{sM0A}")
    def koff(j):
        e(f"v_xor_b32 v{vKOFF+j}, {32*j}, v{vKOFF}")
        e(f"v_add_u32 v{vKOFF+j}, {8192*j - (j&3)*1024}, v{vKOFF+j}")
    for j in range(1, cfg.pre + 1): koff(j)
    e("s_waitcnt lgkmcnt(0)")
    stamp(1)
    for j in range(8):
        if j == 4: e(f"s_bitset1_b32 m0, 12")
        if j > cfg.pre: koff(j)
        elif j == 4: e("s_nop 0")
        e(f"buffer_load_dwordx4 v{vKOFF+j}, {sr(sKSRD,4)}, s{sSO} offen offset:{(j&3)*1024} {cfg.ldnt} lds")
    for u in range(1, cfg.dep):
        e(f"s_add_u32 s{sSO+u}, s{sSO}, {0x10000*u}"); e(f"s_mov_b32 s{sNRS+u}, s{sKSRD+2}")
        kblock(u)
    def pack(b, st, nw): return ((st + nw - 1) << 8) | ((max(b, 0)) << 16) | ((0 if b < 0 else 1) << 24)
    b, st, nw, M = ws[0]
    e(f"s_mov_b32 s{sT1}, {pack(b, st, nw)}")
    for b, st, nw, M in ws[1:]:
        e(f"s_cmp_ge_u32 s{sT0}, {st}")
        e(f"s_cselect_b32 s{sT1}, {pack(b, st, nw)}, s{sT1}")
    e(f"s_add_u32 s{sJ1}, s{sJ0}, s{sT2}")
    e(f"s_bfe_u32 s{sB}, s{sT1}, 0x80010")
    e(f"s_lshr_b32 s{sSH}, s{sT1}, 24")
    def touches():
        if cfg.touch:
            nshwg = -(-cfg.segs[0][1] // 4)
            e(f"s_cmp_ge_u32 s{sSPL}, {nshwg}"); e(f"s_cselect_b32 s{sT2}, 4, 0"); e(f"s_add_u32 s{sT2}, s{sT2}, s{sWAVE}")
            for k, nm in ((0, "sh0"), (1, "sh1"), (2, "sh2"), (3, "sh3"), (4, "pr1")):
                e(f"s_cmp_le_u32 s{sT2}, {k}"); e(f"s_cbranch_scc1 T_{nm}")
        e("L_touch_ret:")
    if cfg.tat < 0: touches()
    e(f"s_mov_b32 s{sVSRD}, s{sV}"); e(f"s_mov_b32 s{sVSRD+1}, s{sV+1}"); e(f"s_mov_b32 s{sVSRD+3}, 0x20000")
    e(f"v_and_b32 v{vN}, 15, v{vLANE}"); e(f"v_lshrrev_b32 v{vG}, 4, v{vLANE}")
    e(f"v_lshlrev_b32 v{vVOFF}, 4, v{vN}"); e(f"v_lshl_or_b32 v{vVOFF}, v{vG}, 14, v{vVOFF}")
    for r in range(1, 4): e(f"v_add_u32 v{vVOFF+r}, {4096*r}, v{vVOFF}")
    e(f"s_lshr_b32 s{sJ0}, s{sJ0}, 16"); e(f"s_lshr_b32 s{sJ1}, s{sJ1}, 16")
    e(f"s_lshl_b32 s{sT2}, s{sB}, 11")
    e(f"s_sub_u32 s{sJ0}, s{sJ0}, s{sT2}"); e(f"s_sub_u32 s{sJ1}, s{sJ1}, s{sT2}")
    e(f"s_bfe_u32 s{sT2}, s{sT1}, 0x80008")
    e(f"s_cmp_eq_u32 s{sT2}, s{sT0}")
    e(f"s_cselect_b32 s{sT2}, s{sSH}, 0")
    e(f"s_cmp_eq_u32 s{sT2}, 1")
    e(f"s_cselect_b32 s{sJ1}, 4096, s{sJ1}")
    e(f"s_cmp_eq_u32 s{sSH}, 0")
    e(f"s_cselect_b32 s{sT2}, 3, 0")
    e(f"s_cselect_b32 s{sT3}, 7, 63")
    e(f"s_lshr_b32 s{sT0}, s{sJ0}, 4")
    e(f"v_and_b32 v{vCOL}, s{sT3}, v{vLANE}")
    e(f"v_add_u32 v{vCOL}, s{sT0}, v{vCOL}")
    e(f"v_lshrrev_b32 v{vT}, 3, v{vLANE}")
    e(f"v_and_b32 v{vT}, s{sT2}, v{vT}")
    e(f"v_or_b32 v{vT}, s{sB}, v{vT}")
    e(f"v_min_u32 v{vU}, 255, v{vCOL}")
    e(f"v_lshlrev_b32 v{vNR}, 2, v{vU}")
    e(f"v_add_u32 v{vNR}, {MISC}, v{vNR}")
    e(f"v_lshl_add_u32 v{vTAB}, v{vT}, 10, v{vNR}")
    e(f"v_lshlrev_b32 v{vCOL}, 4, v{vCOL}")
    e(f"v_add_u32 v{vF}, s{sWAVE}, v{vLANE}")
    e(f"v_and_b32 v{vF}, s{sT2}, v{vF}")
    e(f"v_or_b32 v{vF}, s{sB}, v{vF}")
    e(f"v_lshlrev_b32 v{vCTXG}, 2, v{vF}")
    e(f"v_add_u32 v{vCTXG}, {MISC}, v{vCTXG}")
    e(f"s_mov_b32 s{sCM}, {wds[0]:#x}")
    for s in range(1, 32):
        if wds[s] != wds[s - 1]:
            e(f"s_cmp_ge_u32 s{sSPL}, {s}"); e(f"s_cselect_b32 s{sCM}, {wds[s]:#x}, s{sCM}")
    e(f"s_lshl_b32 s{sT2}, s{sWAVE}, 3")
    e(f"s_lshr_b32 s{sCM}, s{sCM}, s{sT2}")
    e(f"s_bfe_u32 s{sROLE}, s{sCM}, 0x10004")
    e(f"s_bfe_u32 s{sPAIR}, s{sCM}, 0x20005")
    e(f"s_bfe_u32 s{sINX}, s{sCM}, 0x10007"); e(f"s_lshl_b32 s{sINX}, s{sINX}, 10")
    e(f"s_and_b32 s{sCM}, s{sCM}, 15")
    e(f"s_lshl_b32 s{sT2}, s{sH}, 5"); e(f"s_add_u32 s{sT2}, s{sT2}, s{sSPL}"); e(f"s_lshl_b32 s{sT2}, s{sT2}, 13")
    e(f"s_add_u32 s{sSLOT}, s{sWS}, s{sT2}"); e(f"s_addc_u32 s{sSLOT+1}, s{sWS+1}, 0")
    e(f"s_lshl_b32 s{sT2}, s{sPAIR}, 11"); e(f"s_add_u32 s{sT2}, s{sT2}, s{sINX}")
    e(f"v_lshl_add_u32 v{vL16}, v{vLANE}, 4, s{sT2}")
    e(f"v_lshl_add_u32 v{vPF}, v{vN}, 7, s{sT2}")
    e(f"s_mov_b32 s{sC}, {f2u(CF):#x}")
    e(f"s_mov_b32 s{sI}, 0")
    e(f"v_mov_b32 v{vNINF}, 0xff800000")
    e(f"v_mov_b32 v{vM}, {NEG:#x}"); e(f"v_mov_b32 v{vL}, 0")
    e(f"v_lshlrev_b32 v{vT}, 9, v{vN}"); e(f"v_add_u32 v{vT}, s{sM0A}, v{vT}")
    e(f"v_xor_b32 v{vU}, v{vG}, v{vN}")
    for k in range(4):
        e(f"v_xor_b32 v{vKRD+k}, {4*k}, v{vU}")
        e(f"v_lshl_add_u32 v{vKRD+k}, v{vKRD+k}, 4, v{vT}")
    e(f"v_and_b32 v{vT}, 1, v{vLANE}"); e(f"v_lshlrev_b32 v{vT}, 4, v{vT}")
    e(f"v_mov_b32 v{vU}, 0xffff"); e(f"v_lshlrev_b32 v{vT}, v{vT}, v{vU}")
    e(f"v_bfe_u32 v{vU}, v{vLANE}, 1, 2")
    for k in range(4):
        e(f"v_cmp_eq_u32 {sr(sMK+2*k)}, {k}, v{vU}")
    for k in range(0, 32, 2): e(f"v_mov_b64 {vr(vACC+k,2)}, 0")
    for k in range(4):
        e(f"v_cndmask_b32 v{vMSK+k}, 0, v{vT}, {sr(sMK+2*k)}")
    e(f"v_mov_b32 v{vT}, {LDS_Z}")
    e(f"ds_write_b128 v{vT}, {vr(vACC)}"); e(f"ds_write_b128 v{vT}, {vr(vACC)} offset:1024")
    e(f"v_lshlrev_b32 v{vLIM}, 4, v{vLANE}")
    for w in range(4):
        e(f"s_add_u32 s{sT2}, s{sWAVE}, {w}"); e(f"s_and_b32 s{sT2}, s{sT2}, 3")
        e(f"s_sub_u32 s{sT3}, s{sPAIR}, s{sT2}"); e(f"s_and_b32 s{sT3}, s{sT3}, 3")
        e(f"s_lshl_b32 s{sT2}, s{sT2}, 4"); e(f"s_add_u32 s{sT2}, s{sT2}, s{sT3}"); e(f"s_lshl_b32 s{sT2}, s{sT2}, 11")
        e(f"s_add_u32 s{sT2}, s{sT2}, s{sINX}")
        e(f"s_bitcmp1_b32 s{sCM}, {w}"); e(f"s_cselect_b64 vcc, -1, 0")
        e(f"v_add_u32 v{vU}, s{sT2}, v{vLIM}")
        e(f"v_cndmask_b32 v{vRA+w}, v{vT}, v{vU}, vcc")
    e(f"s_sub_u32 s{sT2}, s{sB}, s{sWAVE}"); e(f"s_and_b32 s{sT2}, s{sT2}, 3"); e(f"s_mul_i32 s{sT2}, s{sT2}, s{sSH}")
    e(f"s_lshl_b32 s{sT2}, s{sT2}, 11"); e(f"s_add_u32 s{sT2}, s{sT2}, s{sM0A}")
    e(f"v_add_u32 v{vDEP}, s{sT2}, v{vLIM}")
    e(f"v_mov_b32 v{vFA}, {LDS_F}")
    e(f"s_mov_b32 s{sFF}, 0xff")
    e(f"v_lshlrev_b32 v{vG4}, 2, v{vG}")
    e(f"s_cmp_eq_u32 s{sROLE}, 1")
    e(f"s_cselect_b64 {sr(sPFX)}, 0xff, 0xffff".replace("0xff, 0xffff", "0xff, -1"))
    e(f"s_and_b64 {sr(sPFX)}, {sr(sPFX)}, 0xffff")
    e(f"s_cmp_eq_u32 s{sCM}, 0")
    e(f"s_cselect_b64 {sr(sPFX)}, 1, {sr(sPFX)}")
    e(f"s_sub_u32 s{sT2}, 1, s{sSH}"); e(f"s_mul_i32 s{sT2}, s{sT2}, s{sWAVE}")
    e(f"v_add_u32 v{vT}, s{sT2}, v{vN}"); e(f"v_and_b32 v{vT}, 3, v{vT}")
    e(f"v_cmp_eq_u32 {sr(sOWN)}, v{vT}, v{vF}")
    e(f"v_lshrrev_b32 v{vU}, 3, v{vN}")
    e(f"v_lshl_add_u32 v{vT}, v{vT}, 1, v{vU}")
    e(f"s_lshl_b32 s{sT2}, s{sWAVE}, 2"); e(f"s_add_u32 s{sT2}, s{sT2}, {LDS_H}")
    e(f"v_lshl_add_u32 v{vHA}, v{vT}, 4, s{sT2}")
    e(f"v_lshl_add_u32 v{vT}, v{vF}, 1, v{vU}")
    e(f"v_lshlrev_b32 v{vHC}, 4, v{vT}"); e(f"v_add_u32 v{vHC}, {LDS_H}, v{vHC}")
    e(f"v_lshlrev_b32 v{vU}, 1, v{vT}"); e(f"v_xor_b32 v{vU}, v{vU}, v{vG}")
    e(f"v_lshlrev_b32 v{vT}, 9, v{vT}"); e(f"v_add_u32 v{vT}, {MISC}, v{vT}")
    for k in range(4):
        e(f"v_xor_b32 v{vA+4+k}, {4*k}, v{vU}")
        e(f"v_lshl_add_u32 v{vA+4+k}, v{vA+4+k}, 4, v{vT}")
    e("s_barrier")
    stamp(3)
    e(f"ds_read_b32 v{vTAB}, v{vTAB} offset:{LDS_T-MISC}")
    e(f"ds_read_b32 v{vNR}, v{vNR} offset:{LDS_T-MISC}")
    e(f"ds_read_b32 v{vCTXG}, v{vCTXG} offset:{LDS_C-MISC}")
    for i in range(8):
        e(f"ds_read_b128 {vr(vQF+4*i)}, v{vA+4+(i&3)} offset:{LDS_Q-MISC+256*(i>>2)}")
    e(f"v_max_u32 v{vT}, s{sJ0}, v{vCOL}")
    e(f"v_add_u32 v{vU}, 16, v{vCOL}")
    e("s_waitcnt lgkmcnt(8)")
    e(f"v_cmp_gt_i32 vcc, 1, v{vCTXG}")
    e(f"v_min_i32 v{vCTXG}, 4096, v{vCTXG}")
    e(f"v_cmp_ne_u32 {sr(sMK)}, v{vTAB}, v{vNR}")
    e("s_cbranch_vccnz L_zeroctx")
    e("L_zeroctx_ret:")
    e(f"v_readfirstlane_b32 s{sT1}, v{vCTXG}")
    e(f"v_min_u32 v{vTAB}, 639, v{vTAB}")
    e(f"v_lshlrev_b32 v{vTAB}, 4, v{vTAB}")
    e(f"v_sub_u32 v{vTAB}, v{vTAB}, v{vCOL}")
    e(f"s_cmp_eq_u32 s{sSH}, 0")
    e(f"s_cselect_b32 s{sT1}, 4096, s{sT1}")
    e(f"s_min_u32 s{sJ1}, s{sJ1}, s{sT1}")
    e(f"v_min_u32 v{vU}, s{sJ1}, v{vU}")
    e(f"s_lshl_b32 s{sT2}, s{sB}, 11")
    e(f"v_cmp_lt_u32 vcc, v{vT}, v{vU}")
    e(f"v_cmp_ne_u32 {sr(sMK+2)}, s{sT2}, v{vTAB}")
    e(f"s_sub_i32 s{sCNT}, s{sJ1}, s{sJ0}")
    e(f"s_cmp_lt_i32 s{sCNT}, 1")
    e("s_cbranch_scc1 L_respec")
    e(f"s_and_b64 {sr(sMK+2)}, {sr(sMK+2)}, vcc")
    e("s_cbranch_scc1 L_respec")
    e(f"v_lshl_add_u32 v{vT}, v{vLANE}, 4, s{sJ0}")
    e(f"s_add_u32 s{sCNT}, s{sCNT}, 15"); e(f"s_lshr_b32 s{sCNT}, s{sCNT}, 4")
    e(f"v_add_u32 v{vU}, 16, v{vT}")
    e(f"v_min_u32 v{vU}, s{sJ1}, v{vU}")
    e(f"v_add_u32 v{vTAB}, s{sT2}, v{vT}")
    e(f"v_add_u32 v{vNR}, s{sT2}, v{vU}")
    e(f"v_lshl_or_b32 v{vCOL}, v{vU}, 16, v{vT}")
    e(f"v_cmp_lt_u32 vcc, v{vT}, v{vU}")
    e(f"v_lshl_add_u32 v{vTAB}, v{vTAB}, 12, s{sH512}")
    e(f"v_lshlrev_b32 v{vNR}, 12, v{vNR}")
    e(f"v_cndmask_b32 v{vTAB}, 0, v{vTAB}, vcc")
    e(f"v_cndmask_b32 v{vNR}, 0, v{vNR}, vcc")
    e(f"s_mov_b32 s{sFB}, 0")
    e(f"v_mov_b32 v{vCTXE}, v{vCTXG}")
    descr()
    e("s_waitcnt lgkmcnt(0)")
    e("L_go:")
    def mask(u):
        e(f"s_lshr_b32 s{sT3}, s{TT[u]}, 16"); e(f"s_and_b32 s{sT2}, s{TT[u]}, 0xffff")
        e(f"v_min_u32 v{vLIM}, s{sT3}, v{vCTXE}")
        e(f"v_subrev_u32 v{vLIM}, s{sT2}, v{vLIM}")
        e(f"v_sub_u32 v{vLIM}, v{vLIM}, v{vG4}")
        for r in range(4): e(f"v_cmp_lt_i32 {sr(sMK+2*r)}, {r}, v{vLIM}")
        for r in range(4): e(f"v_cndmask_b32 v{vS+4*u+r}, v{vNINF}, v{vS+4*u+r}, {sr(sMK+2*r)}")
    for u in range(4):
        e(f"s_waitcnt vmcnt({8*(min(u+cfg.dep,6)-u-1)})")
        if u == 0: stamp(2)
        for i in range(8):
            e(f"ds_read_b128 {vr(vKF+4*i)}, v{vKRD+(i&3)} offset:{8192*u+256*(i>>2)}")
        block(u + cfg.dep)
        if u: mask(u - 1)
        for i in range(8):
            e(f"s_waitcnt lgkmcnt({7-i})")
            e(f"v_mfma_f32_16x16x32_bf16 {vr(vS+4*u)}, {vr(vKF+4*i)}, {vr(vQF+4*i)}, " + ("0" if i == 0 else vr(vS+4*u)))
        if u == cfg.tat: touches()
    e(f"v_max3_f32 v{vT}, v{vS}, v{vS+1}, v{vM}")
    for k in range(2, 12, 2): e(f"v_max3_f32 v{vT}, v{vS+k}, v{vS+k+1}, v{vT}")
    mask(3)
    for k in range(12, 16, 2): e(f"v_max3_f32 v{vT}, v{vS+k}, v{vS+k+1}, v{vT}")
    def cross(op, reg):
        for sw in ("v_permlane32_swap_b32", "v_permlane16_swap_b32"):
            e(f"v_mov_b32 v{vU}, v{reg}"); e("s_nop 1")
            e(f"{sw} v{reg}, v{vU}"); e("s_nop 0")
            e(f"{op} v{reg}, v{reg}, v{vU}")
    cross("v_max_f32", vT)
    e(f"s_cmp_eq_u32 s{sLAST}, 0"); e("s_cbranch_scc1 L_nox")
    e(f"v_mov_b32 v{vU}, {NEG:#x}")
    e(f"v_cndmask_b32 v{vU}, v{vU}, v{vT}, {sr(sOWN)}")
    e(f"ds_write_b32 v{vHA}, v{vU}")
    e("s_waitcnt lgkmcnt(0)")
    e("s_barrier")
    e(f"ds_read_b128 {vr(vA)}, v{vHC}")
    e("s_waitcnt lgkmcnt(0)")
    e(f"v_max3_f32 v{vT}, v{vA}, v{vA+1}, v{vA+2}")
    e(f"v_max_f32 v{vT}, v{vT}, v{vA+3}")
    e("s_branch L_nox")
    e(".p2align 12")
    stub("pr0")
    e("L_nox:")
    e(f"s_cmp_lg_u32 s{sI}, 0"); e("s_cbranch_scc1 L_rescale")
    e("L_rescale_ret:")
    e(f"v_mul_f32 v{vNMC}, s{sC}, v{vT}")
    e(f"v_mov_b32 v{vM}, v{vT}")
    for k in range(16): e(f"v_fma_f32 v{vS+k}, v{vS+k}, s{sC}, -v{vNMC}")
    for k in range(16): e(f"v_exp_f32 v{vS+k}, v{vS+k}")
    e(f"v_pk_add_f32 {vr(vA,2)}, {vr(vS,2)}, {vr(vS+2,2)}")
    for k in range(4, 16, 2): e(f"v_pk_add_f32 {vr(vA,2)}, {vr(vA,2)}, {vr(vS+k,2)}")
    for k in range(16): e(f"v_cvt_pk_bf16_f32 v{vS+k}, v{vS+k}, v{vS+k}")
    e(f"v_add_f32 v{vL}, v{vL}, v{vA}")
    e(f"v_add_f32 v{vL}, v{vL}, v{vA+1}")
    e(f"v_mov_b32 v{vT}, v{vL}")
    cross("v_add_f32", vT)
    e(f"v_cndmask_b32 v{vT}, 0, v{vT}, {sr(sOWN)}")
    e(f"ds_write_b32 v{vHA}, v{vT} offset:128")
    e(f"s_cmp_eq_u32 s{sLAST}, 0"); e("s_cbranch_scc1 L_nol")
    e("s_waitcnt lgkmcnt(0)")
    e("s_barrier")
    e("L_nol:")
    if cfg.mp2: e(f"s_setprio {cfg.mp2}")
    e(f"s_cmp_eq_u32 s{sSH}, 0")
    e("s_cbranch_scc1 L_sh_v")

    RD = vKF
    def reduce_():
        e(f"ds_read_b64 {vr(vW,2)}, v{vFA}")
        for w in range(1, 4):
            e(f"ds_read_b128 {vr(RD+8*w)}, v{vRA+w}")
            e(f"ds_read_b128 {vr(RD+8*w+4)}, v{vRA+w} offset:1024")
        e("s_waitcnt lgkmcnt(6)")
        e(f"v_cmp_eq_u32 vcc, 0, v{vW+1}")
        for w in range(1, 4):
            for hf in range(2):
                e(f"s_waitcnt lgkmcnt({7-2*w-hf})")
                for k in range(4*hf, 4*hf+4, 2): e(f"v_pk_add_f32 {vr(vACC+k,2)}, {vr(vACC+k,2)}, {vr(RD+8*w+k,2)}")
    def publish(fl):
        for k in range(0, 4, 2): e(f"v_bfi_b32 v{vACC+k}, s{sFF}, v{vW}, v{vACC+k}")
        e(f"global_store_dwordx4 v{vL16}, {vr(vACC)}, {sr(sSLOT)} {fl}")
        for k in range(4, 8, 2): e(f"v_bfi_b32 v{vACC+k}, s{sFF}, v{vW}, v{vACC+k}")
        e(f"global_store_dwordx4 v{vL16}, {vr(vACC+4)}, {sr(sSLOT)} offset:1024 {fl}")
    def fin():
        if cfg.b3 == 1 and dbg: e("s_barrier")
        if dbg: e("s_branch L_fin")
        else: e("s_endpgm")

    def vphase(tag, pairs, stubs):
        shared = len(pairs) > 1
        ab = lambda n: (vA if n % 2 == 0 else vKF) if shared else vA + 4 * (n & 1)
        def areg(n, p):
            return vVF + 4 * (n - 12) if shared and p == 0 and n >= cfg.defer else ab(n) + 4 * p
        def andop(n, p, k):
            if shared: e(f"v_and_b32_dpp v{areg(n,p)+k}, v{vS+n}, v{vMSK+k} quad_perm:[{p},{p},{p},{p}] row_mask:0xf bank_mask:0xf")
            else: e(f"v_and_b32 v{ab(n)+k}, v{vS+n}, v{vMSK+k}")
        e(f"L_{tag}_v:")
        for p in pairs:
            for k in range(4): andop(0, p, k)
        lag = cfg.lag[1 if shared else 0]
        q = list(range(8))
        for u in range(4):
            if u in stubs:
                e(f"s_branch L_{tag}_u{u}"); stub(stubs[u]); e(f"L_{tag}_u{u}:")
            for r in range(4):
                n = 4 * u + r
                if n == cfg.pfn:
                    e(f"s_mov_b64 exec, {sr(sPFX)}")
                    e(f"global_load_dword v{vJUNK}, v{vPF}, {sr(sSLOT)} {cfg.pff}")
                    e("s_mov_b64 exec, -1")
                    q.append("p")
                isred = False
                if isred:
                    e(f"s_cmp_eq_u32 s{sT0}, 0"); e("s_cbranch_scc1 L_nored")
                    e("s_waitcnt lgkmcnt(0)")
                    e("s_barrier")
                    stamp(5)
                    reduce_()
                    e("L_nored:")
                e(f"s_waitcnt vmcnt({sum(1 if x == 'p' else 2 for x in q[q.index(n)+1:])})")
                if n == 0 or isred: e("s_nop 0")
                todo = [(p, k) for p in pairs for k in range(4)] if n < 15 else []
                order = [(hf, p) for hf in range(2) for p in pairs]
                if shared and n >= cfg.defer: order = [x for x in order if x[1]]
                if shared and n + 1 >= cfg.defer: todo = todo[4:] + todo[:4]
                per = -(-len(todo) // len(order))
                for hf, p in order:
                    e(f"v_mfma_f32_16x16x32_bf16 {vr(vACC+8*p+4*hf)}, {vr(areg(n,p))}, {vr(vVF+32*(u&1)+8*r+4*hf)}, {vr(vACC+8*p+4*hf)}")
                    for pk in todo[:per]: andop(n + 1, *pk)
                    todo = todo[per:]
                m = n + 8 - lag
                if 8 <= m < 16:
                    if m % 4 == 0: e(f"s_mov_b32 s{sVSRD+2}, s{sNRS+(m>>2)}")
                    vload(m >> 2, m & 3, 0); vload(m >> 2, m & 3, 1)
                    q.append(m)
                elif n < 15 and not shared: e("s_nop 0")
        stamp(4)

    vphase("pr", [0], {2: "pr1"})
    e(f"s_cmp_eq_u32 s{sLAST}, 0"); e("s_cbranch_scc1 L_next")
    e(f"s_cmp_eq_u32 s{sROLE}, 0")
    e("s_nop 3")
    e(f"ds_write_b128 v{vDEP}, {vr(vACC)}")
    e(f"ds_write_b128 v{vDEP}, {vr(vACC+4)} offset:1024")
    e("s_waitcnt lgkmcnt(0)")
    e("s_barrier")
    stamp(5)
    e("s_cbranch_scc1 L_pr_old")
    for w in range(4): e(f"ds_read_b128 {vr(vKF+4*w)}, v{vRA+w}")
    e(f"ds_read_b64 {vr(vW,2)}, v{vFA}")
    e("s_waitcnt lgkmcnt(3)")
    for k in (0, 2): e(f"v_pk_add_f32 {vr(vKF+k,2)}, {vr(vKF+k,2)}, {vr(vKF+4+k,2)}")
    e("s_waitcnt lgkmcnt(0)")
    e(f"v_cmp_eq_u32 vcc, 0, v{vW+1}")
    for k in (0, 2): e(f"v_pk_add_f32 {vr(vKF+8+k,2)}, {vr(vKF+8+k,2)}, {vr(vKF+12+k,2)}")
    for k in (0, 2): e(f"v_pk_add_f32 {vr(vKF+k,2)}, {vr(vKF+k,2)}, {vr(vKF+8+k,2)}")
    for k in (0, 2): e(f"v_bfi_b32 v{vKF+k}, s{sFF}, v{vW}, v{vKF+k}")
    e("s_cbranch_vccnz L_pr_safe")
    e(f"global_store_dwordx4 v{vL16}, {vr(vKF)}, {sr(sSLOT)} {cfg.dst}")
    stamp(6)
    fin()
    e("L_pr_safe:")
    e(f"global_store_dwordx4 v{vL16}, {vr(vKF)}, {sr(sSLOT)} sc0 sc1")
    stamp(6)
    e("L_fin2:")
    fin()
    e("L_pr_old:")
    e(f"s_cmp_eq_u32 s{sCM}, 0"); e("s_cbranch_scc1 L_fin2")
    e(f"ds_read_b128 {vr(vACC)}, v{vRA}")
    e(f"ds_read_b128 {vr(vACC+4)}, v{vRA} offset:1024")
    e("s_branch L_reduce")

    nsh = [s for s in range(32) if any(seg_of_wave[4*s+w] < 0 for w in range(4))]
    assert nsh == list(range(len(nsh)))
    a = len(nsh)
    lo = []; hi = []
    for p in range(4):
        sl = [s for s in range(32) if any(seg_of_wave[4*s+w] == p for w in range(4)) and s >= a]
        assert sl == list(range(sl[0], sl[-1] + 1)) and 13 <= a + len(sl) <= 16, (p, sl)
        lo.append(sl[0]); hi.append(sl[-1] + 1)
    D, H, DA, HA, CL = vQF, vQF + 16, vKF, vKF + 4, vVF
    e("L_helper:")
    e(f"s_getreg_b32 s{sT1}, hwreg(HW_REG_XCC_ID, 0, 4)")
    e(f"s_sub_u32 s{sT3}, s{sT3}, 1024")
    e(f"v_and_b32 v{vT}, 31, v{vLANE}")
    e(f"v_lshl_add_u32 v{vCOL}, v{vT}, 2, s{sT3}")
    e(f"s_lshl_b32 s{sT2}, s{sSPL}, 2"); e(f"s_add_u32 s{sT2}, s{sT2}, s{sT3}")
    e(f"v_mov_b32 v{vU}, s{sT2}")
    e("s_waitcnt lgkmcnt(0)")
    e(f"s_add_u32 s{sTAG}, s{sTAG}, 1")
    e(f"s_and_b32 s{sB}, s{sTAG}, 0xfffffff"); e(f"s_lshl_b32 s{sT1}, s{sT1}, 28"); e(f"s_or_b32 s{sB}, s{sB}, s{sT1}")
    e(f"v_mov_b32 v{vT}, s{sB}")
    e("s_mov_b64 exec, 1")
    e(f"global_store_dword v{vU}, v{vT}, {sr(sWS)}")
    e("s_mov_b64 exec, -1")
    e("s_waitcnt vmcnt(1)")
    e("s_barrier")
    stamp(3)
    e("s_setprio 0")
    if cfg.touch: e("s_branch T_pr0")
    e("L_htouch_ret:")
    e(f"s_and_b32 s{sT8}, s{sTAG}, 0xff")
    e(f"s_mov_b32 s{sFF}, 0xff")
    e(f"v_mov_b32 v{vW}, s{sTAG}")
    e(f"v_mov_b32 v{vFA}, {LDS_F}")
    rows = [sum(3 << (2 * p) for p in range(4) if (cms[t] >> (4 * p)) & 15) for t in range(32)]
    e(f"s_mov_b32 s{sOWN}, {rows[0]}"); e(f"s_mov_b32 s{sOWN+1}, 0")
    for t in range(1, 32):
        if rows[t] != rows[t - 1]:
            e(f"s_cmp_ge_u32 s{sSPL}, {t}"); e(f"s_cselect_b32 s{sOWN}, {rows[t]}, s{sOWN}")
    e(f"v_and_b32 v{vT}, 7, v{vLANE}")
    e(f"v_lshlrev_b32 v{vHR}, 4, v{vT}"); e(f"v_add_u32 v{vHR}, {LDS_H}, v{vHR}")
    e(f"s_lshl_b32 s{sT2}, s{sH}, 8"); e(f"s_add_u32 s{sT2}, s{sT2}, s{sSPL}"); e(f"s_lshl_b32 s{sT2}, s{sT2}, 4"); e(f"s_add_u32 s{sT2}, s{sT2}, {HDR}")
    e(f"v_lshl_add_u32 v{vGH}, v{vT}, 9, s{sT2}")
    e(f"s_mov_b32 s{sC}, {f2u(CF):#x}")
    e(f"s_lshl_b32 s{sT2}, s{sH}, 18")
    e(f"s_add_u32 s{sHB}, s{sWS}, s{sT2}"); e(f"s_addc_u32 s{sHB+1}, s{sWS+1}, 0")
    e(f"v_bfe_u32 v{vG}, v{vLANE}, 2, 2")
    e(f"v_lshrrev_b32 v{vN}, 4, v{vLANE}"); e(f"v_and_b32 v{vAL}, 3, v{vLANE}")
    e(f"v_lshl_or_b32 v{vN}, v{vN}, 2, v{vAL}")
    e(f"s_lshr_b32 s{sT0}, s{sSPL}, 3")
    lop = sum((lo[p] - a) << (8 * p) for p in range(4)); hip_ = sum(hi[p] << (8 * p) for p in range(4))
    e(f"s_lshl_b32 s{sT1}, s{sT0}, 3")
    e(f"s_lshr_b32 s{sT2}, {lop:#x}, s{sT1}"); e(f"s_and_b32 s{sT2}, s{sT2}, 0xff")
    e(f"s_lshr_b32 s{sT3}, {hip_:#x}, s{sT1}"); e(f"s_and_b32 s{sT3}, s{sT3}, 0xff")
    e(f"s_lshl_b32 s{sI}, s{sT0}, 11")
    e(f"s_bfe_u32 s{sINX}, s{sSPL}, 0x10001"); e(f"s_lshl_b32 s{sCOL}, s{sINX}, 10"); e(f"s_add_u32 s{sI}, s{sI}, s{sCOL}")
    e(f"s_bfe_u32 s{sCNT}, s{sSPL}, 0x10002"); e(f"s_lshl_b32 s{sCOL}, s{sCNT}, 9"); e(f"s_add_u32 s{sI}, s{sI}, s{sCOL}")
    e(f"s_and_b32 s{sSOFF}, s{sSPL}, 1"); e(f"s_lshl_b32 s{sCOL}, s{sSOFF}, 7"); e(f"s_add_u32 s{sI}, s{sI}, s{sCOL}")
    e(f"v_and_b32 v{vT}, 7, v{vN}"); e(f"v_lshrrev_b32 v{vU}, 3, v{vN}")
    e(f"v_lshlrev_b32 v{vL}, 4, v{vT}"); e(f"v_lshl_add_u32 v{vL}, v{vU}, 8, v{vL}"); e(f"v_add_u32 v{vL}, s{sI}, v{vL}")
    def slot_of(idxreg, mask):
        e(f"v_add_u32 v{vF}, s{sT2}, v{idxreg}")
        e(f"v_cmp_gt_u32 vcc, {a}, v{idxreg}"); e("s_nop 1")
        e(f"v_cndmask_b32 v{idxreg}, v{vF}, v{idxreg}, vcc")
        e(f"v_cmp_gt_u32 {sr(mask)}, s{sT3}, v{idxreg}")
    for k in range(4):
        e(f"v_add_u32 v{vM}, {4*k}, v{vG}")
        if 4 * k + 3 >= a:
            slot_of(vM, sEX + 2 * k)
            for dd in (D, vACC, vACC + 16)[:cfg.pipe]:
                for j in range(4): e(f"v_mov_b32 v{dd+4*k+j}, " + (f"s{sT8}" if j % 2 == 0 else "0"))
        e(f"v_lshl_add_u32 v{DA+k}, v{vM}, 13, v{vL}")
    e(f"v_lshl_add_u32 v{vM}, v{vAL}, 2, v{vG}")
    slot_of(vM, sLM)
    e(f"s_lshl_b32 s{sCOL}, s{sH}, 3"); e(f"s_lshr_b32 s{sI}, s{sSPL}, 2"); e(f"s_add_u32 s{sCOL}, s{sCOL}, s{sI}")
    e(f"s_lshl_b32 s{sCOL}, s{sCOL}, 9"); e(f"s_add_u32 s{sCOL}, s{sCOL}, {HDR}")
    e(f"v_lshl_add_u32 v{HA}, v{vM}, 4, s{sCOL}")
    if cfg.gate is not None:
        e(f"v_readfirstlane_b32 s{sCOL}, v{vL}"); e("s_nop 1")
        e(f"v_lshl_add_u32 v{HA+1}, v{vM}, 13, s{sCOL}")
    e(f"v_mov_b32 v{H}, {NEG:#x}"); e(f"v_mov_b32 v{H+1}, 0"); e(f"v_mov_b32 v{H+2}, 0")
    e(f"s_lshl_b32 s{sI}, s{sT0}, 13"); e(f"s_lshl_b32 s{sCOL}, s{sH}, 10"); e(f"s_add_u32 s{sI}, s{sI}, s{sCOL}")
    e(f"s_lshl_b32 s{sCOL}, s{sCNT}, 9"); e(f"s_add_u32 s{sI}, s{sI}, s{sCOL}")
    e(f"s_and_b32 s{sCOL}, s{sSPL}, 3"); e(f"s_lshl_b32 s{sCOL}, s{sCOL}, 7"); e(f"s_add_u32 s{sI}, s{sI}, s{sCOL}")
    e(f"v_lshlrev_b32 v{vT}, 4, v{vT}"); e(f"v_lshl_add_u32 v{vT}, v{vU}, 3, v{vT}"); e(f"v_add_u32 v{vLIM}, s{sI}, v{vT}")
    e(f"s_mov_b32 s{sJ0}, {cfg.spin}")
    e(f"v_mov_b32 v{vJUNK}, 0")
    e(f"s_mov_b32 s{sT2}, {cfg.hello_tries}")
    e(f"v_mov_b32 v{vW+1}, 1")
    e(f"s_mov_b64 exec, {sr(sLM)}")
    e(f"global_load_dwordx4 {vr(H)}, v{HA}, {sr(sWS)} sc1")
    e("s_mov_b64 exec, 1")
    e(f"global_load_dword v{vF}, v{DA}, {sr(sHB)} sc1 nt")
    if cfg.owarm == 1: e(f"global_load_dword v{vF}, v{vLIM}, {sr(sOUT)} {cfg.owf}")
    e("s_mov_b64 exec, -1")
    e("s_waitcnt vmcnt(0)")
    e(f"global_load_dword v{vU}, v{vCOL}, {sr(sWS)} sc1")
    e("s_barrier")
    e("s_barrier")
    e(f"ds_read_b128 {vr(vA)}, v{vHR}")
    e(f"ds_read_b128 {vr(vA+4)}, v{vHR} offset:128")
    e("s_waitcnt lgkmcnt(0)")
    e(f"v_max3_f32 v{vHG}, v{vA}, v{vA+1}, v{vA+2}")
    e(f"v_pk_add_f32 {vr(vA+4,2)}, {vr(vA+4,2)}, {vr(vA+6,2)}")
    e(f"v_max_f32 v{vHG}, v{vHG}, v{vA+3}")
    e(f"v_add_f32 v{vHG+1}, v{vA+4}, v{vA+5}")
    e(f"v_lshlrev_b32 v{vHG+2}, 8, v{vHG}"); e(f"v_mov_b32 v{vHG+3}, v{vW}")
    for k in range(3): e(f"v_bfi_b32 v{vHG+k}, s{sFF}, v{vW}, v{vHG+k}")
    e("s_branch L_hello1")
    e("L_hello:")
    e(f"global_load_dword v{vU}, v{vCOL}, {sr(sWS)} sc1")
    e("L_hello1:")
    e("s_waitcnt vmcnt(0)")
    e(f"v_cmp_ne_u32 vcc, s{sB}, v{vU}")
    e(f"s_sub_u32 s{sT2}, s{sT2}, 1")
    if not cfg.force_safe: e("s_cbranch_vccz L_hello_ok")
    e("s_cbranch_scc0 L_hello")
    e(f"v_mov_b32 v{vW+1}, 0")
    e(f"s_mov_b32 s{sSH}, 0")
    e(f"s_mov_b64 exec, {sr(sOWN)}")
    e(f"global_store_dwordx4 v{vGH}, {vr(vHG)}, {sr(sWS)} sc0 sc1")
    e("s_branch L_hello_done")
    e("L_hello_ok:")
    e(f"s_mov_b32 s{sSH}, 1")
    e(f"s_mov_b64 exec, {sr(sOWN)}")
    e(f"global_store_dwordx4 v{vGH}, {vr(vHG)}, {sr(sWS)}")
    e(f"s_cmp_lg_u32 s{sSPL}, 0"); e("s_cbranch_scc1 L_hello_done")
    e("s_mov_b64 exec, 1")
    e(f"global_store_dword v{vCOL}, v{vW}, {sr(sWS)} offset:1024")
    e("L_hello_done:")
    e(f"s_mov_b64 exec, {sr(sLM)}")
    e(f"ds_write_b64 v{vFA}, {vr(vW,2)}")
    if cfg.hwait: e("s_waitcnt vmcnt(0)")
    if cfg.owarm == 2: e(f"global_load_dword v{vF}, v{vLIM}, {sr(sOUT)} {cfg.owf}")
    e(f"global_load_dwordx4 {vr(H)}, v{HA}, {sr(sWS)} sc1")
    stamp(2)
    if cfg.hp2: e(f"s_setprio {cfg.hp2}")
    e("s_waitcnt lgkmcnt(0)")
    e("s_barrier")
    stamp(5)
    DS = [D, vACC, vACC + 16]
    def dloads(skip, D=D):
        for k in range(4):
            if skip:
                e(f"s_cmp_eq_u64 {sr(sMK+2*k)}, 0"); e(f"s_cbranch_scc1 L_dk{k}")
            if 4 * k + 3 >= a: e(f"s_mov_b64 exec, {sr(sEX+2*k)}")
            elif k == 0 and not skip: e("s_mov_b64 exec, -1")
            e(f"global_load_dwordx4 {vr(D+4*k)}, v{DA+k}, {sr(sHB)} {cfg.dld}")
            if skip: e(f"L_dk{k}:")
    if cfg.nopoll: e("s_branch L_fin")
    e("s_branch L_poll1")
    e("L_poll:")
    e(f"global_load_dwordx4 {vr(H)}, v{HA}, {sr(sWS)} sc1")
    e(f"s_sub_u32 s{sJ0}, s{sJ0}, 1"); e("s_cbranch_scc1 L_fin")
    e("L_poll1:")
    e("s_waitcnt vmcnt(0)")
    e(f"v_bitop3_b32 v{vA}, v{H}, v{H+1}, s{sTAG} bitop3:0x7e")
    e(f"v_xor_b32 v{vA+1}, s{sTAG}, v{H+3}")
    e(f"v_bitop3_b32 v{vA}, v{vA}, v{H+2}, s{sTAG} bitop3:0xf6")
    e(f"v_and_or_b32 v{vA}, v{vA}, s{sFF}, v{vA+1}")
    e(f"v_cmp_ne_u32 vcc, 0, v{vA}")
    e("s_cbranch_vccnz L_poll")
    if cfg.gate is not None:
        e(f"s_and_b32 exec_lo, s{sLM}, 0xffff"); e("s_mov_b32 exec_hi, 0")
        e("L_gate:")
        e(f"global_load_dword v{vA}, v{HA+1}, {sr(sHB)} sc1")
        e(f"s_sub_u32 s{sJ0}, s{sJ0}, 1"); e("s_cbranch_scc1 L_fin")
        e("s_waitcnt vmcnt(0)")
        e(f"v_and_b32 v{vA}, 0xff, v{vA}")
        e(f"v_cmp_ne_u32 vcc, s{sT8}, v{vA}")
        e("s_nop 1")
        e(f"s_bcnt1_i32_b32 s{sT2}, vcc_lo")
        e(f"s_cmp_gt_u32 s{sT2}, {cfg.gate}"); e("s_cbranch_scc1 L_gate")
    if not cfg.b3: dloads(False)
    e("s_mov_b64 exec, -1")
    dpp = ["quad_perm:[1,0,3,2]", "quad_perm:[2,3,0,1]", "row_ror:4", "row_ror:8"]
    e(f"v_lshrrev_b32 v{vM}, 8, v{H+2}")
    e(f"v_bfi_b32 v{vM}, s{sFF}, v{vM}, v{H}")
    e(f"v_and_b32 v{vL}, 0xffffff00, v{H+1}")
    e("s_nop 0")
    e(f"v_max_f32_dpp v{vT}, v{vM}, v{vM} {dpp[0]} row_mask:0xf bank_mask:0xf")
    for x in dpp[1:]:
        e("s_nop 1")
        e(f"v_max_f32_dpp v{vT}, v{vT}, v{vT} {x} row_mask:0xf bank_mask:0xf")
    e(f"v_sub_f32 v{vM}, v{vM}, v{vT}")
    e(f"v_mul_f32 v{vM}, s{sC}, v{vM}")
    e(f"v_exp_f32 v{vM}, v{vM}")
    e("s_nop 0")
    e(f"v_mul_f32 v{vL}, v{vL}, v{vM}")
    for x in dpp:
        e("s_nop 1")
        e(f"v_add_f32_dpp v{vL}, v{vL}, v{vL} {x} row_mask:0xf bank_mask:0xf")
    if cfg.b3:
        if cfg.b3 == 1: e("s_barrier")
        dloads(False); e("s_mov_b64 exec, -1")
    e(f"v_rcp_f32 v{vL}, v{vL}")
    e("s_nop 0")
    e(f"v_mul_f32 v{vM}, v{vM}, v{vL}")
    e("s_nop 1")
    for k in range(4):
        e(f"v_mov_b32_dpp v{vA+8+2*k}, v{vM} quad_perm:[{k},{k},{k},{k}] row_mask:0xf bank_mask:0xf")
    def check(D):
        for k in range(4):
            e(f"v_bitop3_b32 v{CL+k}, v{D+4*k}, v{D+4*k+2}, s{sTAG} bitop3:0x7e")
        e(f"v_or3_b32 v{CL}, v{CL}, v{CL+1}, v{CL+2}")
        e(f"v_bitop3_b32 v{CL}, v{CL}, v{CL+3}, s{sFF} bitop3:0xa8")
        e(f"v_cmp_ne_u32 vcc, 0, v{CL}")
    def final(D):
        stamp(7)
        for k in range(4):
            for j in (0, 2): e(f"v_xor_b32 v{D+4*k+j}, s{sT8}, v{D+4*k+j}")
            for j in range(0, 4, 2):
                if k == 0: e(f"v_pk_mul_f32 {vr(vA+j,2)}, {vr(D+j,2)}, {vr(vA+8,2)} op_sel_hi:[1,0]")
                else: e(f"v_pk_fma_f32 {vr(vA+j,2)}, {vr(D+4*k+j,2)}, {vr(vA+8+2*k,2)}, {vr(vA+j,2)} op_sel_hi:[1,0,1]")
        e("s_nop 0")
        for ror in (4, 8):
            for j in range(4):
                e(f"v_add_f32_dpp v{vA+j}, v{vA+j}, v{vA+j} row_ror:{ror} row_mask:0xf bank_mask:0xf")
        e("s_mov_b32 exec_lo, 0x000f000f"); e("s_mov_b32 exec_hi, 0x000f000f")
        e(f"v_cvt_pk_bf16_f32 v{vS}, v{vA}, v{vA+1}")
        e(f"v_cvt_pk_bf16_f32 v{vS+1}, v{vA+2}, v{vA+3}")
        e(f"global_store_dwordx2 v{vLIM}, {vr(vS,2)}, {sr(sOUT)} {cfg.out_flags}")
    n = cfg.pipe
    for i in range(1, n):
        dloads(False, DS[i]); e("s_mov_b64 exec, -1")
    e("L_data:")
    for i in range(n):
        e(f"s_waitcnt vmcnt({4*(n-1)})")
        check(DS[i])
        e(f"s_cbranch_vccz L_final{i}")
        dloads(False, DS[i]); e("s_mov_b64 exec, -1")
    e(f"s_sub_u32 s{sJ0}, s{sJ0}, 1"); e("s_cbranch_scc0 L_data")
    e("s_branch L_fin")
    for i in range(n):
        e(f"L_final{i}:")
        final(DS[i])
        if i < n - 1: e("s_branch L_post")
    e("L_post:")
    e(f"s_or_b32 s{sT2}, s{sSH}, s{sSPL}"); e("s_cbranch_scc1 L_fin")
    e("s_mov_b64 exec, -1")
    firstp = [min(p for p in range(4) if (cms[t] >> (4 * p)) & 15) for t in range(32)]
    e(f"v_and_b32 v{vT}, 31, v{vLANE}")
    e(f"s_lshl_b32 s{sT2}, s{sH}, 12"); e(f"s_add_u32 s{sT2}, s{sT2}, {HDR + 12 + 1024 * firstp[0]}")
    e(f"v_lshl_add_u32 v{vU}, v{vT}, 4, s{sT2}")
    for t in range(1, 32):
        if firstp[t] != firstp[t - 1]:
            e(f"v_cmp_le_u32 vcc, {t}, v{vT}")
            e(f"v_add_u32 v{vF}, {1024 * (firstp[t] - firstp[t-1])}, v{vU}")
            e("s_nop 0")
            e(f"v_cndmask_b32 v{vU}, v{vU}, v{vF}, vcc")
    e("L_ep:")
    e(f"s_sub_u32 s{sJ0}, s{sJ0}, 1"); e("s_cbranch_scc1 L_fin")
    e(f"global_load_dword v{vF}, v{vU}, {sr(sWS)} sc1")
    e("s_waitcnt vmcnt(0)")
    e(f"v_cmp_ne_u32 vcc, s{sTAG}, v{vF}")
    e("s_nop 1")
    e("s_cbranch_vccnz L_ep")
    e("s_mov_b64 exec, 1")
    e(f"global_store_dword v{vCOL}, v{vW}, {sr(sWS)} offset:1024")
    e("L_fin:")
    if cfg.probe:
        k, mult = cfg.probe
        if k == 8:
            e("s_waitcnt vmcnt(0)"); e(f"s_memrealtime {sr(sST+2)}"); k = 1
        e("s_waitcnt lgkmcnt(0)")
        if k > 0:
            e(f"s_sub_u32 s{sT0}, s{sST+2*k}, s{sST}")
            e(f"s_cmp_gt_u32 s{sT0}, 3000"); e(f"s_cselect_b32 s{sT0}, 0, s{sT0}")
            e(f"s_mul_i32 s{sT0}, s{sT0}, {mult}")
        else:
            e(f"s_mov_b32 s{sT0}, 0")
        e(f"s_add_u32 s{sT0}, s{sT0}, 4000")
        e("L_probe:")
        e("s_sleep 8")
        e(f"s_memrealtime {sr(sMK)}"); e("s_waitcnt lgkmcnt(0)")
        e(f"s_sub_u32 s{sT1}, s{sMK}, s{sST}")
        e(f"s_cmp_lt_u32 s{sT1}, s{sT0}"); e("s_cbranch_scc1 L_probe")
    if cfg.stamps:
        e("s_mov_b64 exec, -1")
        e("s_waitcnt vmcnt(0)")
        e(f"s_memrealtime {sr(sMK)}")
        e("s_waitcnt lgkmcnt(0)")
        e(f"s_min_u32 s{sWAVE}, s{sWAVE}, 4")
        e(f"s_lshl_b32 s{sT2}, s2, 4"); e(f"s_add_u32 s{sT2}, s{sT2}, s{sWAVE}"); e(f"s_lshl_b32 s{sT2}, s{sT2}, 6")
        e(f"s_add_u32 s{sT2}, s{sT2}, 0x8000000")
        e(f"v_mov_b32 v{vT}, s{sT2}")
        e(f"s_getreg_b32 s{sT3}, hwreg(HW_REG_XCC_ID)")
        for k in range(8): e(f"v_mov_b32 v{vKF+k}, s{sST+2*k}")
        e(f"v_mov_b32 v{vKF+8}, s{sMK}"); e(f"v_mov_b32 v{vKF+9}, s{sT3}"); e(f"v_mov_b32 v{vKF+10}, 0x12345678"); e(f"v_mov_b32 v{vKF+11}, s{sJ0}")
        for k in range(3):
            e(f"global_store_dwordx4 v{vT}, {vr(vKF+4*k)}, {sr(sWS)} offset:{16*k}")
    e("s_endpgm")
    e(".p2align 12")
    stub("sh0")
    vphase("sh", [0, 1, 2, 3], {1: "sh1", 2: "sh2", 3: "sh3"})
    assert 12 <= cfg.defer <= 15
    own = [f"v_mfma_f32_16x16x32_bf16 {vr(vACC+4*hf)}, {vr(vVF+4*(n-12))}, {vr(vVF+32+8*(n&3)+4*hf)}, {vr(vACC+4*hf)}" for n in range(cfg.defer, 16) for hf in range(2)]
    for x in own[:2]: e(x)
    e(f"s_cmp_eq_u32 s{sLAST}, 0")
    for hf in range(2):
        for p in range(1, 4):
            e(f"ds_write_b128 v{vDEP}, {vr(vACC+8*p+4*hf)} offset:{2048*p+1024*hf}")
    for x in own[2:]: e(x)
    e("s_cbranch_scc1 L_next")
    e("s_waitcnt lgkmcnt(0)")
    e("s_barrier")
    stamp(5)
    e("L_reduce:")
    reduce_()
    e("s_cbranch_vccnz L_pubsafe")
    publish(cfg.dst)
    stamp(6)
    fin()
    e("L_pubsafe:")
    publish("sc0 sc1")
    stamp(6)
    fin()
    e("L_respec:")
    e(f"v_max_u32 v{vU}, v{vU}, v{vT}")
    e(f"v_add_u32 v{vNR}, v{vTAB}, v{vU}")
    e(f"v_add_u32 v{vTAB}, v{vTAB}, v{vT}")
    e(f"v_lshlrev_b32 v{vNR}, 12, v{vNR}")
    e(f"v_lshl_add_u32 v{vTAB}, v{vTAB}, 12, s{sH512}")
    e(f"v_lshl_or_b32 v{vCOL}, v{vU}, 16, v{vT}")
    e(f"v_cndmask_b32 v{vTAB}, 0, v{vTAB}, vcc")
    e(f"v_cndmask_b32 v{vNR}, 0, v{vNR}, vcc")
    e(f"s_and_b32 s{sFB}, s{sMK}, vcc_lo")
    e(f"s_add_u32 s{sCNT}, s{sJ1}, 15"); e(f"s_lshr_b32 s{sCNT}, s{sCNT}, 4")
    e(f"s_sub_i32 s{sCNT}, s{sCNT}, s{sT0}"); e(f"s_max_i32 s{sCNT}, s{sCNT}, 1")
    e(f"s_cmp_eq_u32 s{sSH}, 1")
    e(f"s_cselect_b32 s{sFB}, 0, s{sFB}")
    e(f"s_cmp_lg_u32 s{sFB}, 0")
    e(f"s_cselect_b32 s{sCNT}, 32, s{sCNT}")
    e(f"s_mov_b32 s{sI}, -4")
    e("L_next:")
    e(f"s_add_u32 s{sI}, s{sI}, 4")
    e(f"s_lshr_b32 s{sT2}, s{sI}, 3")
    e(f"v_cmp_eq_u32 vcc, s{sT2}, v{vF}")
    e(f"s_cmp_eq_u32 s{sFB}, 0")
    e("s_nop 3")
    e("s_cselect_b64 vcc, -1, vcc")
    e(f"v_cndmask_b32 v{vCTXE}, 0, v{vCTXG}, vcc")
    descr()
    e("s_waitcnt vmcnt(0) lgkmcnt(0)")
    e("s_nop 4")
    for u in range(cfg.dep): kblock(u)
    e("s_branch L_go")
    e("L_rescale:")
    e(f"v_sub_f32 v{vAL}, v{vM}, v{vT}")
    e(f"v_mul_f32 v{vAL}, s{sC}, v{vAL}")
    e(f"v_exp_f32 v{vAL}, v{vAL}")
    e("s_nop 1")
    for p in range(4):
        e(f"v_mov_b32_dpp v{vA+2*p}, v{vAL} row_newbcast:{p} row_mask:0x3 bank_mask:0xf")
        e(f"v_mov_b32_dpp v{vA+2*p}, v{vAL} row_newbcast:{8+p} row_mask:0xc bank_mask:0xf")
    e(f"v_mul_f32 v{vL}, v{vL}, v{vAL}")
    for p in range(4):
        for k in range(0, 8, 2):
            e(f"v_pk_mul_f32 {vr(vACC+8*p+k,2)}, {vr(vACC+8*p+k,2)}, {vr(vA+2*p,2)} op_sel_hi:[1,0]")
    e("s_branch L_rescale_ret")
    e("L_zeroctx:")
    e("s_waitcnt lgkmcnt(0)")
    e("s_mov_b64 exec, vcc")
    e(f"v_mov_b32 v{vCTXG}, 4096")
    for k in range(0, 32, 2): e(f"v_mov_b64 {vr(vQF+k,2)}, 0")
    e("s_mov_b64 exec, -1")
    e("s_nop 0")
    e("s_branch L_zeroctx_ret")

    e(".fill 64, 4, 0xbf810000")
    e('.section .rodata,"a"'); e(".p2align 6"); e(f".amdhsa_kernel {NAME}")
    e(f"  .amdhsa_next_free_vgpr {NV}"); e("  .amdhsa_next_free_sgpr 102"); e(f"  .amdhsa_accum_offset {NV}")
    e("  .amdhsa_group_segment_fixed_size 0"); e("  .amdhsa_kernarg_size 64"); e("  .amdhsa_user_sgpr_count 2")
    e("  .amdhsa_user_sgpr_kernarg_segment_ptr 1"); e("  .amdhsa_system_sgpr_workgroup_id_x 1"); e(".end_amdhsa_kernel")
    out = []
    if cfg.nostore: L = [x for x in L if not x.startswith(f"global_store_dwordx4 v{vL16},")]
    if cfg.nohelp: L = [x for x in L if not (x.startswith(f"global_store_dword v") or x.startswith(f"global_store_dwordx4 v{vGH},") or (x.startswith("global_load_dword") and "sc1" in x))]
    for x in L:
        if x.endswith(":") or x.startswith(".") or x.startswith(";") or x.startswith("  ."): out.append(x)
        else: out.append("    " + x)
    return "\n".join(out) + "\n"

if __name__ == "__main__":
    ap = argparse.ArgumentParser()
    ap.add_argument("out"); ap.add_argument("opts", nargs="*")
    a = ap.parse_args()
    cfg = Cfg()
    for o in a.opts:
        k, v = o.split("=", 1)
        assert hasattr(cfg, k), k
        setattr(cfg, k, eval(v))
    open(a.out, "w").write(gen(cfg))
```

```python
import sys, math, argparse, struct
NAME = "standalone__paged_block_table_kv_radixattention__decode_kernel"
HEADER = open("standalone__paged_block_table_kv_radixattention__decode.s.ref").read().split("; Override launch")[0]
STOK = 2048
CTX = [3663, 3230, 3821, 3388]
SLOT = 8192
HDR = 256 * SLOT
HELLO = HDR + 32768
EPO = HELLO + 1024
KVBYTES = 41943040
CF = math.log2(math.e) / 16.0
def f2u(x): return struct.unpack("<I", struct.pack("<f", x))[0]
NEG = f2u(-1e30) & ~0xff

DOC = """
Paged decode attention, one launch: 256 workgroups = 8 kv heads x 32 splits, 4 streaming waves + 1 helper wave each.
 streaming wave: owns a token range of the shared prefix (all 4 batches at once, 8 queries) or of one batch (2 queries).
   K tiles (16 tokens) go HBM -> LDS (swizzled) -> MFMA scores; all K first, then one softmax with the workgroup's true
   running max, then V straight to registers; P is expanded to a diagonal A operand so V needs no transpose.
   The first K tiles are issued for the usual table; the real block table / lengths are then checked and any
   difference (other blocks, unshared prefix, longer or shorter context) takes the general descriptor path.
 helper wave: stages q, block table, lengths; publishes (max, sum) headers; combines 1/32 of the head's output.
 hand-off through d_ws: every 8 bytes carry a tag derived from an epoch word read at entry (only to tell this launch's
   words from older ones). Stores stay in L2 only if all 32 workgroups of the head report the same XCD,
   otherwise they are written through; readers bypass L1.
"""

class Cfg:
    segs = [(-1, 33), (2, 28), (0, 26), (1, 19), (3, 22)]
    dep = 2; pfn = 12; redu = 3; lag = (0, 0); hwait = True; dskip = False; pipe = 2; pre = 3; defer = 12; jobw = 0; b3 = 0; hp2 = 3; mp2 = 0; gate = 6; tat = 2; owarm = 0; owf = ""; nostore = False; nohelp = False
    inred = True; redat = 2; tl = False; ilv = True
    dld = "sc1"; dst = ""; dwarm = None; pf = 0; pff = ""
    gran = 1
    stamps = False
    lds = 143360
    out_flags = ""
    spin = 20000
    probe = None
    pad = 0xd00
    touch = True
    l2warm = False
    hprio = 3; mprio = None
    ldnt = "nt"
    hflags = ""
    force_safe = False; hello_tries = 4; hello_sleep = 2
    earlyk = True
    nopoll = False

def partition(cfg):
    ws = []; acc = 0
    for b, nw in cfg.segs:
        n = STOK if b < 0 else CTX[b] - STOK
        M = -(-65536 * n // nw)
        assert (nw * M) >> 16 == n and nw * M < 2**32
        assert (M >> 16) >= 33 and (M >> 16) + 1 + 15 <= 8 * 16
        ws.append((b, acc, nw, M)); acc += nw
    assert acc == 128
    seg_of_wave = []
    for b, st, nw, M in ws: seg_of_wave += [b] * nw
    return ws, seg_of_wave

sWAVE = 3
sQ, sK, sV, sBT, sCTX, sOUT, sDBG, sWS = 4, 6, 8, 10, 12, 14, 16, 18
sKSRD, sVSRD = 20, 24
sPC = 28; sTAG = 30; sFF = 31
sH, sSPL, sB, sJ0, sJ1, sSH = 32, 33, 34, 35, 36, 37
sSOFF, sM0A, sM0B, sCNT, sI, sINX, sCOL, sH512 = 38, 39, 40, 41, 42, 43, 44, 45
sC, sT0, sT1, sT2, sT3, sSPEC, sFB = 46, 47, 48, 49, 50, 51, 56
sLM = 52; sONE = 54; sCM = 57; sSLOT = 58; sMK = 60; sT8 = 68; sSPEC1 = 69; sEX = 76; sHB = 84; sST = 86

vLANE, vN, vG = 1, 2, 3
vKOFF = 4; vVOFF = 12; vKRD = 16; vMSK = 20
vTAB, vCOL, vCTXG, vM, vL, vLIM, vT, vU, vAL, vNMC, vF, vL16 = 24, 25, 26, 27, 28, 29, 30, 31, 32, 33, 34, 35
vHG = 36; vNINF = 40; vHA = 41; vHC = 42; vHR = 43; vGH = 44; vDEP = 45; vW = 46; vA = 48; vKF = 64; vVF = 96
vQF = 160; vACC = 192; vS = 224; vRA = 240; vFA = 244; vNR = 245; vG4 = 246; vPF = 247; vCTXE = 248; vJUNK = 249
NV = 256
sPFX = 70; sPAIR = 72; sROLE = 73; sOWN = 74
sSO = 76; sNRS = 80; sTT = 28
TT = [28, 29, 30, 69]
sLAST = 40
MISC = 131072
LDS_Q = MISC; LDS_T = MISC + 4096; LDS_C = MISC + 8192; LDS_H = MISC + 8448; LDS_F = MISC + 8704; LDS_Z = MISC + 8768

def vr(b, n=4): return f"v[{b}:{b+n-1}]"
def sr(b, n=2): return f"s[{b}:{b+n-1}]"

def gen(cfg):
    L = []
    e = L.append
    ws, seg_of_wave = partition(cfg)
    dbg = cfg.stamps or cfg.probe
    def stamp(k):
        if cfg.stamps or (cfg.probe and k in (0, cfg.probe[0])): e(f"s_memrealtime {sr(sST+2*k)}")
    cms = []
    for s in range(32):
        m = 0
        for w in range(4):
            sg = seg_of_wave[4 * s + w]
            for p in range(4):
                if sg < 0 or sg == p: m |= 1 << (4 * p + w)
        cms.append(m)
    wds = []
    for s_ in range(32):
        segs4 = seg_of_wave[4 * s_:4 * s_ + 4]
        x = 0
        for w in range(4):
            if min(segs4) >= 0:
                ps = sorted(set(segs4)); assert len(ps) <= 2
                jobs = [(p, hf) for p in ps for hf in range(2)]
                jw = w if len(ps) == 2 else w - cfg.jobw
                if 0 <= jw < len(jobs):
                    p, hf = jobs[jw]
                    m = 16 | (p << 5) | (hf << 7) | sum(1 << j for j in range(4) if segs4[(w + j) & 3] == p)
                else: m = 0
            else:
                m = (w << 5) | sum(1 << j for j in range(4) if segs4[(w + j) & 3] in (-1, w))
            x |= m << (8 * w)
        wds.append(x)
    def kblock(u, preset=False):
        if not preset:
            e(f"s_add_u32 m0, s{sM0A}, {8192*u}")
            e(f"s_mov_b32 s{sKSRD+2}, s{sNRS+u}")
        for j in range(8):
            if j == 4:
                e(f"s_bitset1_b32 m0, 12"); e("s_nop 0")
            e(f"buffer_load_dwordx4 v{vKOFF+j}, {sr(sKSRD,4)}, s{sSO+u} offen offset:{(j&3)*1024} {cfg.ldnt} lds")
    def vload(u, r, hf):
        e(f"buffer_load_dwordx4 {vr(vVF+32*(u&1)+8*r+4*hf)}, v{vVOFF+r}, {sr(sVSRD,4)}, s{sSO+u} offen offset:{256*hf} {cfg.ldnt}")
    def vblock(u):
        e(f"s_mov_b32 s{sVSRD+2}, s{sNRS+u}")
        for r in range(4):
            vload(u, r, 0); vload(u, r, 1)
    def block(n):
        if n < 4: kblock(n)
        elif n < 6: vblock(n - 4)
    def descr():
        for u in range(4):
            if u: e(f"s_add_u32 s{sT2}, s{sI}, {u}")
            ix = sT2 if u else sI
            e(f"v_readlane_b32 s{sSO+u}, v{vTAB}, s{ix}")
            e(f"v_readlane_b32 s{sNRS+u}, v{vNR}, s{ix}")
            e(f"v_readlane_b32 s{TT[u]}, v{vCOL}, s{ix}")
        e(f"s_add_u32 s{sT2}, s{sI}, 4")
        e(f"s_cmp_ge_u32 s{sT2}, s{sCNT}")
        e(f"s_cselect_b32 s{sLAST}, 1, 0")
    def stub(name):
        e(f"T_{name}:"); e("s_branch " + ("L_htouch_ret" if name == "pr0" else "L_touch_ret"))

    e(HEADER.rstrip())
    e(f"; @launch grid=(256,1,1) block=(320,1,1) lds={cfg.lds}")
    for x in DOC.strip("\n").split("\n"): e(("; " + x).rstrip())
    e('.amdgcn_target "amdgcn-amd-amdhsa--gfx950"')
    e(".text"); e(f".globl {NAME}")
    if cfg.pad:
        e(".p2align 12"); e(f".fill {cfg.pad//4}, 4, 0xbf810000")
    e(".p2align 8"); e(f".type {NAME},@function"); e(f"{NAME}:")
    stamp(0)
    e(f"s_load_dwordx16 s[4:19], s[0:1], 0")
    e("s_cmp_ge_u32 s2, 256"); e("s_cbranch_scc1 L_end0")
    e(f"v_lshrrev_b32 v{vT}, 6, v0")
    e(f"v_and_b32 v{vLANE}, 63, v0")
    e(f"v_readfirstlane_b32 s{sWAVE}, v{vT}")
    e(f"s_and_b32 s{sH}, s2, 7"); e(f"s_lshr_b32 s{sSPL}, s2, 3")
    e(f"v_lshrrev_b32 v{vT}, 5, v{vLANE}")
    e(f"s_sub_u32 s{sWAVE}, s{sWAVE}, 1")
    e("s_cbranch_scc0 L_main")
    e(f"s_setprio {cfg.hprio}")
    e(f"v_lshlrev_b32 v{vT}, 1, v{vT}")
    e(f"v_xor_b32 v{vT}, v{vT}, v{vLANE}")
    e(f"s_lshl_b32 s{sT2}, s{sH}, 10")
    e(f"v_lshl_add_u32 v{vA}, v{vT}, 4, s{sT2}")
    for b in range(1, 4):
        e(f"v_xor_b32 v{vA+b}, {64*b}, v{vA}")
        e(f"v_add_u32 v{vA+b}, {8192*b-1024*b}, v{vA+b}")
    e(f"v_lshlrev_b32 v{vL16}, 4, v{vLANE}")
    e(f"v_and_b32 v{vU}, 3, v{vLANE}"); e(f"v_lshlrev_b32 v{vU}, 2, v{vU}")
    e(f"s_lshl_b32 s{sT3}, s{sH}, 7"); e(f"s_add_u32 s{sT3}, s{sT3}, {EPO}")
    e(f"s_mov_b32 m0, {LDS_Q}")
    e("s_waitcnt lgkmcnt(0)")
    stamp(1)
    for b in range(4):
        e(f"global_load_lds_dwordx4 v{vA+b}, {sr(sQ)} offset:{1024*b} {cfg.hflags}")
    e(f"s_mov_b32 m0, {LDS_T}")
    e(f"s_load_dword s{sTAG}, {sr(sWS)}, s{sT3}")
    for b in range(4):
        e(f"global_load_lds_dwordx4 v{vL16}, {sr(sBT)} offset:{1024*b} {cfg.hflags}")
    e(f"s_mov_b32 m0, {LDS_C}"); e("s_nop 0")
    e(f"global_load_lds_dword v{vU}, {sr(sCTX)} {cfg.hflags}")
    e("s_branch L_helper")
    e("L_end0:"); e("s_endpgm")
    e("L_main:")
    e(f"s_load_dwordx2 {sr(sKSRD)}, s[0:1], 8")
    e(f"s_lshl_b32 s{sT0}, s{sSPL}, 2"); e(f"s_add_u32 s{sT0}, s{sT0}, s{sWAVE}")
    cc = lambda b, st, M: ((((b + 1) * STOK) << 16) - st * M) % 2**32
    b, st, nw, M = ws[0]
    e(f"s_mov_b32 s{sT3}, {cc(b, st, M):#x}"); e(f"s_mov_b32 s{sT2}, {M}")
    for b, st, nw, M in ws[1:]:
        e(f"s_cmp_ge_u32 s{sT0}, {st}")
        e(f"s_cselect_b32 s{sT3}, {cc(b, st, M):#x}, s{sT3}")
        e(f"s_cselect_b32 s{sT2}, {M}, s{sT2}")
    e(f"s_mul_i32 s{sJ0}, s{sT0}, s{sT2}")
    e(f"v_and_b32 v{vU}, 31, v{vLANE}")
    e(f"s_add_u32 s{sJ0}, s{sJ0}, s{sT3}")
    e(f"v_xor_b32 v{vU}, v{vU}, v{vT}")
    e(f"s_lshr_b32 s{sT3}, s{sJ0}, 16")
    e(f"v_lshlrev_b32 v{vU}, 4, v{vU}")
    e(f"s_lshl_b32 s{sT3}, s{sT3}, 12")
    e(f"v_lshl_or_b32 v{vKOFF}, v{vT}, 12, v{vU}")
    e(f"s_lshl_b32 s{sH512}, s{sH}, 9")
    e(f"s_add_u32 s{sSO}, s{sT3}, s{sH512}")
    e(f"s_add_u32 s{sKSRD+2}, s{sT3}, {0x10000*cfg.dep}")
    e(f"s_mov_b32 s{sKSRD+3}, 0x20000")
    e(f"s_lshl_b32 s{sM0A}, s{sWAVE}, 15")
    e(f"s_mov_b32 m0, s{sM0A}")
    def koff(j):
        e(f"v_xor_b32 v{vKOFF+j}, {32*j}, v{vKOFF}")
        e(f"v_add_u32 v{vKOFF+j}, {8192*j - (j&3)*1024}, v{vKOFF+j}")
    for j in range(1, cfg.pre + 1): koff(j)
    e("s_waitcnt lgkmcnt(0)")
    stamp(1)
    for j in range(8):
        if j == 4: e(f"s_bitset1_b32 m0, 12")
        if j > cfg.pre: koff(j)
        elif j == 4: e("s_nop 0")
        e(f"buffer_load_dwordx4 v{vKOFF+j}, {sr(sKSRD,4)}, s{sSO} offen offset:{(j&3)*1024} {cfg.ldnt} lds")
    for u in range(1, cfg.dep):
        e(f"s_add_u32 s{sSO+u}, s{sSO}, {0x10000*u}"); e(f"s_mov_b32 s{sNRS+u}, s{sKSRD+2}")
        kblock(u)
    def pack(b, st, nw): return ((st + nw - 1) << 8) | ((max(b, 0)) << 16) | ((0 if b < 0 else 1) << 24)
    b, st, nw, M = ws[0]
    e(f"s_mov_b32 s{sT1}, {pack(b, st, nw)}")
    for b, st, nw, M in ws[1:]:
        e(f"s_cmp_ge_u32 s{sT0}, {st}")
        e(f"s_cselect_b32 s{sT1}, {pack(b, st, nw)}, s{sT1}")
    e(f"s_add_u32 s{sJ1}, s{sJ0}, s{sT2}")
    e(f"s_bfe_u32 s{sB}, s{sT1}, 0x80010")
    e(f"s_lshr_b32 s{sSH}, s{sT1}, 24")
    def touches():
        if cfg.touch:
            nshwg = -(-cfg.segs[0][1] // 4)
            e(f"s_cmp_ge_u32 s{sSPL}, {nshwg}"); e(f"s_cselect_b32 s{sT2}, 4, 0"); e(f"s_add_u32 s{sT2}, s{sT2}, s{sWAVE}")
            for k, nm in ((0, "sh0"), (1, "sh1"), (2, "sh2"), (3, "sh3"), (4, "pr1")):
                e(f"s_cmp_le_u32 s{sT2}, {k}"); e(f"s_cbranch_scc1 T_{nm}")
        e("L_touch_ret:")
    if cfg.tat < 0: touches()
    e(f"s_mov_b32 s{sVSRD}, s{sV}"); e(f"s_mov_b32 s{sVSRD+1}, s{sV+1}"); e(f"s_mov_b32 s{sVSRD+3}, 0x20000")
    e(f"v_and_b32 v{vN}, 15, v{vLANE}"); e(f"v_lshrrev_b32 v{vG}, 4, v{vLANE}")
    e(f"v_lshlrev_b32 v{vVOFF}, 4, v{vN}"); e(f"v_lshl_or_b32 v{vVOFF}, v{vG}, 14, v{vVOFF}")
    for r in range(1, 4): e(f"v_add_u32 v{vVOFF+r}, {4096*r}, v{vVOFF}")
    e(f"s_lshr_b32 s{sJ0}, s{sJ0}, 16"); e(f"s_lshr_b32 s{sJ1}, s{sJ1}, 16")
    e(f"s_lshl_b32 s{sT2}, s{sB}, 11")
    e(f"s_sub_u32 s{sJ0}, s{sJ0}, s{sT2}"); e(f"s_sub_u32 s{sJ1}, s{sJ1}, s{sT2}")
    e(f"s_bfe_u32 s{sT2}, s{sT1}, 0x80008")
    e(f"s_cmp_eq_u32 s{sT2}, s{sT0}")
    e(f"s_cselect_b32 s{sT2}, s{sSH}, 0")
    e(f"s_cmp_eq_u32 s{sT2}, 1")
    e(f"s_cselect_b32 s{sJ1}, 4096, s{sJ1}")
    e(f"s_cmp_eq_u32 s{sSH}, 0")
    e(f"s_cselect_b32 s{sT2}, 3, 0")
    e(f"s_cselect_b32 s{sT3}, 7, 63")
    e(f"s_lshr_b32 s{sT0}, s{sJ0}, 4")
    e(f"v_and_b32 v{vCOL}, s{sT3}, v{vLANE}")
    e(f"v_add_u32 v{vCOL}, s{sT0}, v{vCOL}")
    e(f"v_lshrrev_b32 v{vT}, 3, v{vLANE}")
    e(f"v_and_b32 v{vT}, s{sT2}, v{vT}")
    e(f"v_or_b32 v{vT}, s{sB}, v{vT}")
    e(f"v_min_u32 v{vU}, 255, v{vCOL}")
    e(f"v_lshlrev_b32 v{vNR}, 2, v{vU}")
    e(f"v_add_u32 v{vNR}, {MISC}, v{vNR}")
    e(f"v_lshl_add_u32 v{vTAB}, v{vT}, 10, v{vNR}")
    e(f"v_lshlrev_b32 v{vCOL}, 4, v{vCOL}")
    e(f"v_add_u32 v{vF}, s{sWAVE}, v{vLANE}")
    e(f"v_and_b32 v{vF}, s{sT2}, v{vF}")
    e(f"v_or_b32 v{vF}, s{sB}, v{vF}")
    e(f"v_lshlrev_b32 v{vCTXG}, 2, v{vF}")
    e(f"v_add_u32 v{vCTXG}, {MISC}, v{vCTXG}")
    e(f"s_mov_b32 s{sCM}, {wds[0]:#x}")
    for s in range(1, 32):
        if wds[s] != wds[s - 1]:
            e(f"s_cmp_ge_u32 s{sSPL}, {s}"); e(f"s_cselect_b32 s{sCM}, {wds[s]:#x}, s{sCM}")
    e(f"s_lshl_b32 s{sT2}, s{sWAVE}, 3")
    e(f"s_lshr_b32 s{sCM}, s{sCM}, s{sT2}")
    e(f"s_bfe_u32 s{sROLE}, s{sCM}, 0x10004")
    e(f"s_bfe_u32 s{sPAIR}, s{sCM}, 0x20005")
    e(f"s_bfe_u32 s{sINX}, s{sCM}, 0x10007"); e(f"s_lshl_b32 s{sINX}, s{sINX}, 10")
    e(f"s_and_b32 s{sCM}, s{sCM}, 15")
    e(f"s_lshl_b32 s{sT2}, s{sH}, 5"); e(f"s_add_u32 s{sT2}, s{sT2}, s{sSPL}"); e(f"s_lshl_b32 s{sT2}, s{sT2}, 13")
    e(f"s_add_u32 s{sSLOT}, s{sWS}, s{sT2}"); e(f"s_addc_u32 s{sSLOT+1}, s{sWS+1}, 0")
    e(f"s_lshl_b32 s{sT2}, s{sPAIR}, 11"); e(f"s_add_u32 s{sT2}, s{sT2}, s{sINX}")
    e(f"v_lshl_add_u32 v{vL16}, v{vLANE}, 4, s{sT2}")
    e(f"v_lshl_add_u32 v{vPF}, v{vN}, 7, s{sT2}")
    e(f"s_mov_b32 s{sC}, {f2u(CF):#x}")
    e(f"s_mov_b32 s{sI}, 0")
    e(f"v_mov_b32 v{vNINF}, 0xff800000")
    e(f"v_mov_b32 v{vM}, {NEG:#x}"); e(f"v_mov_b32 v{vL}, 0")
    e(f"v_lshlrev_b32 v{vT}, 9, v{vN}"); e(f"v_add_u32 v{vT}, s{sM0A}, v{vT}")
    e(f"v_xor_b32 v{vU}, v{vG}, v{vN}")
    for k in range(4):
        e(f"v_xor_b32 v{vKRD+k}, {4*k}, v{vU}")
        e(f"v_lshl_add_u32 v{vKRD+k}, v{vKRD+k}, 4, v{vT}")
    e(f"v_and_b32 v{vT}, 1, v{vLANE}"); e(f"v_lshlrev_b32 v{vT}, 4, v{vT}")
    e(f"v_mov_b32 v{vU}, 0xffff"); e(f"v_lshlrev_b32 v{vT}, v{vT}, v{vU}")
    e(f"v_bfe_u32 v{vU}, v{vLANE}, 1, 2")
    for k in range(4):
        e(f"v_cmp_eq_u32 {sr(sMK+2*k)}, {k}, v{vU}")
    for k in range(0, 32, 2): e(f"v_mov_b64 {vr(vACC+k,2)}, 0")
    for k in range(4):
        e(f"v_cndmask_b32 v{vMSK+k}, 0, v{vT}, {sr(sMK+2*k)}")
    e(f"v_mov_b32 v{vT}, {LDS_Z}")
    e(f"ds_write_b128 v{vT}, {vr(vACC)}"); e(f"ds_write_b128 v{vT}, {vr(vACC)} offset:1024")
    e(f"v_lshlrev_b32 v{vLIM}, 4, v{vLANE}")
    for w in range(4):
        e(f"s_add_u32 s{sT2}, s{sWAVE}, {w}"); e(f"s_and_b32 s{sT2}, s{sT2}, 3")
        e(f"s_sub_u32 s{sT3}, s{sPAIR}, s{sT2}"); e(f"s_and_b32 s{sT3}, s{sT3}, 3")
        e(f"s_lshl_b32 s{sT2}, s{sT2}, 4"); e(f"s_add_u32 s{sT2}, s{sT2}, s{sT3}"); e(f"s_lshl_b32 s{sT2}, s{sT2}, 11")
        e(f"s_add_u32 s{sT2}, s{sT2}, s{sINX}")
        e(f"s_bitcmp1_b32 s{sCM}, {w}"); e(f"s_cselect_b64 vcc, -1, 0")
        e(f"v_add_u32 v{vU}, s{sT2}, v{vLIM}")
        e(f"v_cndmask_b32 v{vRA+w}, v{vT}, v{vU}, vcc")
    e(f"s_sub_u32 s{sT2}, s{sB}, s{sWAVE}"); e(f"s_and_b32 s{sT2}, s{sT2}, 3"); e(f"s_mul_i32 s{sT2}, s{sT2}, s{sSH}")
    e(f"s_lshl_b32 s{sT2}, s{sT2}, 11"); e(f"s_add_u32 s{sT2}, s{sT2}, s{sM0A}")
    e(f"v_add_u32 v{vDEP}, s{sT2}, v{vLIM}")
    e(f"v_mov_b32 v{vFA}, {LDS_F}")
    e(f"s_mov_b32 s{sFF}, 0xff")
    e(f"v_lshlrev_b32 v{vG4}, 2, v{vG}")
    e(f"s_cmp_eq_u32 s{sROLE}, 1")
    e(f"s_cselect_b64 {sr(sPFX)}, 0xff, 0xffff".replace("0xff, 0xffff", "0xff, -1"))
    e(f"s_and_b64 {sr(sPFX)}, {sr(sPFX)}, 0xffff")
    e(f"s_cmp_eq_u32 s{sCM}, 0")
    e(f"s_cselect_b64 {sr(sPFX)}, 1, {sr(sPFX)}")
    e(f"s_sub_u32 s{sT2}, 1, s{sSH}"); e(f"s_mul_i32 s{sT2}, s{sT2}, s{sWAVE}")
    e(f"v_add_u32 v{vT}, s{sT2}, v{vN}"); e(f"v_and_b32 v{vT}, 3, v{vT}")
    e(f"v_cmp_eq_u32 {sr(sOWN)}, v{vT}, v{vF}")
    e(f"v_lshrrev_b32 v{vU}, 3, v{vN}")
    e(f"v_lshl_add_u32 v{vT}, v{vT}, 1, v{vU}")
    e(f"s_lshl_b32 s{sT2}, s{sWAVE}, 2"); e(f"s_add_u32 s{sT2}, s{sT2}, {LDS_H}")
    e(f"v_lshl_add_u32 v{vHA}, v{vT}, 4, s{sT2}")
    e(f"v_lshl_add_u32 v{vT}, v{vF}, 1, v{vU}")
    e(f"v_lshlrev_b32 v{vHC}, 4, v{vT}"); e(f"v_add_u32 v{vHC}, {LDS_H}, v{vHC}")
    e(f"v_lshlrev_b32 v{vU}, 1, v{vT}"); e(f"v_xor_b32 v{vU}, v{vU}, v{vG}")
    e(f"v_lshlrev_b32 v{vT}, 9, v{vT}"); e(f"v_add_u32 v{vT}, {MISC}, v{vT}")
    for k in range(4):
        e(f"v_xor_b32 v{vA+4+k}, {4*k}, v{vU}")
        e(f"v_lshl_add_u32 v{vA+4+k}, v{vA+4+k}, 4, v{vT}")
    e("s_barrier")
    stamp(3)
    e(f"ds_read_b32 v{vTAB}, v{vTAB} offset:{LDS_T-MISC}")
    e(f"ds_read_b32 v{vNR}, v{vNR} offset:{LDS_T-MISC}")
    e(f"ds_read_b32 v{vCTXG}, v{vCTXG} offset:{LDS_C-MISC}")
    for i in range(8):
        e(f"ds_read_b128 {vr(vQF+4*i)}, v{vA+4+(i&3)} offset:{LDS_Q-MISC+256*(i>>2)}")
    e(f"v_max_u32 v{vT}, s{sJ0}, v{vCOL}")
    e(f"v_add_u32 v{vU}, 16, v{vCOL}")
    e("s_waitcnt lgkmcnt(8)")
    e(f"v_cmp_gt_i32 vcc, 1, v{vCTXG}")
    e(f"v_min_i32 v{vCTXG}, 4096, v{vCTXG}")
    e(f"v_cmp_ne_u32 {sr(sMK)}, v{vTAB}, v{vNR}")
    e("s_cbranch_vccnz L_zeroctx")
    e("L_zeroctx_ret:")
    e(f"v_readfirstlane_b32 s{sT1}, v{vCTXG}")
    e(f"v_min_u32 v{vTAB}, 639, v{vTAB}")
    e(f"v_lshlrev_b32 v{vTAB}, 4, v{vTAB}")
    e(f"v_sub_u32 v{vTAB}, v{vTAB}, v{vCOL}")
    e(f"s_cmp_eq_u32 s{sSH}, 0")
    e(f"s_cselect_b32 s{sT1}, 4096, s{sT1}")
    e(f"s_min_u32 s{sJ1}, s{sJ1}, s{sT1}")
    e(f"v_min_u32 v{vU}, s{sJ1}, v{vU}")
    e(f"s_lshl_b32 s{sT2}, s{sB}, 11")
    e(f"v_cmp_lt_u32 vcc, v{vT}, v{vU}")
    e(f"v_cmp_ne_u32 {sr(sMK+2)}, s{sT2}, v{vTAB}")
    e(f"s_sub_i32 s{sCNT}, s{sJ1}, s{sJ0}")
    e(f"s_cmp_lt_i32 s{sCNT}, 1")
    e("s_cbranch_scc1 L_respec")
    e(f"s_and_b64 {sr(sMK+2)}, {sr(sMK+2)}, vcc")
    e("s_cbranch_scc1 L_respec")
    e(f"v_lshl_add_u32 v{vT}, v{vLANE}, 4, s{sJ0}")
    e(f"s_add_u32 s{sCNT}, s{sCNT}, 15"); e(f"s_lshr_b32 s{sCNT}, s{sCNT}, 4")
    e(f"v_add_u32 v{vU}, 16, v{vT}")
    e(f"v_min_u32 v{vU}, s{sJ1}, v{vU}")
    e(f"v_add_u32 v{vTAB}, s{sT2}, v{vT}")
    e(f"v_add_u32 v{vNR}, s{sT2}, v{vU}")
    e(f"v_lshl_or_b32 v{vCOL}, v{vU}, 16, v{vT}")
    e(f"v_cmp_lt_u32 vcc, v{vT}, v{vU}")
    e(f"v_lshl_add_u32 v{vTAB}, v{vTAB}, 12, s{sH512}")
    e(f"v_lshlrev_b32 v{vNR}, 12, v{vNR}")
    e(f"v_cndmask_b32 v{vTAB}, 0, v{vTAB}, vcc")
    e(f"v_cndmask_b32 v{vNR}, 0, v{vNR}, vcc")
    e(f"s_mov_b32 s{sFB}, 0")
    e(f"v_mov_b32 v{vCTXE}, v{vCTXG}")
    descr()
    e("s_waitcnt lgkmcnt(0)")
    e("L_go:")
    def mask(u):
        e(f"s_lshr_b32 s{sT3}, s{TT[u]}, 16"); e(f"s_and_b32 s{sT2}, s{TT[u]}, 0xffff")
        e(f"v_min_u32 v{vLIM}, s{sT3}, v{vCTXE}")
        e(f"v_subrev_u32 v{vLIM}, s{sT2}, v{vLIM}")
        e(f"v_sub_u32 v{vLIM}, v{vLIM}, v{vG4}")
        for r in range(4): e(f"v_cmp_lt_i32 {sr(sMK+2*r)}, {r}, v{vLIM}")
        for r in range(4): e(f"v_cndmask_b32 v{vS+4*u+r}, v{vNINF}, v{vS+4*u+r}, {sr(sMK+2*r)}")
    for u in range(4):
        e(f"s_waitcnt vmcnt({8*(min(u+cfg.dep,6)-u-1)})")
        if u == 0: stamp(2)
        for i in range(8):
            e(f"ds_read_b128 {vr(vKF+4*i)}, v{vKRD+(i&3)} offset:{8192*u+256*(i>>2)}")
        block(u + cfg.dep)
        if u: mask(u - 1)
        for i in range(8):
            e(f"s_waitcnt lgkmcnt({7-i})")
            e(f"v_mfma_f32_16x16x32_bf16 {vr(vS+4*u)}, {vr(vKF+4*i)}, {vr(vQF+4*i)}, " + ("0" if i == 0 else vr(vS+4*u)))
        if u == cfg.tat: touches()
    e(f"v_max3_f32 v{vT}, v{vS}, v{vS+1}, v{vM}")
    for k in range(2, 12, 2): e(f"v_max3_f32 v{vT}, v{vS+k}, v{vS+k+1}, v{vT}")
    mask(3)
    for k in range(12, 16, 2): e(f"v_max3_f32 v{vT}, v{vS+k}, v{vS+k+1}, v{vT}")
    def cross(op, reg):
        for sw in ("v_permlane32_swap_b32", "v_permlane16_swap_b32"):
            e(f"v_mov_b32 v{vU}, v{reg}"); e("s_nop 1")
            e(f"{sw} v{reg}, v{vU}"); e("s_nop 0")
            e(f"{op} v{reg}, v{reg}, v{vU}")
    cross("v_max_f32", vT)
    e(f"s_cmp_eq_u32 s{sLAST}, 0"); e("s_cbranch_scc1 L_nox")
    e(f"v_mov_b32 v{vU}, {NEG:#x}")
    e(f"v_cndmask_b32 v{vU}, v{vU}, v{vT}, {sr(sOWN)}")
    e(f"ds_write_b32 v{vHA}, v{vU}")
    e("s_waitcnt lgkmcnt(0)")
    e("s_barrier")
    e(f"ds_read_b128 {vr(vA)}, v{vHC}")
    e("s_waitcnt lgkmcnt(0)")
    e(f"v_max3_f32 v{vT}, v{vA}, v{vA+1}, v{vA+2}")
    e(f"v_max_f32 v{vT}, v{vT}, v{vA+3}")
    e("s_branch L_nox")
    e(".p2align 12")
    stub("pr0")
    e("L_nox:")
    e(f"s_cmp_lg_u32 s{sI}, 0"); e("s_cbranch_scc1 L_rescale")
    e("L_rescale_ret:")
    e(f"v_mul_f32 v{vNMC}, s{sC}, v{vT}")
    e(f"v_mov_b32 v{vM}, v{vT}")
    for k in range(16): e(f"v_fma_f32 v{vS+k}, v{vS+k}, s{sC}, -v{vNMC}")
    for k in range(16): e(f"v_exp_f32 v{vS+k}, v{vS+k}")
    e(f"v_pk_add_f32 {vr(vA,2)}, {vr(vS,2)}, {vr(vS+2,2)}")
    for k in range(4, 16, 2): e(f"v_pk_add_f32 {vr(vA,2)}, {vr(vA,2)}, {vr(vS+k,2)}")
    for k in range(16): e(f"v_cvt_pk_bf16_f32 v{vS+k}, v{vS+k}, v{vS+k}")
    e(f"v_add_f32 v{vL}, v{vL}, v{vA}")
    e(f"v_add_f32 v{vL}, v{vL}, v{vA+1}")
    e(f"v_mov_b32 v{vT}, v{vL}")
    cross("v_add_f32", vT)
    e(f"v_cndmask_b32 v{vT}, 0, v{vT}, {sr(sOWN)}")
    e(f"ds_write_b32 v{vHA}, v{vT} offset:128")
    e(f"s_cmp_eq_u32 s{sLAST}, 0"); e("s_cbranch_scc1 L_nol")
    e("s_waitcnt lgkmcnt(0)")
    e("s_barrier")
    e("L_nol:")
    if cfg.mp2: e(f"s_setprio {cfg.mp2}")
    e(f"s_cmp_eq_u32 s{sSH}, 0")
    e("s_cbranch_scc1 L_sh_v")

    RD = vKF
    def reduce_():
        e(f"ds_read_b64 {vr(vW,2)}, v{vFA}")
        for w in range(1, 4):
            e(f"ds_read_b128 {vr(RD+8*w)}, v{vRA+w}")
            e(f"ds_read_b128 {vr(RD+8*w+4)}, v{vRA+w} offset:1024")
        e("s_waitcnt lgkmcnt(6)")
        e(f"v_cmp_eq_u32 vcc, 0, v{vW+1}")
        for w in range(1, 4):
            for hf in range(2):
                e(f"s_waitcnt lgkmcnt({7-2*w-hf})")
                for k in range(4*hf, 4*hf+4, 2): e(f"v_pk_add_f32 {vr(vACC+k,2)}, {vr(vACC+k,2)}, {vr(RD+8*w+k,2)}")
    def publish(fl):
        for k in range(0, 4, 2): e(f"v_bfi_b32 v{vACC+k}, s{sFF}, v{vW}, v{vACC+k}")
        e(f"global_store_dwordx4 v{vL16}, {vr(vACC)}, {sr(sSLOT)} {fl}")
        for k in range(4, 8, 2): e(f"v_bfi_b32 v{vACC+k}, s{sFF}, v{vW}, v{vACC+k}")
        e(f"global_store_dwordx4 v{vL16}, {vr(vACC+4)}, {sr(sSLOT)} offset:1024 {fl}")
    def fin():
        if cfg.b3 == 1 and dbg: e("s_barrier")
        if dbg: e("s_branch L_fin")
        else: e("s_endpgm")

    def vphase(tag, pairs, stubs):
        shared = len(pairs) > 1
        ab = lambda n: (vA if n % 2 == 0 else vKF) if shared else vA + 4 * (n & 1)
        def areg(n, p):
            return vVF + 4 * (n - 12) if shared and p == 0 and n >= cfg.defer else ab(n) + 4 * p
        def andop(n, p, k):
            if shared: e(f"v_and_b32_dpp v{areg(n,p)+k}, v{vS+n}, v{vMSK+k} quad_perm:[{p},{p},{p},{p}] row_mask:0xf bank_mask:0xf")
            else: e(f"v_and_b32 v{ab(n)+k}, v{vS+n}, v{vMSK+k}")
        e(f"L_{tag}_v:")
        for p in pairs:
            for k in range(4): andop(0, p, k)
        lag = cfg.lag[1 if shared else 0]
        q = list(range(8))
        for u in range(4):
            if u in stubs:
                e(f"s_branch L_{tag}_u{u}"); stub(stubs[u]); e(f"L_{tag}_u{u}:")
            for r in range(4):
                n = 4 * u + r
                if n == cfg.pfn:
                    e(f"s_mov_b64 exec, {sr(sPFX)}")
                    e(f"global_load_dword v{vJUNK}, v{vPF}, {sr(sSLOT)} {cfg.pff}")
                    e("s_mov_b64 exec, -1")
                    q.append("p")
                isred = False
                if isred:
                    e(f"s_cmp_eq_u32 s{sT0}, 0"); e("s_cbranch_scc1 L_nored")
                    e("s_waitcnt lgkmcnt(0)")
                    e("s_barrier")
                    stamp(5)
                    reduce_()
                    e("L_nored:")
                e(f"s_waitcnt vmcnt({sum(1 if x == 'p' else 2 for x in q[q.index(n)+1:])})")
                if n == 0 or isred: e("s_nop 0")
                todo = [(p, k) for p in pairs for k in range(4)] if n < 15 else []
                order = [(hf, p) for hf in range(2) for p in pairs]
                if shared and n >= cfg.defer: order = [x for x in order if x[1]]
                if shared and n + 1 >= cfg.defer: todo = todo[4:] + todo[:4]
                per = -(-len(todo) // len(order))
                for hf, p in order:
                    e(f"v_mfma_f32_16x16x32_bf16 {vr(vACC+8*p+4*hf)}, {vr(areg(n,p))}, {vr(vVF+32*(u&1)+8*r+4*hf)}, {vr(vACC+8*p+4*hf)}")
                    for pk in todo[:per]: andop(n + 1, *pk)
                    todo = todo[per:]
                m = n + 8 - lag
                if 8 <= m < 16:
                    if m % 4 == 0: e(f"s_mov_b32 s{sVSRD+2}, s{sNRS+(m>>2)}")
                    vload(m >> 2, m & 3, 0); vload(m >> 2, m & 3, 1)
                    q.append(m)
                elif n < 15 and not shared: e("s_nop 0")
        stamp(4)

    vphase("pr", [0], {2: "pr1"})
    e(f"s_cmp_eq_u32 s{sLAST}, 0"); e("s_cbranch_scc1 L_next")
    e(f"s_cmp_eq_u32 s{sROLE}, 0")
    e("s_nop 3")
    e(f"ds_write_b128 v{vDEP}, {vr(vACC)}")
    e(f"ds_write_b128 v{vDEP}, {vr(vACC+4)} offset:1024")
    e("s_waitcnt lgkmcnt(0)")
    e("s_barrier")
    stamp(5)
    e("s_cbranch_scc1 L_pr_old")
    for w in range(4): e(f"ds_read_b128 {vr(vKF+4*w)}, v{vRA+w}")
    e(f"ds_read_b64 {vr(vW,2)}, v{vFA}")
    e("s_waitcnt lgkmcnt(3)")
    for k in (0, 2): e(f"v_pk_add_f32 {vr(vKF+k,2)}, {vr(vKF+k,2)}, {vr(vKF+4+k,2)}")
    e("s_waitcnt lgkmcnt(0)")
    e(f"v_cmp_eq_u32 vcc, 0, v{vW+1}")
    for k in (0, 2): e(f"v_pk_add_f32 {vr(vKF+8+k,2)}, {vr(vKF+8+k,2)}, {vr(vKF+12+k,2)}")
    for k in (0, 2): e(f"v_pk_add_f32 {vr(vKF+k,2)}, {vr(vKF+k,2)}, {vr(vKF+8+k,2)}")
    for k in (0, 2): e(f"v_bfi_b32 v{vKF+k}, s{sFF}, v{vW}, v{vKF+k}")
    e("s_cbranch_vccnz L_pr_safe")
    e(f"global_store_dwordx4 v{vL16}, {vr(vKF)}, {sr(sSLOT)} {cfg.dst}")
    stamp(6)
    fin()
    e("L_pr_safe:")
    e(f"global_store_dwordx4 v{vL16}, {vr(vKF)}, {sr(sSLOT)} sc0 sc1")
    stamp(6)
    e("L_fin2:")
    fin()
    e("L_pr_old:")
    e(f"s_cmp_eq_u32 s{sCM}, 0"); e("s_cbranch_scc1 L_fin2")
    e(f"ds_read_b128 {vr(vACC)}, v{vRA}")
    e(f"ds_read_b128 {vr(vACC+4)}, v{vRA} offset:1024")
    e("s_branch L_reduce")

    nsh = [s for s in range(32) if any(seg_of_wave[4*s+w] < 0 for w in range(4))]
    assert nsh == list(range(len(nsh)))
    a = len(nsh)
    lo = []; hi = []
    for p in range(4):
        sl = [s for s in range(32) if any(seg_of_wave[4*s+w] == p for w in range(4)) and s >= a]
        assert sl == list(range(sl[0], sl[-1] + 1)) and 13 <= a + len(sl) <= 16, (p, sl)
        lo.append(sl[0]); hi.append(sl[-1] + 1)
    D, H, DA, HA, CL = vQF, vQF + 16, vKF, vKF + 4, vVF
    e("L_helper:")
    e(f"s_getreg_b32 s{sT1}, hwreg(HW_REG_XCC_ID, 0, 4)")
    e(f"s_sub_u32 s{sT3}, s{sT3}, 1024")
    e(f"v_and_b32 v{vT}, 31, v{vLANE}")
    e(f"v_lshl_add_u32 v{vCOL}, v{vT}, 2, s{sT3}")
    e(f"s_lshl_b32 s{sT2}, s{sSPL}, 2"); e(f"s_add_u32 s{sT2}, s{sT2}, s{sT3}")
    e(f"v_mov_b32 v{vU}, s{sT2}")
    e("s_waitcnt lgkmcnt(0)")
    e(f"s_add_u32 s{sTAG}, s{sTAG}, 1")
    e(f"s_and_b32 s{sB}, s{sTAG}, 0xfffffff"); e(f"s_lshl_b32 s{sT1}, s{sT1}, 28"); e(f"s_or_b32 s{sB}, s{sB}, s{sT1}")
    e(f"v_mov_b32 v{vT}, s{sB}")
    e("s_mov_b64 exec, 1")
    e(f"global_store_dword v{vU}, v{vT}, {sr(sWS)}")
    e("s_mov_b64 exec, -1")
    e("s_waitcnt vmcnt(1)")
    e("s_barrier")
    stamp(3)
    e("s_setprio 0")
    if cfg.touch: e("s_branch T_pr0")
    e("L_htouch_ret:")
    e(f"s_and_b32 s{sT8}, s{sTAG}, 0xff")
    e(f"s_mov_b32 s{sFF}, 0xff")
    e(f"v_mov_b32 v{vW}, s{sTAG}")
    e(f"v_mov_b32 v{vFA}, {LDS_F}")
    rows = [sum(3 << (2 * p) for p in range(4) if (cms[t] >> (4 * p)) & 15) for t in range(32)]
    e(f"s_mov_b32 s{sOWN}, {rows[0]}"); e(f"s_mov_b32 s{sOWN+1}, 0")
    for t in range(1, 32):
        if rows[t] != rows[t - 1]:
            e(f"s_cmp_ge_u32 s{sSPL}, {t}"); e(f"s_cselect_b32 s{sOWN}, {rows[t]}, s{sOWN}")
    e(f"v_and_b32 v{vT}, 7, v{vLANE}")
    e(f"v_lshlrev_b32 v{vHR}, 4, v{vT}"); e(f"v_add_u32 v{vHR}, {LDS_H}, v{vHR}")
    e(f"s_lshl_b32 s{sT2}, s{sH}, 8"); e(f"s_add_u32 s{sT2}, s{sT2}, s{sSPL}"); e(f"s_lshl_b32 s{sT2}, s{sT2}, 4"); e(f"s_add_u32 s{sT2}, s{sT2}, {HDR}")
    e(f"v_lshl_add_u32 v{vGH}, v{vT}, 9, s{sT2}")
    e(f"s_mov_b32 s{sC}, {f2u(CF):#x}")
    e(f"s_lshl_b32 s{sT2}, s{sH}, 18")
    e(f"s_add_u32 s{sHB}, s{sWS}, s{sT2}"); e(f"s_addc_u32 s{sHB+1}, s{sWS+1}, 0")
    e(f"v_bfe_u32 v{vG}, v{vLANE}, 2, 2")
    e(f"v_lshrrev_b32 v{vN}, 4, v{vLANE}"); e(f"v_and_b32 v{vAL}, 3, v{vLANE}")
    e(f"v_lshl_or_b32 v{vN}, v{vN}, 2, v{vAL}")
    e(f"s_lshr_b32 s{sT0}, s{sSPL}, 3")
    lop = sum((lo[p] - a) << (8 * p) for p in range(4)); hip_ = sum(hi[p] << (8 * p) for p in range(4))
    e(f"s_lshl_b32 s{sT1}, s{sT0}, 3")
    e(f"s_lshr_b32 s{sT2}, {lop:#x}, s{sT1}"); e(f"s_and_b32 s{sT2}, s{sT2}, 0xff")
    e(f"s_lshr_b32 s{sT3}, {hip_:#x}, s{sT1}"); e(f"s_and_b32 s{sT3}, s{sT3}, 0xff")
    e(f"s_lshl_b32 s{sI}, s{sT0}, 11")
    e(f"s_bfe_u32 s{sINX}, s{sSPL}, 0x10001"); e(f"s_lshl_b32 s{sCOL}, s{sINX}, 10"); e(f"s_add_u32 s{sI}, s{sI}, s{sCOL}")
    e(f"s_bfe_u32 s{sCNT}, s{sSPL}, 0x10002"); e(f"s_lshl_b32 s{sCOL}, s{sCNT}, 9"); e(f"s_add_u32 s{sI}, s{sI}, s{sCOL}")
    e(f"s_and_b32 s{sSOFF}, s{sSPL}, 1"); e(f"s_lshl_b32 s{sCOL}, s{sSOFF}, 7"); e(f"s_add_u32 s{sI}, s{sI}, s{sCOL}")
    e(f"v_and_b32 v{vT}, 7, v{vN}"); e(f"v_lshrrev_b32 v{vU}, 3, v{vN}")
    e(f"v_lshlrev_b32 v{vL}, 4, v{vT}"); e(f"v_lshl_add_u32 v{vL}, v{vU}, 8, v{vL}"); e(f"v_add_u32 v{vL}, s{sI}, v{vL}")
    def slot_of(idxreg, mask):
        e(f"v_add_u32 v{vF}, s{sT2}, v{idxreg}")
        e(f"v_cmp_gt_u32 vcc, {a}, v{idxreg}"); e("s_nop 1")
        e(f"v_cndmask_b32 v{idxreg}, v{vF}, v{idxreg}, vcc")
        e(f"v_cmp_gt_u32 {sr(mask)}, s{sT3}, v{idxreg}")
    for k in range(4):
        e(f"v_add_u32 v{vM}, {4*k}, v{vG}")
        if 4 * k + 3 >= a:
            slot_of(vM, sEX + 2 * k)
            for dd in (D, vACC, vACC + 16)[:cfg.pipe]:
                for j in range(4): e(f"v_mov_b32 v{dd+4*k+j}, " + (f"s{sT8}" if j % 2 == 0 else "0"))
        e(f"v_lshl_add_u32 v{DA+k}, v{vM}, 13, v{vL}")
    e(f"v_lshl_add_u32 v{vM}, v{vAL}, 2, v{vG}")
    slot_of(vM, sLM)
    e(f"s_lshl_b32 s{sCOL}, s{sH}, 3"); e(f"s_lshr_b32 s{sI}, s{sSPL}, 2"); e(f"s_add_u32 s{sCOL}, s{sCOL}, s{sI}")
    e(f"s_lshl_b32 s{sCOL}, s{sCOL}, 9"); e(f"s_add_u32 s{sCOL}, s{sCOL}, {HDR}")
    e(f"v_lshl_add_u32 v{HA}, v{vM}, 4, s{sCOL}")
    if cfg.gate is not None:
        e(f"v_readfirstlane_b32 s{sCOL}, v{vL}"); e("s_nop 1")
        e(f"v_lshl_add_u32 v{HA+1}, v{vM}, 13, s{sCOL}")
    e(f"v_mov_b32 v{H}, {NEG:#x}"); e(f"v_mov_b32 v{H+1}, 0"); e(f"v_mov_b32 v{H+2}, 0")
    e(f"s_lshl_b32 s{sI}, s{sT0}, 13"); e(f"s_lshl_b32 s{sCOL}, s{sH}, 10"); e(f"s_add_u32 s{sI}, s{sI}, s{sCOL}")
    e(f"s_lshl_b32 s{sCOL}, s{sCNT}, 9"); e(f"s_add_u32 s{sI}, s{sI}, s{sCOL}")
    e(f"s_and_b32 s{sCOL}, s{sSPL}, 3"); e(f"s_lshl_b32 s{sCOL}, s{sCOL}, 7"); e(f"s_add_u32 s{sI}, s{sI}, s{sCOL}")
    e(f"v_lshlrev_b32 v{vT}, 4, v{vT}"); e(f"v_lshl_add_u32 v{vT}, v{vU}, 3, v{vT}"); e(f"v_add_u32 v{vLIM}, s{sI}, v{vT}")
    e(f"s_mov_b32 s{sJ0}, {cfg.spin}")
    e(f"v_mov_b32 v{vJUNK}, 0")
    e(f"s_mov_b32 s{sT2}, {cfg.hello_tries}")
    e(f"v_mov_b32 v{vW+1}, 1")
    e(f"s_mov_b64 exec, {sr(sLM)}")
    e(f"global_load_dwordx4 {vr(H)}, v{HA}, {sr(sWS)} sc1")
    e("s_mov_b64 exec, 1")
    e(f"global_load_dword v{vF}, v{DA}, {sr(sHB)} sc1 nt")
    if cfg.owarm == 1: e(f"global_load_dword v{vF}, v{vLIM}, {sr(sOUT)} {cfg.owf}")
    e("s_mov_b64 exec, -1")
    e("s_waitcnt vmcnt(0)")
    e(f"global_load_dword v{vU}, v{vCOL}, {sr(sWS)} sc1")
    e("s_barrier")
    e("s_barrier")
    e(f"ds_read_b128 {vr(vA)}, v{vHR}")
    e(f"ds_read_b128 {vr(vA+4)}, v{vHR} offset:128")
    e("s_waitcnt lgkmcnt(0)")
    e(f"v_max3_f32 v{vHG}, v{vA}, v{vA+1}, v{vA+2}")
    e(f"v_pk_add_f32 {vr(vA+4,2)}, {vr(vA+4,2)}, {vr(vA+6,2)}")
    e(f"v_max_f32 v{vHG}, v{vHG}, v{vA+3}")
    e(f"v_add_f32 v{vHG+1}, v{vA+4}, v{vA+5}")
    e(f"v_lshlrev_b32 v{vHG+2}, 8, v{vHG}"); e(f"v_mov_b32 v{vHG+3}, v{vW}")
    for k in range(3): e(f"v_bfi_b32 v{vHG+k}, s{sFF}, v{vW}, v{vHG+k}")
    e("s_branch L_hello1")
    e("L_hello:")
    e(f"global_load_dword v{vU}, v{vCOL}, {sr(sWS)} sc1")
    e("L_hello1:")
    e("s_waitcnt vmcnt(0)")
    e(f"v_cmp_ne_u32 vcc, s{sB}, v{vU}")
    e(f"s_sub_u32 s{sT2}, s{sT2}, 1")
    if not cfg.force_safe: e("s_cbranch_vccz L_hello_ok")
    e("s_cbranch_scc0 L_hello")
    e(f"v_mov_b32 v{vW+1}, 0")
    e(f"s_mov_b32 s{sSH}, 0")
    e(f"s_mov_b64 exec, {sr(sOWN)}")
    e(f"global_store_dwordx4 v{vGH}, {vr(vHG)}, {sr(sWS)} sc0 sc1")
    e("s_branch L_hello_done")
    e("L_hello_ok:")
    e(f"s_mov_b32 s{sSH}, 1")
    e(f"s_mov_b64 exec, {sr(sOWN)}")
    e(f"global_store_dwordx4 v{vGH}, {vr(vHG)}, {sr(sWS)}")
    e(f"s_cmp_lg_u32 s{sSPL}, 0"); e("s_cbranch_scc1 L_hello_done")
    e("s_mov_b64 exec, 1")
    e(f"global_store_dword v{vCOL}, v{vW}, {sr(sWS)} offset:1024")
    e("L_hello_done:")
    e(f"s_mov_b64 exec, {sr(sLM)}")
    e(f"ds_write_b64 v{vFA}, {vr(vW,2)}")
    if cfg.hwait: e("s_waitcnt vmcnt(0)")
    if cfg.owarm == 2: e(f"global_load_dword v{vF}, v{vLIM}, {sr(sOUT)} {cfg.owf}")
    e(f"global_load_dwordx4 {vr(H)}, v{HA}, {sr(sWS)} sc1")
    stamp(2)
    if cfg.hp2: e(f"s_setprio {cfg.hp2}")
    e("s_waitcnt lgkmcnt(0)")
    e("s_barrier")
    stamp(5)
    DS = [D, vACC, vACC + 16]
    def dloads(skip, D=D):
        for k in range(4):
            if skip:
                e(f"s_cmp_eq_u64 {sr(sMK+2*k)}, 0"); e(f"s_cbranch_scc1 L_dk{k}")
            if 4 * k + 3 >= a: e(f"s_mov_b64 exec, {sr(sEX+2*k)}")
            elif k == 0 and not skip: e("s_mov_b64 exec, -1")
            e(f"global_load_dwordx4 {vr(D+4*k)}, v{DA+k}, {sr(sHB)} {cfg.dld}")
            if skip: e(f"L_dk{k}:")
    if cfg.nopoll: e("s_branch L_fin")
    e("s_branch L_poll1")
    e("L_poll:")
    e(f"global_load_dwordx4 {vr(H)}, v{HA}, {sr(sWS)} sc1")
    e(f"s_sub_u32 s{sJ0}, s{sJ0}, 1"); e("s_cbranch_scc1 L_fin")
    e("L_poll1:")
    e("s_waitcnt vmcnt(0)")
    e(f"v_bitop3_b32 v{vA}, v{H}, v{H+1}, s{sTAG} bitop3:0x7e")
    e(f"v_xor_b32 v{vA+1}, s{sTAG}, v{H+3}")
    e(f"v_bitop3_b32 v{vA}, v{vA}, v{H+2}, s{sTAG} bitop3:0xf6")
    e(f"v_and_or_b32 v{vA}, v{vA}, s{sFF}, v{vA+1}")
    e(f"v_cmp_ne_u32 vcc, 0, v{vA}")
    e("s_cbranch_vccnz L_poll")
    if cfg.gate is not None:
        e(f"s_and_b32 exec_lo, s{sLM}, 0xffff"); e("s_mov_b32 exec_hi, 0")
        e("L_gate:")
        e(f"global_load_dword v{vA}, v{HA+1}, {sr(sHB)} sc1")
        e(f"s_sub_u32 s{sJ0}, s{sJ0}, 1"); e("s_cbranch_scc1 L_fin")
        e("s_waitcnt vmcnt(0)")
        e(f"v_and_b32 v{vA}, 0xff, v{vA}")
        e(f"v_cmp_ne_u32 vcc, s{sT8}, v{vA}")
        e("s_nop 1")
        e(f"s_bcnt1_i32_b32 s{sT2}, vcc_lo")
        e(f"s_cmp_gt_u32 s{sT2}, {cfg.gate}"); e("s_cbranch_scc1 L_gate")
    if not cfg.b3: dloads(False)
    e("s_mov_b64 exec, -1")
    dpp = ["quad_perm:[1,0,3,2]", "quad_perm:[2,3,0,1]", "row_ror:4", "row_ror:8"]
    e(f"v_lshrrev_b32 v{vM}, 8, v{H+2}")
    e(f"v_bfi_b32 v{vM}, s{sFF}, v{vM}, v{H}")
    e(f"v_and_b32 v{vL}, 0xffffff00, v{H+1}")
    e("s_nop 0")
    e(f"v_max_f32_dpp v{vT}, v{vM}, v{vM} {dpp[0]} row_mask:0xf bank_mask:0xf")
    for x in dpp[1:]:
        e("s_nop 1")
        e(f"v_max_f32_dpp v{vT}, v{vT}, v{vT} {x} row_mask:0xf bank_mask:0xf")
    e(f"v_sub_f32 v{vM}, v{vM}, v{vT}")
    e(f"v_mul_f32 v{vM}, s{sC}, v{vM}")
    e(f"v_exp_f32 v{vM}, v{vM}")
    e("s_nop 0")
    e(f"v_mul_f32 v{vL}, v{vL}, v{vM}")
    for x in dpp:
        e("s_nop 1")
        e(f"v_add_f32_dpp v{vL}, v{vL}, v{vL} {x} row_mask:0xf bank_mask:0xf")
    if cfg.b3:
        if cfg.b3 == 1: e("s_barrier")
        dloads(False); e("s_mov_b64 exec, -1")
    e(f"v_rcp_f32 v{vL}, v{vL}")
    e("s_nop 0")
    e(f"v_mul_f32 v{vM}, v{vM}, v{vL}")
    e("s_nop 1")
    for k in range(4):
        e(f"v_mov_b32_dpp v{vA+8+2*k}, v{vM} quad_perm:[{k},{k},{k},{k}] row_mask:0xf bank_mask:0xf")
    def check(D):
        for k in range(4):
            e(f"v_bitop3_b32 v{CL+k}, v{D+4*k}, v{D+4*k+2}, s{sTAG} bitop3:0x7e")
        e(f"v_or3_b32 v{CL}, v{CL}, v{CL+1}, v{CL+2}")
        e(f"v_bitop3_b32 v{CL}, v{CL}, v{CL+3}, s{sFF} bitop3:0xa8")
        e(f"v_cmp_ne_u32 vcc, 0, v{CL}")
    def final(D):
        stamp(7)
        for k in range(4):
            for j in (0, 2): e(f"v_xor_b32 v{D+4*k+j}, s{sT8}, v{D+4*k+j}")
            for j in range(0, 4, 2):
                if k == 0: e(f"v_pk_mul_f32 {vr(vA+j,2)}, {vr(D+j,2)}, {vr(vA+8,2)} op_sel_hi:[1,0]")
                else: e(f"v_pk_fma_f32 {vr(vA+j,2)}, {vr(D+4*k+j,2)}, {vr(vA+8+2*k,2)}, {vr(vA+j,2)} op_sel_hi:[1,0,1]")
        e("s_nop 0")
        for ror in (4, 8):
            for j in range(4):
                e(f"v_add_f32_dpp v{vA+j}, v{vA+j}, v{vA+j} row_ror:{ror} row_mask:0xf bank_mask:0xf")
        e("s_mov_b32 exec_lo, 0x000f000f"); e("s_mov_b32 exec_hi, 0x000f000f")
        e(f"v_cvt_pk_bf16_f32 v{vS}, v{vA}, v{vA+1}")
        e(f"v_cvt_pk_bf16_f32 v{vS+1}, v{vA+2}, v{vA+3}")
        e(f"global_store_dwordx2 v{vLIM}, {vr(vS,2)}, {sr(sOUT)} {cfg.out_flags}")
    n = cfg.pipe
    for i in range(1, n):
        dloads(False, DS[i]); e("s_mov_b64 exec, -1")
    e("L_data:")
    for i in range(n):
        e(f"s_waitcnt vmcnt({4*(n-1)})")
        check(DS[i])
        e(f"s_cbranch_vccz L_final{i}")
        dloads(False, DS[i]); e("s_mov_b64 exec, -1")
    e(f"s_sub_u32 s{sJ0}, s{sJ0}, 1"); e("s_cbranch_scc0 L_data")
    e("s_branch L_fin")
    for i in range(n):
        e(f"L_final{i}:")
        final(DS[i])
        if i < n - 1: e("s_branch L_post")
    e("L_post:")
    e(f"s_or_b32 s{sT2}, s{sSH}, s{sSPL}"); e("s_cbranch_scc1 L_fin")
    e("s_mov_b64 exec, -1")
    firstp = [min(p for p in range(4) if (cms[t] >> (4 * p)) & 15) for t in range(32)]
    e(f"v_and_b32 v{vT}, 31, v{vLANE}")
    e(f"s_lshl_b32 s{sT2}, s{sH}, 12"); e(f"s_add_u32 s{sT2}, s{sT2}, {HDR + 12 + 1024 * firstp[0]}")
    e(f"v_lshl_add_u32 v{vU}, v{vT}, 4, s{sT2}")
    for t in range(1, 32):
        if firstp[t] != firstp[t - 1]:
            e(f"v_cmp_le_u32 vcc, {t}, v{vT}")
            e(f"v_add_u32 v{vF}, {1024 * (firstp[t] - firstp[t-1])}, v{vU}")
            e("s_nop 0")
            e(f"v_cndmask_b32 v{vU}, v{vU}, v{vF}, vcc")
    e("L_ep:")
    e(f"s_sub_u32 s{sJ0}, s{sJ0}, 1"); e("s_cbranch_scc1 L_fin")
    e(f"global_load_dword v{vF}, v{vU}, {sr(sWS)} sc1")
    e("s_waitcnt vmcnt(0)")
    e(f"v_cmp_ne_u32 vcc, s{sTAG}, v{vF}")
    e("s_nop 1")
    e("s_cbranch_vccnz L_ep")
    e("s_mov_b64 exec, 1")
    e(f"global_store_dword v{vCOL}, v{vW}, {sr(sWS)} offset:1024")
    e("L_fin:")
    if cfg.probe:
        k, mult = cfg.probe
        if k == 8:
            e("s_waitcnt vmcnt(0)"); e(f"s_memrealtime {sr(sST+2)}"); k = 1
        e("s_waitcnt lgkmcnt(0)")
        if k == -2:
            e(f"s_mov_b32 s{sT0}, 0")
            e(f"s_getreg_b32 s{sT1}, hwreg(HW_REG_XCC_ID, 0, 4)")
            e(f"s_lshl_b32 s{sT1}, s{sT1}, 8"); e(f"s_add_u32 s{sT1}, s{sT1}, s{sSPL}"); e(f"s_add_u32 s{sT1}, s{sT1}, s{sWAVE}")
            e(f"s_cmp_lg_u32 s{sT1}, 0x400"); e("s_cbranch_scc1 L_pskip")
            for _ in range(6): e("s_sleep 127")
            e(f"s_getpc_b64 {sr(sEX)}")
            e("L_pc:")
            e(f"s_sub_u32 s{sEX}, s{sEX}, L_pc-{NAME}+0x3000"); e(f"s_subb_u32 s{sEX+1}, s{sEX+1}, 0")
            e("s_mov_b64 exec, 1")
            e(f"v_mov_b32 v{vT}, 0x100"); e(f"global_load_dword v{vU}, v{vT}, {sr(sEX)} sc1"); e("s_waitcnt vmcnt(0)")
            for blk, sgn in ((0x200, "s_add_u32"), (0x2200, "s_sub_u32")):
                for j in range(6):
                    e(f"v_mov_b32 v{vT}, {blk + 256*j}")
                    e(f"s_memtime {sr(sMK)}"); e("s_waitcnt lgkmcnt(0)")
                    e(f"global_load_dword v{vU}, v{vT}, {sr(sEX)} sc1"); e("s_waitcnt vmcnt(0)")
                    e(f"s_memtime {sr(sMK+2)}"); e("s_waitcnt lgkmcnt(0)")
                    e(f"s_sub_u32 s{sT1}, s{sMK+2}, s{sMK}"); e(f"{sgn} s{sT0}, s{sT0}, s{sT1}")
            e(f"s_cmp_lt_i32 s{sT0}, 0"); e(f"s_cselect_b32 s{sT0}, 1500, 0"); e(f"s_add_u32 s{sT0}, s{sT0}, 500")
            e("L_pskip:")
        elif k > 0:
            e(f"s_sub_u32 s{sT0}, s{sST+2*k}, s{sST}")
            e(f"s_cmp_gt_u32 s{sT0}, 3000"); e(f"s_cselect_b32 s{sT0}, 0, s{sT0}")
            e(f"s_mul_i32 s{sT0}, s{sT0}, {mult}")
        else:
            e(f"s_mov_b32 s{sT0}, 0")
        e(f"s_add_u32 s{sT0}, s{sT0}, 4000")
        e("L_probe:")
        e("s_sleep 8")
        e(f"s_memrealtime {sr(sMK)}"); e("s_waitcnt lgkmcnt(0)")
        e(f"s_sub_u32 s{sT1}, s{sMK}, s{sST}")
        e(f"s_cmp_lt_u32 s{sT1}, s{sT0}"); e("s_cbranch_scc1 L_probe")
    if cfg.stamps:
        e("s_mov_b64 exec, -1")
        e("s_waitcnt vmcnt(0)")
        e(f"s_memrealtime {sr(sMK)}")
        e("s_waitcnt lgkmcnt(0)")
        e(f"s_min_u32 s{sWAVE}, s{sWAVE}, 4")
        e(f"s_lshl_b32 s{sT2}, s2, 4"); e(f"s_add_u32 s{sT2}, s{sT2}, s{sWAVE}"); e(f"s_lshl_b32 s{sT2}, s{sT2}, 6")
        e(f"s_add_u32 s{sT2}, s{sT2}, 0x8000000")
        e(f"v_mov_b32 v{vT}, s{sT2}")
        e(f"s_getreg_b32 s{sT3}, hwreg(HW_REG_XCC_ID)")
        for k in range(8): e(f"v_mov_b32 v{vKF+k}, s{sST+2*k}")
        e(f"v_mov_b32 v{vKF+8}, s{sMK}"); e(f"v_mov_b32 v{vKF+9}, s{sT3}"); e(f"v_mov_b32 v{vKF+10}, 0x12345678"); e(f"v_mov_b32 v{vKF+11}, s{sJ0}")
        for k in range(3):
            e(f"global_store_dwordx4 v{vT}, {vr(vKF+4*k)}, {sr(sWS)} offset:{16*k}")
    e("s_endpgm")
    e(".p2align 12")
    stub("sh0")
    vphase("sh", [0, 1, 2, 3], {1: "sh1", 2: "sh2", 3: "sh3"})
    assert 12 <= cfg.defer <= 15
    own = [f"v_mfma_f32_16x16x32_bf16 {vr(vACC+4*hf)}, {vr(vVF+4*(n-12))}, {vr(vVF+32+8*(n&3)+4*hf)}, {vr(vACC+4*hf)}" for n in range(cfg.defer, 16) for hf in range(2)]
    for x in own[:2]: e(x)
    e(f"s_cmp_eq_u32 s{sLAST}, 0")
    for hf in range(2):
        for p in range(1, 4):
            e(f"ds_write_b128 v{vDEP}, {vr(vACC+8*p+4*hf)} offset:{2048*p+1024*hf}")
    for x in own[2:]: e(x)
    e("s_cbranch_scc1 L_next")
    e("s_waitcnt lgkmcnt(0)")
    e("s_barrier")
    stamp(5)
    e("L_reduce:")
    reduce_()
    e("s_cbranch_vccnz L_pubsafe")
    publish(cfg.dst)
    stamp(6)
    fin()
    e("L_pubsafe:")
    publish("sc0 sc1")
    stamp(6)
    fin()
    e("L_respec:")
    e(f"v_max_u32 v{vU}, v{vU}, v{vT}")
    e(f"v_add_u32 v{vNR}, v{vTAB}, v{vU}")
    e(f"v_add_u32 v{vTAB}, v{vTAB}, v{vT}")
    e(f"v_lshlrev_b32 v{vNR}, 12, v{vNR}")
    e(f"v_lshl_add_u32 v{vTAB}, v{vTAB}, 12, s{sH512}")
    e(f"v_lshl_or_b32 v{vCOL}, v{vU}, 16, v{vT}")
    e(f"v_cndmask_b32 v{vTAB}, 0, v{vTAB}, vcc")
    e(f"v_cndmask_b32 v{vNR}, 0, v{vNR}, vcc")
    e(f"s_and_b32 s{sFB}, s{sMK}, vcc_lo")
    e(f"s_add_u32 s{sCNT}, s{sJ1}, 15"); e(f"s_lshr_b32 s{sCNT}, s{sCNT}, 4")
    e(f"s_sub_i32 s{sCNT}, s{sCNT}, s{sT0}"); e(f"s_max_i32 s{sCNT}, s{sCNT}, 1")
    e(f"s_cmp_eq_u32 s{sSH}, 1")
    e(f"s_cselect_b32 s{sFB}, 0, s{sFB}")
    e(f"s_cmp_lg_u32 s{sFB}, 0")
    e(f"s_cselect_b32 s{sCNT}, 32, s{sCNT}")
    e(f"s_mov_b32 s{sI}, -4")
    e("L_next:")
    e(f"s_add_u32 s{sI}, s{sI}, 4")
    e(f"s_lshr_b32 s{sT2}, s{sI}, 3")
    e(f"v_cmp_eq_u32 vcc, s{sT2}, v{vF}")
    e(f"s_cmp_eq_u32 s{sFB}, 0")
    e("s_nop 3")
    e("s_cselect_b64 vcc, -1, vcc")
    e(f"v_cndmask_b32 v{vCTXE}, 0, v{vCTXG}, vcc")
    descr()
    e("s_waitcnt vmcnt(0) lgkmcnt(0)")
    e("s_nop 4")
    for u in range(cfg.dep): kblock(u)
    e("s_branch L_go")
    e("L_rescale:")
    e(f"v_sub_f32 v{vAL}, v{vM}, v{vT}")
    e(f"v_mul_f32 v{vAL}, s{sC}, v{vAL}")
    e(f"v_exp_f32 v{vAL}, v{vAL}")
    e("s_nop 1")
    for p in range(4):
        e(f"v_mov_b32_dpp v{vA+2*p}, v{vAL} row_newbcast:{p} row_mask:0x3 bank_mask:0xf")
        e(f"v_mov_b32_dpp v{vA+2*p}, v{vAL} row_newbcast:{8+p} row_mask:0xc bank_mask:0xf")
    e(f"v_mul_f32 v{vL}, v{vL}, v{vAL}")
    for p in range(4):
        for k in range(0, 8, 2):
            e(f"v_pk_mul_f32 {vr(vACC+8*p+k,2)}, {vr(vACC+8*p+k,2)}, {vr(vA+2*p,2)} op_sel_hi:[1,0]")
    e("s_branch L_rescale_ret")
    e("L_zeroctx:")
    e("s_waitcnt lgkmcnt(0)")
    e("s_mov_b64 exec, vcc")
    e(f"v_mov_b32 v{vCTXG}, 4096")
    for k in range(0, 32, 2): e(f"v_mov_b64 {vr(vQF+k,2)}, 0")
    e("s_mov_b64 exec, -1")
    e("s_nop 0")
    e("s_branch L_zeroctx_ret")

    e(".fill 64, 4, 0xbf810000")
    e('.section .rodata,"a"'); e(".p2align 6"); e(f".amdhsa_kernel {NAME}")
    e(f"  .amdhsa_next_free_vgpr {NV}"); e("  .amdhsa_next_free_sgpr 102"); e(f"  .amdhsa_accum_offset {NV}")
    e("  .amdhsa_group_segment_fixed_size 0"); e("  .amdhsa_kernarg_size 64"); e("  .amdhsa_user_sgpr_count 2")
    e("  .amdhsa_user_sgpr_kernarg_segment_ptr 1"); e("  .amdhsa_system_sgpr_workgroup_id_x 1"); e(".end_amdhsa_kernel")
    out = []
    if cfg.nostore: L = [x for x in L if not x.startswith(f"global_store_dwordx4 v{vL16},")]
    if cfg.nohelp: L = [x for x in L if not (x.startswith(f"global_store_dword v") or x.startswith(f"global_store_dwordx4 v{vGH},") or (x.startswith("global_load_dword") and "sc1" in x))]
    for x in L:
        if x.endswith(":") or x.startswith(".") or x.startswith(";") or x.startswith("  ."): out.append(x)
        else: out.append("    " + x)
    return "\n".join(out) + "\n"

if __name__ == "__main__":
    ap = argparse.ArgumentParser()
    ap.add_argument("out"); ap.add_argument("opts", nargs="*")
    a = ap.parse_args()
    cfg = Cfg()
    for o in a.opts:
        k, v = o.split("=", 1)
        assert hasattr(cfg, k), k
        setattr(cfg, k, eval(v))
    open(a.out, "w").write(gen(cfg))
```

```python
import sys, math, argparse, struct
NAME = "standalone__paged_block_table_kv_radixattention__decode_kernel"
HEADER = open("standalone__paged_block_table_kv_radixattention__decode.s.ref").read().split("; Override launch")[0]
STOK = 2048
CTX = [3663, 3230, 3821, 3388]
SLOT = 8192
HDR = 256 * SLOT
HELLO = HDR + 32768
EPO = HELLO + 1024
KVBYTES = 41943040
CF = math.log2(math.e) / 16.0
def f2u(x): return struct.unpack("<I", struct.pack("<f", x))[0]
NEG = f2u(-1e30) & ~0xff

DOC = """
Paged decode attention, one launch: 256 workgroups = 8 kv heads x 32 splits, 4 streaming waves + 1 helper wave each.
 streaming wave: owns a token range of the shared prefix (all 4 batches at once, 8 queries) or of one batch (2 queries).
   K tiles (16 tokens) go HBM -> LDS (swizzled) -> MFMA scores; all K first, then one softmax with the workgroup's true
   running max, then V straight to registers; P is expanded to a diagonal A operand so V needs no transpose.
   The first K tiles are issued for the usual table; the real block table / lengths are then checked and any
   difference (other blocks, unshared prefix, longer or shorter context) takes the general descriptor path.
 helper wave: stages q, block table, lengths; publishes (max, sum) headers; combines 1/32 of the head's output.
 hand-off through d_ws: every 8 bytes carry a tag derived from an epoch word read at entry (only to tell this launch's
   words from older ones). Stores stay in L2 only if all 32 workgroups of the head report the same XCD,
   otherwise they are written through; readers bypass L1.
"""

class Cfg:
    segs = [(-1, 33), (2, 28), (0, 26), (1, 19), (3, 22)]
    dep = 2; pfn = 12; redu = 3; lag = (0, 0); hwait = True; dskip = False; pipe = 2; pre = 3; defer = 12; jobw = 0; b3 = 0; hp2 = 3; mp2 = 0; gate = 6; tat = 2; owarm = 0; owf = ""; nostore = False; nohelp = False
    inred = True; redat = 2; tl = False; ilv = True
    dld = "sc1"; dst = ""; dwarm = None; pf = 0; pff = ""
    gran = 1
    stamps = False
    lds = 143360
    out_flags = ""
    spin = 20000
    probe = None
    pad = 0xd00
    touch = True
    l2warm = False
    hprio = 3; mprio = None
    ldnt = "nt"
    hflags = ""
    force_safe = False; hello_tries = 4; hello_sleep = 2
    earlyk = True
    nopoll = False

def partition(cfg):
    ws = []; acc = 0
    for b, nw in cfg.segs:
        n = STOK if b < 0 else CTX[b] - STOK
        M = -(-65536 * n // nw)
        assert (nw * M) >> 16 == n and nw * M < 2**32
        assert (M >> 16) >= 33 and (M >> 16) + 1 + 15 <= 8 * 16
        ws.append((b, acc, nw, M)); acc += nw
    assert acc == 128
    seg_of_wave = []
    for b, st, nw, M in ws: seg_of_wave += [b] * nw
    return ws, seg_of_wave

sWAVE = 3
sQ, sK, sV, sBT, sCTX, sOUT, sDBG, sWS = 4, 6, 8, 10, 12, 14, 16, 18
sKSRD, sVSRD = 20, 24
sPC = 28; sTAG = 30; sFF = 31
sH, sSPL, sB, sJ0, sJ1, sSH = 32, 33, 34, 35, 36, 37
sSOFF, sM0A, sM0B, sCNT, sI, sINX, sCOL, sH512 = 38, 39, 40, 41, 42, 43, 44, 45
sC, sT0, sT1, sT2, sT3, sSPEC, sFB = 46, 47, 48, 49, 50, 51, 56
sLM = 52; sONE = 54; sCM = 57; sSLOT = 58; sMK = 60; sT8 = 68; sSPEC1 = 69; sEX = 76; sHB = 84; sST = 86

vLANE, vN, vG = 1, 2, 3
vKOFF = 4; vVOFF = 12; vKRD = 16; vMSK = 20
vTAB, vCOL, vCTXG, vM, vL, vLIM, vT, vU, vAL, vNMC, vF, vL16 = 24, 25, 26, 27, 28, 29, 30, 31, 32, 33, 34, 35
vHG = 36; vNINF = 40; vHA = 41; vHC = 42; vHR = 43; vGH = 44; vDEP = 45; vW = 46; vA = 48; vKF = 64; vVF = 96
vQF = 160; vACC = 192; vS = 224; vRA = 240; vFA = 244; vNR = 245; vG4 = 246; vPF = 247; vCTXE = 248; vJUNK = 249
NV = 256
sPFX = 70; sPAIR = 72; sROLE = 73; sOWN = 74
sSO = 76; sNRS = 80; sTT = 28
TT = [28, 29, 30, 69]
sLAST = 40
MISC = 131072
LDS_Q = MISC; LDS_T = MISC + 4096; LDS_C = MISC + 8192; LDS_H = MISC + 8448; LDS_F = MISC + 8704; LDS_Z = MISC + 8768

def vr(b, n=4): return f"v[{b}:{b+n-1}]"
def sr(b, n=2): return f"s[{b}:{b+n-1}]"

def gen(cfg):
    L = []
    e = L.append
    ws, seg_of_wave = partition(cfg)
    dbg = cfg.stamps or cfg.probe
    def stamp(k):
        if cfg.stamps or (cfg.probe and k in (0, cfg.probe[0])): e(f"s_memrealtime {sr(sST+2*k)}")
    cms = []
    for s in range(32):
        m = 0
        for w in range(4):
            sg = seg_of_wave[4 * s + w]
            for p in range(4):
                if sg < 0 or sg == p: m |= 1 << (4 * p + w)
        cms.append(m)
    wds = []
    for s_ in range(32):
        segs4 = seg_of_wave[4 * s_:4 * s_ + 4]
        x = 0
        for w in range(4):
            if min(segs4) >= 0:
                ps = sorted(set(segs4)); assert len(ps) <= 2
                jobs = [(p, hf) for p in ps for hf in range(2)]
                jw = w if len(ps) == 2 else w - cfg.jobw
                if 0 <= jw < len(jobs):
                    p, hf = jobs[jw]
                    m = 16 | (p << 5) | (hf << 7) | sum(1 << j for j in range(4) if segs4[(w + j) & 3] == p)
                else: m = 0
            else:
                m = (w << 5) | sum(1 << j for j in range(4) if segs4[(w + j) & 3] in (-1, w))
            x |= m << (8 * w)
        wds.append(x)
    def kblock(u, preset=False):
        if not preset:
            e(f"s_add_u32 m0, s{sM0A}, {8192*u}")
            e(f"s_mov_b32 s{sKSRD+2}, s{sNRS+u}")
        for j in range(8):
            if j == 4:
                e(f"s_bitset1_b32 m0, 12"); e("s_nop 0")
            e(f"buffer_load_dwordx4 v{vKOFF+j}, {sr(sKSRD,4)}, s{sSO+u} offen offset:{(j&3)*1024} {cfg.ldnt} lds")
    def vload(u, r, hf):
        e(f"buffer_load_dwordx4 {vr(vVF+32*(u&1)+8*r+4*hf)}, v{vVOFF+r}, {sr(sVSRD,4)}, s{sSO+u} offen offset:{256*hf} {cfg.ldnt}")
    def vblock(u):
        e(f"s_mov_b32 s{sVSRD+2}, s{sNRS+u}")
        for r in range(4):
            vload(u, r, 0); vload(u, r, 1)
    def block(n):
        if n < 4: kblock(n)
        elif n < 6: vblock(n - 4)
    def descr():
        for u in range(4):
            if u: e(f"s_add_u32 s{sT2}, s{sI}, {u}")
            ix = sT2 if u else sI
            e(f"v_readlane_b32 s{sSO+u}, v{vTAB}, s{ix}")
            e(f"v_readlane_b32 s{sNRS+u}, v{vNR}, s{ix}")
            e(f"v_readlane_b32 s{TT[u]}, v{vCOL}, s{ix}")
        e(f"s_add_u32 s{sT2}, s{sI}, 4")
        e(f"s_cmp_ge_u32 s{sT2}, s{sCNT}")
        e(f"s_cselect_b32 s{sLAST}, 1, 0")
    def stub(name):
        e(f"T_{name}:"); e("s_branch " + ("L_htouch_ret" if name == "pr0" else "L_touch_ret"))

    e(HEADER.rstrip())
    e(f"; @launch grid=(256,1,1) block=(320,1,1) lds={cfg.lds}")
    for x in DOC.strip("\n").split("\n"): e(("; " + x).rstrip())
    e('.amdgcn_target "amdgcn-amd-amdhsa--gfx950"')
    e(".text"); e(f".globl {NAME}")
    if cfg.pad:
        e(".p2align 12"); e(f".fill {cfg.pad//4}, 4, 0xbf810000")
    e(".p2align 8"); e(f".type {NAME},@function"); e(f"{NAME}:")
    stamp(0)
    e(f"s_load_dwordx16 s[4:19], s[0:1], 0")
    e("s_cmp_ge_u32 s2, 256"); e("s_cbranch_scc1 L_end0")
    e(f"v_lshrrev_b32 v{vT}, 6, v0")
    e(f"v_and_b32 v{vLANE}, 63, v0")
    e(f"v_readfirstlane_b32 s{sWAVE}, v{vT}")
    e(f"s_and_b32 s{sH}, s2, 7"); e(f"s_lshr_b32 s{sSPL}, s2, 3")
    e(f"v_lshrrev_b32 v{vT}, 5, v{vLANE}")
    e(f"s_sub_u32 s{sWAVE}, s{sWAVE}, 1")
    e("s_cbranch_scc0 L_main")
    e(f"s_setprio {cfg.hprio}")
    e(f"v_lshlrev_b32 v{vT}, 1, v{vT}")
    e(f"v_xor_b32 v{vT}, v{vT}, v{vLANE}")
    e(f"s_lshl_b32 s{sT2}, s{sH}, 10")
    e(f"v_lshl_add_u32 v{vA}, v{vT}, 4, s{sT2}")
    for b in range(1, 4):
        e(f"v_xor_b32 v{vA+b}, {64*b}, v{vA}")
        e(f"v_add_u32 v{vA+b}, {8192*b-1024*b}, v{vA+b}")
    e(f"v_lshlrev_b32 v{vL16}, 4, v{vLANE}")
    e(f"v_and_b32 v{vU}, 3, v{vLANE}"); e(f"v_lshlrev_b32 v{vU}, 2, v{vU}")
    e(f"s_lshl_b32 s{sT3}, s{sH}, 7"); e(f"s_add_u32 s{sT3}, s{sT3}, {EPO}")
    e(f"s_mov_b32 m0, {LDS_Q}")
    e("s_waitcnt lgkmcnt(0)")
    stamp(1)
    for b in range(4):
        e(f"global_load_lds_dwordx4 v{vA+b}, {sr(sQ)} offset:{1024*b} {cfg.hflags}")
    e(f"s_mov_b32 m0, {LDS_T}")
    e(f"s_load_dword s{sTAG}, {sr(sWS)}, s{sT3}")
    for b in range(4):
        e(f"global_load_lds_dwordx4 v{vL16}, {sr(sBT)} offset:{1024*b} {cfg.hflags}")
    e(f"s_mov_b32 m0, {LDS_C}"); e("s_nop 0")
    e(f"global_load_lds_dword v{vU}, {sr(sCTX)} {cfg.hflags}")
    e("s_branch L_helper")
    e("L_end0:"); e("s_endpgm")
    e("L_main:")
    e(f"s_load_dwordx2 {sr(sKSRD)}, s[0:1], 8")
    e(f"s_lshl_b32 s{sT0}, s{sSPL}, 2"); e(f"s_add_u32 s{sT0}, s{sT0}, s{sWAVE}")
    cc = lambda b, st, M: ((((b + 1) * STOK) << 16) - st * M) % 2**32
    b, st, nw, M = ws[0]
    e(f"s_mov_b32 s{sT3}, {cc(b, st, M):#x}"); e(f"s_mov_b32 s{sT2}, {M}")
    for b, st, nw, M in ws[1:]:
        e(f"s_cmp_ge_u32 s{sT0}, {st}")
        e(f"s_cselect_b32 s{sT3}, {cc(b, st, M):#x}, s{sT3}")
        e(f"s_cselect_b32 s{sT2}, {M}, s{sT2}")
    e(f"s_mul_i32 s{sJ0}, s{sT0}, s{sT2}")
    e(f"v_and_b32 v{vU}, 31, v{vLANE}")
    e(f"s_add_u32 s{sJ0}, s{sJ0}, s{sT3}")
    e(f"v_xor_b32 v{vU}, v{vU}, v{vT}")
    e(f"s_lshr_b32 s{sT3}, s{sJ0}, 16")
    e(f"v_lshlrev_b32 v{vU}, 4, v{vU}")
    e(f"s_lshl_b32 s{sT3}, s{sT3}, 12")
    e(f"v_lshl_or_b32 v{vKOFF}, v{vT}, 12, v{vU}")
    e(f"s_lshl_b32 s{sH512}, s{sH}, 9")
    e(f"s_add_u32 s{sSO}, s{sT3}, s{sH512}")
    e(f"s_add_u32 s{sKSRD+2}, s{sT3}, {0x10000*cfg.dep}")
    e(f"s_mov_b32 s{sKSRD+3}, 0x20000")
    e(f"s_lshl_b32 s{sM0A}, s{sWAVE}, 15")
    e(f"s_mov_b32 m0, s{sM0A}")
    def koff(j):
        e(f"v_xor_b32 v{vKOFF+j}, {32*j}, v{vKOFF}")
        e(f"v_add_u32 v{vKOFF+j}, {8192*j - (j&3)*1024}, v{vKOFF+j}")
    for j in range(1, cfg.pre + 1): koff(j)
    e("s_waitcnt lgkmcnt(0)")
    stamp(1)
    for j in range(8):
        if j == 4: e(f"s_bitset1_b32 m0, 12")
        if j > cfg.pre: koff(j)
        elif j == 4: e("s_nop 0")
        e(f"buffer_load_dwordx4 v{vKOFF+j}, {sr(sKSRD,4)}, s{sSO} offen offset:{(j&3)*1024} {cfg.ldnt} lds")
    for u in range(1, cfg.dep):
        e(f"s_add_u32 s{sSO+u}, s{sSO}, {0x10000*u}"); e(f"s_mov_b32 s{sNRS+u}, s{sKSRD+2}")
        kblock(u)
    def pack(b, st, nw): return ((st + nw - 1) << 8) | ((max(b, 0)) << 16) | ((0 if b < 0 else 1) << 24)
    b, st, nw, M = ws[0]
    e(f"s_mov_b32 s{sT1}, {pack(b, st, nw)}")
    for b, st, nw, M in ws[1:]:
        e(f"s_cmp_ge_u32 s{sT0}, {st}")
        e(f"s_cselect_b32 s{sT1}, {pack(b, st, nw)}, s{sT1}")
    e(f"s_add_u32 s{sJ1}, s{sJ0}, s{sT2}")
    e(f"s_bfe_u32 s{sB}, s{sT1}, 0x80010")
    e(f"s_lshr_b32 s{sSH}, s{sT1}, 24")
    def touches():
        if cfg.touch:
            nshwg = -(-cfg.segs[0][1] // 4)
            e(f"s_cmp_ge_u32 s{sSPL}, {nshwg}"); e(f"s_cselect_b32 s{sT2}, 4, 0"); e(f"s_add_u32 s{sT2}, s{sT2}, s{sWAVE}")
            for k, nm in ((0, "sh0"), (1, "sh1"), (2, "sh2"), (3, "sh3"), (4, "pr1")):
                e(f"s_cmp_le_u32 s{sT2}, {k}"); e(f"s_cbranch_scc1 T_{nm}")
        e("L_touch_ret:")
    if cfg.tat < 0: touches()
    e(f"s_mov_b32 s{sVSRD}, s{sV}"); e(f"s_mov_b32 s{sVSRD+1}, s{sV+1}"); e(f"s_mov_b32 s{sVSRD+3}, 0x20000")
    e(f"v_and_b32 v{vN}, 15, v{vLANE}"); e(f"v_lshrrev_b32 v{vG}, 4, v{vLANE}")
    e(f"v_lshlrev_b32 v{vVOFF}, 4, v{vN}"); e(f"v_lshl_or_b32 v{vVOFF}, v{vG}, 14, v{vVOFF}")
    for r in range(1, 4): e(f"v_add_u32 v{vVOFF+r}, {4096*r}, v{vVOFF}")
    e(f"s_lshr_b32 s{sJ0}, s{sJ0}, 16"); e(f"s_lshr_b32 s{sJ1}, s{sJ1}, 16")
    e(f"s_lshl_b32 s{sT2}, s{sB}, 11")
    e(f"s_sub_u32 s{sJ0}, s{sJ0}, s{sT2}"); e(f"s_sub_u32 s{sJ1}, s{sJ1}, s{sT2}")
    e(f"s_bfe_u32 s{sT2}, s{sT1}, 0x80008")
    e(f"s_cmp_eq_u32 s{sT2}, s{sT0}")
    e(f"s_cselect_b32 s{sT2}, s{sSH}, 0")
    e(f"s_cmp_eq_u32 s{sT2}, 1")
    e(f"s_cselect_b32 s{sJ1}, 4096, s{sJ1}")
    e(f"s_cmp_eq_u32 s{sSH}, 0")
    e(f"s_cselect_b32 s{sT2}, 3, 0")
    e(f"s_cselect_b32 s{sT3}, 7, 63")
    e(f"s_lshr_b32 s{sT0}, s{sJ0}, 4")
    e(f"v_and_b32 v{vCOL}, s{sT3}, v{vLANE}")
    e(f"v_add_u32 v{vCOL}, s{sT0}, v{vCOL}")
    e(f"v_lshrrev_b32 v{vT}, 3, v{vLANE}")
    e(f"v_and_b32 v{vT}, s{sT2}, v{vT}")
    e(f"v_or_b32 v{vT}, s{sB}, v{vT}")
    e(f"v_min_u32 v{vU}, 255, v{vCOL}")
    e(f"v_lshlrev_b32 v{vNR}, 2, v{vU}")
    e(f"v_add_u32 v{vNR}, {MISC}, v{vNR}")
    e(f"v_lshl_add_u32 v{vTAB}, v{vT}, 10, v{vNR}")
    e(f"v_lshlrev_b32 v{vCOL}, 4, v{vCOL}")
    e(f"v_add_u32 v{vF}, s{sWAVE}, v{vLANE}")
    e(f"v_and_b32 v{vF}, s{sT2}, v{vF}")
    e(f"v_or_b32 v{vF}, s{sB}, v{vF}")
    e(f"v_lshlrev_b32 v{vCTXG}, 2, v{vF}")
    e(f"v_add_u32 v{vCTXG}, {MISC}, v{vCTXG}")
    e(f"s_mov_b32 s{sCM}, {wds[0]:#x}")
    for s in range(1, 32):
        if wds[s] != wds[s - 1]:
            e(f"s_cmp_ge_u32 s{sSPL}, {s}"); e(f"s_cselect_b32 s{sCM}, {wds[s]:#x}, s{sCM}")
    e(f"s_lshl_b32 s{sT2}, s{sWAVE}, 3")
    e(f"s_lshr_b32 s{sCM}, s{sCM}, s{sT2}")
    e(f"s_bfe_u32 s{sROLE}, s{sCM}, 0x10004")
    e(f"s_bfe_u32 s{sPAIR}, s{sCM}, 0x20005")
    e(f"s_bfe_u32 s{sINX}, s{sCM}, 0x10007"); e(f"s_lshl_b32 s{sINX}, s{sINX}, 10")
    e(f"s_and_b32 s{sCM}, s{sCM}, 15")
    e(f"s_lshl_b32 s{sT2}, s{sH}, 5"); e(f"s_add_u32 s{sT2}, s{sT2}, s{sSPL}"); e(f"s_lshl_b32 s{sT2}, s{sT2}, 13")
    e(f"s_add_u32 s{sSLOT}, s{sWS}, s{sT2}"); e(f"s_addc_u32 s{sSLOT+1}, s{sWS+1}, 0")
    e(f"s_lshl_b32 s{sT2}, s{sPAIR}, 11"); e(f"s_add_u32 s{sT2}, s{sT2}, s{sINX}")
    e(f"v_lshl_add_u32 v{vL16}, v{vLANE}, 4, s{sT2}")
    e(f"v_lshl_add_u32 v{vPF}, v{vN}, 7, s{sT2}")
    e(f"s_mov_b32 s{sC}, {f2u(CF):#x}")
    e(f"s_mov_b32 s{sI}, 0")
    e(f"v_mov_b32 v{vNINF}, 0xff800000")
    e(f"v_mov_b32 v{vM}, {NEG:#x}"); e(f"v_mov_b32 v{vL}, 0")
    e(f"v_lshlrev_b32 v{vT}, 9, v{vN}"); e(f"v_add_u32 v{vT}, s{sM0A}, v{vT}")
    e(f"v_xor_b32 v{vU}, v{vG}, v{vN}")
    for k in range(4):
        e(f"v_xor_b32 v{vKRD+k}, {4*k}, v{vU}")
        e(f"v_lshl_add_u32 v{vKRD+k}, v{vKRD+k}, 4, v{vT}")
    e(f"v_and_b32 v{vT}, 1, v{vLANE}"); e(f"v_lshlrev_b32 v{vT}, 4, v{vT}")
    e(f"v_mov_b32 v{vU}, 0xffff"); e(f"v_lshlrev_b32 v{vT}, v{vT}, v{vU}")
    e(f"v_bfe_u32 v{vU}, v{vLANE}, 1, 2")
    for k in range(4):
        e(f"v_cmp_eq_u32 {sr(sMK+2*k)}, {k}, v{vU}")
    for k in range(0, 32, 2): e(f"v_mov_b64 {vr(vACC+k,2)}, 0")
    for k in range(4):
        e(f"v_cndmask_b32 v{vMSK+k}, 0, v{vT}, {sr(sMK+2*k)}")
    e(f"v_mov_b32 v{vT}, {LDS_Z}")
    e(f"ds_write_b128 v{vT}, {vr(vACC)}"); e(f"ds_write_b128 v{vT}, {vr(vACC)} offset:1024")
    e(f"v_lshlrev_b32 v{vLIM}, 4, v{vLANE}")
    for w in range(4):
        e(f"s_add_u32 s{sT2}, s{sWAVE}, {w}"); e(f"s_and_b32 s{sT2}, s{sT2}, 3")
        e(f"s_sub_u32 s{sT3}, s{sPAIR}, s{sT2}"); e(f"s_and_b32 s{sT3}, s{sT3}, 3")
        e(f"s_lshl_b32 s{sT2}, s{sT2}, 4"); e(f"s_add_u32 s{sT2}, s{sT2}, s{sT3}"); e(f"s_lshl_b32 s{sT2}, s{sT2}, 11")
        e(f"s_add_u32 s{sT2}, s{sT2}, s{sINX}")
        e(f"s_bitcmp1_b32 s{sCM}, {w}"); e(f"s_cselect_b64 vcc, -1, 0")
        e(f"v_add_u32 v{vU}, s{sT2}, v{vLIM}")
        e(f"v_cndmask_b32 v{vRA+w}, v{vT}, v{vU}, vcc")
    e(f"s_sub_u32 s{sT2}, s{sB}, s{sWAVE}"); e(f"s_and_b32 s{sT2}, s{sT2}, 3"); e(f"s_mul_i32 s{sT2}, s{sT2}, s{sSH}")
    e(f"s_lshl_b32 s{sT2}, s{sT2}, 11"); e(f"s_add_u32 s{sT2}, s{sT2}, s{sM0A}")
    e(f"v_add_u32 v{vDEP}, s{sT2}, v{vLIM}")
    e(f"v_mov_b32 v{vFA}, {LDS_F}")
    e(f"s_mov_b32 s{sFF}, 0xff")
    e(f"v_lshlrev_b32 v{vG4}, 2, v{vG}")
    e(f"s_cmp_eq_u32 s{sROLE}, 1")
    e(f"s_cselect_b64 {sr(sPFX)}, 0xff, 0xffff".replace("0xff, 0xffff", "0xff, -1"))
    e(f"s_and_b64 {sr(sPFX)}, {sr(sPFX)}, 0xffff")
    e(f"s_cmp_eq_u32 s{sCM}, 0")
    e(f"s_cselect_b64 {sr(sPFX)}, 1, {sr(sPFX)}")
    e(f"s_sub_u32 s{sT2}, 1, s{sSH}"); e(f"s_mul_i32 s{sT2}, s{sT2}, s{sWAVE}")
    e(f"v_add_u32 v{vT}, s{sT2}, v{vN}"); e(f"v_and_b32 v{vT}, 3, v{vT}")
    e(f"v_cmp_eq_u32 {sr(sOWN)}, v{vT}, v{vF}")
    e(f"v_lshrrev_b32 v{vU}, 3, v{vN}")
    e(f"v_lshl_add_u32 v{vT}, v{vT}, 1, v{vU}")
    e(f"s_lshl_b32 s{sT2}, s{sWAVE}, 2"); e(f"s_add_u32 s{sT2}, s{sT2}, {LDS_H}")
    e(f"v_lshl_add_u32 v{vHA}, v{vT}, 4, s{sT2}")
    e(f"v_lshl_add_u32 v{vT}, v{vF}, 1, v{vU}")
    e(f"v_lshlrev_b32 v{vHC}, 4, v{vT}"); e(f"v_add_u32 v{vHC}, {LDS_H}, v{vHC}")
    e(f"v_lshlrev_b32 v{vU}, 1, v{vT}"); e(f"v_xor_b32 v{vU}, v{vU}, v{vG}")
    e(f"v_lshlrev_b32 v{vT}, 9, v{vT}"); e(f"v_add_u32 v{vT}, {MISC}, v{vT}")
    for k in range(4):
        e(f"v_xor_b32 v{vA+4+k}, {4*k}, v{vU}")
        e(f"v_lshl_add_u32 v{vA+4+k}, v{vA+4+k}, 4, v{vT}")
    e("s_barrier")
    stamp(3)
    e(f"ds_read_b32 v{vTAB}, v{vTAB} offset:{LDS_T-MISC}")
    e(f"ds_read_b32 v{vNR}, v{vNR} offset:{LDS_T-MISC}")
    e(f"ds_read_b32 v{vCTXG}, v{vCTXG} offset:{LDS_C-MISC}")
    for i in range(8):
        e(f"ds_read_b128 {vr(vQF+4*i)}, v{vA+4+(i&3)} offset:{LDS_Q-MISC+256*(i>>2)}")
    e(f"v_max_u32 v{vT}, s{sJ0}, v{vCOL}")
    e(f"v_add_u32 v{vU}, 16, v{vCOL}")
    e("s_waitcnt lgkmcnt(8)")
    e(f"v_cmp_gt_i32 vcc, 1, v{vCTXG}")
    e(f"v_min_i32 v{vCTXG}, 4096, v{vCTXG}")
    e(f"v_cmp_ne_u32 {sr(sMK)}, v{vTAB}, v{vNR}")
    e("s_cbranch_vccnz L_zeroctx")
    e("L_zeroctx_ret:")
    e(f"v_readfirstlane_b32 s{sT1}, v{vCTXG}")
    e(f"v_min_u32 v{vTAB}, 639, v{vTAB}")
    e(f"v_lshlrev_b32 v{vTAB}, 4, v{vTAB}")
    e(f"v_sub_u32 v{vTAB}, v{vTAB}, v{vCOL}")
    e(f"s_cmp_eq_u32 s{sSH}, 0")
    e(f"s_cselect_b32 s{sT1}, 4096, s{sT1}")
    e(f"s_min_u32 s{sJ1}, s{sJ1}, s{sT1}")
    e(f"v_min_u32 v{vU}, s{sJ1}, v{vU}")
    e(f"s_lshl_b32 s{sT2}, s{sB}, 11")
    e(f"v_cmp_lt_u32 vcc, v{vT}, v{vU}")
    e(f"v_cmp_ne_u32 {sr(sMK+2)}, s{sT2}, v{vTAB}")
    e(f"s_sub_i32 s{sCNT}, s{sJ1}, s{sJ0}")
    e(f"s_cmp_lt_i32 s{sCNT}, 1")
    e("s_cbranch_scc1 L_respec")
    e(f"s_and_b64 {sr(sMK+2)}, {sr(sMK+2)}, vcc")
    e("s_cbranch_scc1 L_respec")
    e(f"v_lshl_add_u32 v{vT}, v{vLANE}, 4, s{sJ0}")
    e(f"s_add_u32 s{sCNT}, s{sCNT}, 15"); e(f"s_lshr_b32 s{sCNT}, s{sCNT}, 4")
    e(f"v_add_u32 v{vU}, 16, v{vT}")
    e(f"v_min_u32 v{vU}, s{sJ1}, v{vU}")
    e(f"v_add_u32 v{vTAB}, s{sT2}, v{vT}")
    e(f"v_add_u32 v{vNR}, s{sT2}, v{vU}")
    e(f"v_lshl_or_b32 v{vCOL}, v{vU}, 16, v{vT}")
    e(f"v_cmp_lt_u32 vcc, v{vT}, v{vU}")
    e(f"v_lshl_add_u32 v{vTAB}, v{vTAB}, 12, s{sH512}")
    e(f"v_lshlrev_b32 v{vNR}, 12, v{vNR}")
    e(f"v_cndmask_b32 v{vTAB}, 0, v{vTAB}, vcc")
    e(f"v_cndmask_b32 v{vNR}, 0, v{vNR}, vcc")
    e(f"s_mov_b32 s{sFB}, 0")
    e(f"v_mov_b32 v{vCTXE}, v{vCTXG}")
    descr()
    e("s_waitcnt lgkmcnt(0)")
    e("L_go:")
    def mask(u):
        e(f"s_lshr_b32 s{sT3}, s{TT[u]}, 16"); e(f"s_and_b32 s{sT2}, s{TT[u]}, 0xffff")
        e(f"v_min_u32 v{vLIM}, s{sT3}, v{vCTXE}")
        e(f"v_subrev_u32 v{vLIM}, s{sT2}, v{vLIM}")
        e(f"v_sub_u32 v{vLIM}, v{vLIM}, v{vG4}")
        for r in range(4): e(f"v_cmp_lt_i32 {sr(sMK+2*r)}, {r}, v{vLIM}")
        for r in range(4): e(f"v_cndmask_b32 v{vS+4*u+r}, v{vNINF}, v{vS+4*u+r}, {sr(sMK+2*r)}")
    for u in range(4):
        e(f"s_waitcnt vmcnt({8*(min(u+cfg.dep,6)-u-1)})")
        if u == 0: stamp(2)
        for i in range(8):
            e(f"ds_read_b128 {vr(vKF+4*i)}, v{vKRD+(i&3)} offset:{8192*u+256*(i>>2)}")
        block(u + cfg.dep)
        if u: mask(u - 1)
        for i in range(8):
            e(f"s_waitcnt lgkmcnt({7-i})")
            e(f"v_mfma_f32_16x16x32_bf16 {vr(vS+4*u)}, {vr(vKF+4*i)}, {vr(vQF+4*i)}, " + ("0" if i == 0 else vr(vS+4*u)))
        if u == cfg.tat: touches()
    e(f"v_max3_f32 v{vT}, v{vS}, v{vS+1}, v{vM}")
    for k in range(2, 12, 2): e(f"v_max3_f32 v{vT}, v{vS+k}, v{vS+k+1}, v{vT}")
    mask(3)
    for k in range(12, 16, 2): e(f"v_max3_f32 v{vT}, v{vS+k}, v{vS+k+1}, v{vT}")
    def cross(op, reg):
        for sw in ("v_permlane32_swap_b32", "v_permlane16_swap_b32"):
            e(f"v_mov_b32 v{vU}, v{reg}"); e("s_nop 1")
            e(f"{sw} v{reg}, v{vU}"); e("s_nop 0")
            e(f"{op} v{reg}, v{reg}, v{vU}")
    cross("v_max_f32", vT)
    e(f"s_cmp_eq_u32 s{sLAST}, 0"); e("s_cbranch_scc1 L_nox")
    e(f"v_mov_b32 v{vU}, {NEG:#x}")
    e(f"v_cndmask_b32 v{vU}, v{vU}, v{vT}, {sr(sOWN)}")
    e(f"ds_write_b32 v{vHA}, v{vU}")
    e("s_waitcnt lgkmcnt(0)")
    e("s_barrier")
    e(f"ds_read_b128 {vr(vA)}, v{vHC}")
    e("s_waitcnt lgkmcnt(0)")
    e(f"v_max3_f32 v{vT}, v{vA}, v{vA+1}, v{vA+2}")
    e(f"v_max_f32 v{vT}, v{vT}, v{vA+3}")
    e("s_branch L_nox")
    e(".p2align 12")
    stub("pr0")
    e("L_nox:")
    e(f"s_cmp_lg_u32 s{sI}, 0"); e("s_cbranch_scc1 L_rescale")
    e("L_rescale_ret:")
    e(f"v_mul_f32 v{vNMC}, s{sC}, v{vT}")
    e(f"v_mov_b32 v{vM}, v{vT}")
    for k in range(16): e(f"v_fma_f32 v{vS+k}, v{vS+k}, s{sC}, -v{vNMC}")
    for k in range(16): e(f"v_exp_f32 v{vS+k}, v{vS+k}")
    e(f"v_pk_add_f32 {vr(vA,2)}, {vr(vS,2)}, {vr(vS+2,2)}")
    for k in range(4, 16, 2): e(f"v_pk_add_f32 {vr(vA,2)}, {vr(vA,2)}, {vr(vS+k,2)}")
    for k in range(16): e(f"v_cvt_pk_bf16_f32 v{vS+k}, v{vS+k}, v{vS+k}")
    e(f"v_add_f32 v{vL}, v{vL}, v{vA}")
    e(f"v_add_f32 v{vL}, v{vL}, v{vA+1}")
    e(f"v_mov_b32 v{vT}, v{vL}")
    cross("v_add_f32", vT)
    e(f"v_cndmask_b32 v{vT}, 0, v{vT}, {sr(sOWN)}")
    e(f"ds_write_b32 v{vHA}, v{vT} offset:128")
    e(f"s_cmp_eq_u32 s{sLAST}, 0"); e("s_cbranch_scc1 L_nol")
    e("s_waitcnt lgkmcnt(0)")
    e("s_barrier")
    e("L_nol:")
    if cfg.mp2: e(f"s_setprio {cfg.mp2}")
    e(f"s_cmp_eq_u32 s{sSH}, 0")
    e("s_cbranch_scc1 L_sh_v")

    RD = vKF
    def reduce_():
        e(f"ds_read_b64 {vr(vW,2)}, v{vFA}")
        for w in range(1, 4):
            e(f"ds_read_b128 {vr(RD+8*w)}, v{vRA+w}")
            e(f"ds_read_b128 {vr(RD+8*w+4)}, v{vRA+w} offset:1024")
        e("s_waitcnt lgkmcnt(6)")
        e(f"v_cmp_eq_u32 vcc, 0, v{vW+1}")
        for w in range(1, 4):
            for hf in range(2):
                e(f"s_waitcnt lgkmcnt({7-2*w-hf})")
                for k in range(4*hf, 4*hf+4, 2): e(f"v_pk_add_f32 {vr(vACC+k,2)}, {vr(vACC+k,2)}, {vr(RD+8*w+k,2)}")
    def publish(fl):
        for k in range(0, 4, 2): e(f"v_bfi_b32 v{vACC+k}, s{sFF}, v{vW}, v{vACC+k}")
        e(f"global_store_dwordx4 v{vL16}, {vr(vACC)}, {sr(sSLOT)} {fl}")
        for k in range(4, 8, 2): e(f"v_bfi_b32 v{vACC+k}, s{sFF}, v{vW}, v{vACC+k}")
        e(f"global_store_dwordx4 v{vL16}, {vr(vACC+4)}, {sr(sSLOT)} offset:1024 {fl}")
    def fin():
        if cfg.b3 == 1 and dbg: e("s_barrier")
        if dbg: e("s_branch L_fin")
        else: e("s_endpgm")

    def vphase(tag, pairs, stubs):
        shared = len(pairs) > 1
        ab = lambda n: (vA if n % 2 == 0 else vKF) if shared else vA + 4 * (n & 1)
        def areg(n, p):
            return vVF + 4 * (n - 12) if shared and p == 0 and n >= cfg.defer else ab(n) + 4 * p
        def andop(n, p, k):
            if shared: e(f"v_and_b32_dpp v{areg(n,p)+k}, v{vS+n}, v{vMSK+k} quad_perm:[{p},{p},{p},{p}] row_mask:0xf bank_mask:0xf")
            else: e(f"v_and_b32 v{ab(n)+k}, v{vS+n}, v{vMSK+k}")
        e(f"L_{tag}_v:")
        for p in pairs:
            for k in range(4): andop(0, p, k)
        lag = cfg.lag[1 if shared else 0]
        q = list(range(8))
        for u in range(4):
            if u in stubs:
                e(f"s_branch L_{tag}_u{u}"); stub(stubs[u]); e(f"L_{tag}_u{u}:")
            for r in range(4):
                n = 4 * u + r
                if n == cfg.pfn:
                    e(f"s_mov_b64 exec, {sr(sPFX)}")
                    e(f"global_load_dword v{vJUNK}, v{vPF}, {sr(sSLOT)} {cfg.pff}")
                    e("s_mov_b64 exec, -1")
                    q.append("p")
                isred = False
                if isred:
                    e(f"s_cmp_eq_u32 s{sT0}, 0"); e("s_cbranch_scc1 L_nored")
                    e("s_waitcnt lgkmcnt(0)")
                    e("s_barrier")
                    stamp(5)
                    reduce_()
                    e("L_nored:")
                e(f"s_waitcnt vmcnt({sum(1 if x == 'p' else 2 for x in q[q.index(n)+1:])})")
                if n == 0 or isred: e("s_nop 0")
                todo = [(p, k) for p in pairs for k in range(4)] if n < 15 else []
                order = [(hf, p) for hf in range(2) for p in pairs]
                if shared and n >= cfg.defer: order = [x for x in order if x[1]]
                if shared and n + 1 >= cfg.defer: todo = todo[4:] + todo[:4]
                per = -(-len(todo) // len(order))
                for hf, p in order:
                    e(f"v_mfma_f32_16x16x32_bf16 {vr(vACC+8*p+4*hf)}, {vr(areg(n,p))}, {vr(vVF+32*(u&1)+8*r+4*hf)}, {vr(vACC+8*p+4*hf)}")
                    for pk in todo[:per]: andop(n + 1, *pk)
                    todo = todo[per:]
                m = n + 8 - lag
                if 8 <= m < 16:
                    if m % 4 == 0: e(f"s_mov_b32 s{sVSRD+2}, s{sNRS+(m>>2)}")
                    vload(m >> 2, m & 3, 0); vload(m >> 2, m & 3, 1)
                    q.append(m)
                elif n < 15 and not shared: e("s_nop 0")
        stamp(4)

    vphase("pr", [0], {2: "pr1"})
    e(f"s_cmp_eq_u32 s{sLAST}, 0"); e("s_cbranch_scc1 L_next")
    e(f"s_cmp_eq_u32 s{sROLE}, 0")
    e("s_nop 3")
    e(f"ds_write_b128 v{vDEP}, {vr(vACC)}")
    e(f"ds_write_b128 v{vDEP}, {vr(vACC+4)} offset:1024")
    e("s_waitcnt lgkmcnt(0)")
    e("s_barrier")
    stamp(5)
    e("s_cbranch_scc1 L_pr_old")
    for w in range(4): e(f"ds_read_b128 {vr(vKF+4*w)}, v{vRA+w}")
    e(f"ds_read_b64 {vr(vW,2)}, v{vFA}")
    e("s_waitcnt lgkmcnt(3)")
    for k in (0, 2): e(f"v_pk_add_f32 {vr(vKF+k,2)}, {vr(vKF+k,2)}, {vr(vKF+4+k,2)}")
    e("s_waitcnt lgkmcnt(0)")
    e(f"v_cmp_eq_u32 vcc, 0, v{vW+1}")
    for k in (0, 2): e(f"v_pk_add_f32 {vr(vKF+8+k,2)}, {vr(vKF+8+k,2)}, {vr(vKF+12+k,2)}")
    for k in (0, 2): e(f"v_pk_add_f32 {vr(vKF+k,2)}, {vr(vKF+k,2)}, {vr(vKF+8+k,2)}")
    for k in (0, 2): e(f"v_bfi_b32 v{vKF+k}, s{sFF}, v{vW}, v{vKF+k}")
    e("s_cbranch_vccnz L_pr_safe")
    e(f"global_store_dwordx4 v{vL16}, {vr(vKF)}, {sr(sSLOT)} {cfg.dst}")
    stamp(6)
    fin()
    e("L_pr_safe:")
    e(f"global_store_dwordx4 v{vL16}, {vr(vKF)}, {sr(sSLOT)} sc0 sc1")
    stamp(6)
    e("L_fin2:")
    fin()
    e("L_pr_old:")
    e(f"s_cmp_eq_u32 s{sCM}, 0"); e("s_cbranch_scc1 L_fin2")
    e(f"ds_read_b128 {vr(vACC)}, v{vRA}")
    e(f"ds_read_b128 {vr(vACC+4)}, v{vRA} offset:1024")
    e("s_branch L_reduce")

    nsh = [s for s in range(32) if any(seg_of_wave[4*s+w] < 0 for w in range(4))]
    assert nsh == list(range(len(nsh)))
    a = len(nsh)
    lo = []; hi = []
    for p in range(4):
        sl = [s for s in range(32) if any(seg_of_wave[4*s+w] == p for w in range(4)) and s >= a]
        assert sl == list(range(sl[0], sl[-1] + 1)) and 13 <= a + len(sl) <= 16, (p, sl)
        lo.append(sl[0]); hi.append(sl[-1] + 1)
    D, H, DA, HA, CL = vQF, vQF + 16, vKF, vKF + 4, vVF
    e("L_helper:")
    e(f"s_getreg_b32 s{sT1}, hwreg(HW_REG_XCC_ID, 0, 4)")
    e(f"s_sub_u32 s{sT3}, s{sT3}, 1024")
    e(f"v_and_b32 v{vT}, 31, v{vLANE}")
    e(f"v_lshl_add_u32 v{vCOL}, v{vT}, 2, s{sT3}")
    e(f"s_lshl_b32 s{sT2}, s{sSPL}, 2"); e(f"s_add_u32 s{sT2}, s{sT2}, s{sT3}")
    e(f"v_mov_b32 v{vU}, s{sT2}")
    e("s_waitcnt lgkmcnt(0)")
    e(f"s_add_u32 s{sTAG}, s{sTAG}, 1")
    e(f"s_and_b32 s{sB}, s{sTAG}, 0xfffffff"); e(f"s_lshl_b32 s{sT1}, s{sT1}, 28"); e(f"s_or_b32 s{sB}, s{sB}, s{sT1}")
    e(f"v_mov_b32 v{vT}, s{sB}")
    e("s_mov_b64 exec, 1")
    e(f"global_store_dword v{vU}, v{vT}, {sr(sWS)}")
    e("s_mov_b64 exec, -1")
    e("s_waitcnt vmcnt(1)")
    e("s_barrier")
    stamp(3)
    e("s_setprio 0")
    if cfg.touch: e("s_branch T_pr0")
    e("L_htouch_ret:")
    e(f"s_and_b32 s{sT8}, s{sTAG}, 0xff")
    e(f"s_mov_b32 s{sFF}, 0xff")
    e(f"v_mov_b32 v{vW}, s{sTAG}")
    e(f"v_mov_b32 v{vFA}, {LDS_F}")
    rows = [sum(3 << (2 * p) for p in range(4) if (cms[t] >> (4 * p)) & 15) for t in range(32)]
    e(f"s_mov_b32 s{sOWN}, {rows[0]}"); e(f"s_mov_b32 s{sOWN+1}, 0")
    for t in range(1, 32):
        if rows[t] != rows[t - 1]:
            e(f"s_cmp_ge_u32 s{sSPL}, {t}"); e(f"s_cselect_b32 s{sOWN}, {rows[t]}, s{sOWN}")
    e(f"v_and_b32 v{vT}, 7, v{vLANE}")
    e(f"v_lshlrev_b32 v{vHR}, 4, v{vT}"); e(f"v_add_u32 v{vHR}, {LDS_H}, v{vHR}")
    e(f"s_lshl_b32 s{sT2}, s{sH}, 8"); e(f"s_add_u32 s{sT2}, s{sT2}, s{sSPL}"); e(f"s_lshl_b32 s{sT2}, s{sT2}, 4"); e(f"s_add_u32 s{sT2}, s{sT2}, {HDR}")
    e(f"v_lshl_add_u32 v{vGH}, v{vT}, 9, s{sT2}")
    e(f"s_mov_b32 s{sC}, {f2u(CF):#x}")
    e(f"s_lshl_b32 s{sT2}, s{sH}, 18")
    e(f"s_add_u32 s{sHB}, s{sWS}, s{sT2}"); e(f"s_addc_u32 s{sHB+1}, s{sWS+1}, 0")
    e(f"v_bfe_u32 v{vG}, v{vLANE}, 2, 2")
    e(f"v_lshrrev_b32 v{vN}, 4, v{vLANE}"); e(f"v_and_b32 v{vAL}, 3, v{vLANE}")
    e(f"v_lshl_or_b32 v{vN}, v{vN}, 2, v{vAL}")
    e(f"s_lshr_b32 s{sT0}, s{sSPL}, 3")
    lop = sum((lo[p] - a) << (8 * p) for p in range(4)); hip_ = sum(hi[p] << (8 * p) for p in range(4))
    e(f"s_lshl_b32 s{sT1}, s{sT0}, 3")
    e(f"s_lshr_b32 s{sT2}, {lop:#x}, s{sT1}"); e(f"s_and_b32 s{sT2}, s{sT2}, 0xff")
    e(f"s_lshr_b32 s{sT3}, {hip_:#x}, s{sT1}"); e(f"s_and_b32 s{sT3}, s{sT3}, 0xff")
    e(f"s_lshl_b32 s{sI}, s{sT0}, 11")
    e(f"s_bfe_u32 s{sINX}, s{sSPL}, 0x10001"); e(f"s_lshl_b32 s{sCOL}, s{sINX}, 10"); e(f"s_add_u32 s{sI}, s{sI}, s{sCOL}")
    e(f"s_bfe_u32 s{sCNT}, s{sSPL}, 0x10002"); e(f"s_lshl_b32 s{sCOL}, s{sCNT}, 9"); e(f"s_add_u32 s{sI}, s{sI}, s{sCOL}")
    e(f"s_and_b32 s{sSOFF}, s{sSPL}, 1"); e(f"s_lshl_b32 s{sCOL}, s{sSOFF}, 7"); e(f"s_add_u32 s{sI}, s{sI}, s{sCOL}")
    e(f"v_and_b32 v{vT}, 7, v{vN}"); e(f"v_lshrrev_b32 v{vU}, 3, v{vN}")
    e(f"v_lshlrev_b32 v{vL}, 4, v{vT}"); e(f"v_lshl_add_u32 v{vL}, v{vU}, 8, v{vL}"); e(f"v_add_u32 v{vL}, s{sI}, v{vL}")
    def slot_of(idxreg, mask):
        e(f"v_add_u32 v{vF}, s{sT2}, v{idxreg}")
        e(f"v_cmp_gt_u32 vcc, {a}, v{idxreg}"); e("s_nop 1")
        e(f"v_cndmask_b32 v{idxreg}, v{vF}, v{idxreg}, vcc")
        e(f"v_cmp_gt_u32 {sr(mask)}, s{sT3}, v{idxreg}")
    for k in range(4):
        e(f"v_add_u32 v{vM}, {4*k}, v{vG}")
        if 4 * k + 3 >= a:
            slot_of(vM, sEX + 2 * k)
            for dd in (D, vACC, vACC + 16)[:cfg.pipe]:
                for j in range(4): e(f"v_mov_b32 v{dd+4*k+j}, " + (f"s{sT8}" if j % 2 == 0 else "0"))
        e(f"v_lshl_add_u32 v{DA+k}, v{vM}, 13, v{vL}")
    e(f"v_lshl_add_u32 v{vM}, v{vAL}, 2, v{vG}")
    slot_of(vM, sLM)
    e(f"s_lshl_b32 s{sCOL}, s{sH}, 3"); e(f"s_lshr_b32 s{sI}, s{sSPL}, 2"); e(f"s_add_u32 s{sCOL}, s{sCOL}, s{sI}")
    e(f"s_lshl_b32 s{sCOL}, s{sCOL}, 9"); e(f"s_add_u32 s{sCOL}, s{sCOL}, {HDR}")
    e(f"v_lshl_add_u32 v{HA}, v{vM}, 4, s{sCOL}")
    if cfg.gate is not None:
        e(f"v_readfirstlane_b32 s{sCOL}, v{vL}"); e("s_nop 1")
        e(f"v_lshl_add_u32 v{HA+1}, v{vM}, 13, s{sCOL}")
    e(f"v_mov_b32 v{H}, {NEG:#x}"); e(f"v_mov_b32 v{H+1}, 0"); e(f"v_mov_b32 v{H+2}, 0")
    e(f"s_lshl_b32 s{sI}, s{sT0}, 13"); e(f"s_lshl_b32 s{sCOL}, s{sH}, 10"); e(f"s_add_u32 s{sI}, s{sI}, s{sCOL}")
    e(f"s_lshl_b32 s{sCOL}, s{sCNT}, 9"); e(f"s_add_u32 s{sI}, s{sI}, s{sCOL}")
    e(f"s_and_b32 s{sCOL}, s{sSPL}, 3"); e(f"s_lshl_b32 s{sCOL}, s{sCOL}, 7"); e(f"s_add_u32 s{sI}, s{sI}, s{sCOL}")
    e(f"v_lshlrev_b32 v{vT}, 4, v{vT}"); e(f"v_lshl_add_u32 v{vT}, v{vU}, 3, v{vT}"); e(f"v_add_u32 v{vLIM}, s{sI}, v{vT}")
    e(f"s_mov_b32 s{sJ0}, {cfg.spin}")
    e(f"v_mov_b32 v{vJUNK}, 0")
    e(f"s_mov_b32 s{sT2}, {cfg.hello_tries}")
    e(f"v_mov_b32 v{vW+1}, 1")
    e(f"s_mov_b64 exec, {sr(sLM)}")
    e(f"global_load_dwordx4 {vr(H)}, v{HA}, {sr(sWS)} sc1")
    e("s_mov_b64 exec, 1")
    e(f"global_load_dword v{vF}, v{DA}, {sr(sHB)} sc1 nt")
    if cfg.owarm == 1: e(f"global_load_dword v{vF}, v{vLIM}, {sr(sOUT)} {cfg.owf}")
    e("s_mov_b64 exec, -1")
    e("s_waitcnt vmcnt(0)")
    e(f"global_load_dword v{vU}, v{vCOL}, {sr(sWS)} sc1")
    e("s_barrier")
    e("s_barrier")
    e(f"ds_read_b128 {vr(vA)}, v{vHR}")
    e(f"ds_read_b128 {vr(vA+4)}, v{vHR} offset:128")
    e("s_waitcnt lgkmcnt(0)")
    e(f"v_max3_f32 v{vHG}, v{vA}, v{vA+1}, v{vA+2}")
    e(f"v_pk_add_f32 {vr(vA+4,2)}, {vr(vA+4,2)}, {vr(vA+6,2)}")
    e(f"v_max_f32 v{vHG}, v{vHG}, v{vA+3}")
    e(f"v_add_f32 v{vHG+1}, v{vA+4}, v{vA+5}")
    e(f"v_lshlrev_b32 v{vHG+2}, 8, v{vHG}"); e(f"v_mov_b32 v{vHG+3}, v{vW}")
    for k in range(3): e(f"v_bfi_b32 v{vHG+k}, s{sFF}, v{vW}, v{vHG+k}")
    e("s_branch L_hello1")
    e("L_hello:")
    e(f"global_load_dword v{vU}, v{vCOL}, {sr(sWS)} sc1")
    e("L_hello1:")
    e("s_waitcnt vmcnt(0)")
    e(f"v_cmp_ne_u32 vcc, s{sB}, v{vU}")
    if cfg.force_safe in ("odd", "even"):
        e(f"s_bitcmp{1 if cfg.force_safe == 'odd' else 0}_b32 s{sSPL}, 0"); e("s_nop 3"); e("s_cselect_b64 vcc, -1, vcc")
    e(f"s_sub_u32 s{sT2}, s{sT2}, 1")
    if cfg.force_safe is not True: e("s_cbranch_vccz L_hello_ok")
    e("s_cbranch_scc0 L_hello")
    e(f"v_mov_b32 v{vW+1}, 0")
    e(f"s_mov_b32 s{sSH}, 0")
    e(f"s_mov_b64 exec, {sr(sOWN)}")
    e(f"global_store_dwordx4 v{vGH}, {vr(vHG)}, {sr(sWS)} sc0 sc1")
    e("s_branch L_hello_done")
    e("L_hello_ok:")
    e(f"s_mov_b32 s{sSH}, 1")
    e(f"s_mov_b64 exec, {sr(sOWN)}")
    e(f"global_store_dwordx4 v{vGH}, {vr(vHG)}, {sr(sWS)}")
    e(f"s_cmp_lg_u32 s{sSPL}, 0"); e("s_cbranch_scc1 L_hello_done")
    e("s_mov_b64 exec, 1")
    e(f"global_store_dword v{vCOL}, v{vW}, {sr(sWS)} offset:1024")
    e("L_hello_done:")
    e(f"s_mov_b64 exec, {sr(sLM)}")
    e(f"ds_write_b64 v{vFA}, {vr(vW,2)}")
    if cfg.hwait: e("s_waitcnt vmcnt(0)")
    if cfg.owarm == 2: e(f"global_load_dword v{vF}, v{vLIM}, {sr(sOUT)} {cfg.owf}")
    e(f"global_load_dwordx4 {vr(H)}, v{HA}, {sr(sWS)} sc1")
    stamp(2)
    if cfg.hp2: e(f"s_setprio {cfg.hp2}")
    e("s_waitcnt lgkmcnt(0)")
    e("s_barrier")
    stamp(5)
    DS = [D, vACC, vACC + 16]
    def dloads(skip, D=D):
        for k in range(4):
            if skip:
                e(f"s_cmp_eq_u64 {sr(sMK+2*k)}, 0"); e(f"s_cbranch_scc1 L_dk{k}")
            if 4 * k + 3 >= a: e(f"s_mov_b64 exec, {sr(sEX+2*k)}")
            elif k == 0 and not skip: e("s_mov_b64 exec, -1")
            e(f"global_load_dwordx4 {vr(D+4*k)}, v{DA+k}, {sr(sHB)} {cfg.dld}")
            if skip: e(f"L_dk{k}:")
    if cfg.nopoll: e("s_branch L_fin")
    e("s_branch L_poll1")
    e("L_poll:")
    e(f"global_load_dwordx4 {vr(H)}, v{HA}, {sr(sWS)} sc1")
    e(f"s_sub_u32 s{sJ0}, s{sJ0}, 1"); e("s_cbranch_scc1 L_fin")
    e("L_poll1:")
    e("s_waitcnt vmcnt(0)")
    e(f"v_bitop3_b32 v{vA}, v{H}, v{H+1}, s{sTAG} bitop3:0x7e")
    e(f"v_xor_b32 v{vA+1}, s{sTAG}, v{H+3}")
    e(f"v_bitop3_b32 v{vA}, v{vA}, v{H+2}, s{sTAG} bitop3:0xf6")
    e(f"v_and_or_b32 v{vA}, v{vA}, s{sFF}, v{vA+1}")
    e(f"v_cmp_ne_u32 vcc, 0, v{vA}")
    e("s_cbranch_vccnz L_poll")
    if cfg.gate is not None:
        e(f"s_and_b32 exec_lo, s{sLM}, 0xffff"); e("s_mov_b32 exec_hi, 0")
        e("L_gate:")
        e(f"global_load_dword v{vA}, v{HA+1}, {sr(sHB)} sc1")
        e(f"s_sub_u32 s{sJ0}, s{sJ0}, 1"); e("s_cbranch_scc1 L_fin")
        e("s_waitcnt vmcnt(0)")
        e(f"v_and_b32 v{vA}, 0xff, v{vA}")
        e(f"v_cmp_ne_u32 vcc, s{sT8}, v{vA}")
        e("s_nop 1")
        e(f"s_bcnt1_i32_b32 s{sT2}, vcc_lo")
        e(f"s_cmp_gt_u32 s{sT2}, {cfg.gate}"); e("s_cbranch_scc1 L_gate")
    if not cfg.b3: dloads(False)
    e("s_mov_b64 exec, -1")
    dpp = ["quad_perm:[1,0,3,2]", "quad_perm:[2,3,0,1]", "row_ror:4", "row_ror:8"]
    e(f"v_lshrrev_b32 v{vM}, 8, v{H+2}")
    e(f"v_bfi_b32 v{vM}, s{sFF}, v{vM}, v{H}")
    e(f"v_and_b32 v{vL}, 0xffffff00, v{H+1}")
    e("s_nop 0")
    e(f"v_max_f32_dpp v{vT}, v{vM}, v{vM} {dpp[0]} row_mask:0xf bank_mask:0xf")
    for x in dpp[1:]:
        e("s_nop 1")
        e(f"v_max_f32_dpp v{vT}, v{vT}, v{vT} {x} row_mask:0xf bank_mask:0xf")
    e(f"v_sub_f32 v{vM}, v{vM}, v{vT}")
    e(f"v_mul_f32 v{vM}, s{sC}, v{vM}")
    e(f"v_exp_f32 v{vM}, v{vM}")
    e("s_nop 0")
    e(f"v_mul_f32 v{vL}, v{vL}, v{vM}")
    for x in dpp:
        e("s_nop 1")
        e(f"v_add_f32_dpp v{vL}, v{vL}, v{vL} {x} row_mask:0xf bank_mask:0xf")
    if cfg.b3:
        if cfg.b3 == 1: e("s_barrier")
        dloads(False); e("s_mov_b64 exec, -1")
    e(f"v_rcp_f32 v{vL}, v{vL}")
    e("s_nop 0")
    e(f"v_mul_f32 v{vM}, v{vM}, v{vL}")
    e("s_nop 1")
    for k in range(4):
        e(f"v_mov_b32_dpp v{vA+8+2*k}, v{vM} quad_perm:[{k},{k},{k},{k}] row_mask:0xf bank_mask:0xf")
    def check(D):
        for k in range(4):
            e(f"v_bitop3_b32 v{CL+k}, v{D+4*k}, v{D+4*k+2}, s{sTAG} bitop3:0x7e")
        e(f"v_or3_b32 v{CL}, v{CL}, v{CL+1}, v{CL+2}")
        e(f"v_bitop3_b32 v{CL}, v{CL}, v{CL+3}, s{sFF} bitop3:0xa8")
        e(f"v_cmp_ne_u32 vcc, 0, v{CL}")
    def final(D):
        stamp(7)
        for k in range(4):
            for j in (0, 2): e(f"v_xor_b32 v{D+4*k+j}, s{sT8}, v{D+4*k+j}")
            for j in range(0, 4, 2):
                if k == 0: e(f"v_pk_mul_f32 {vr(vA+j,2)}, {vr(D+j,2)}, {vr(vA+8,2)} op_sel_hi:[1,0]")
                else: e(f"v_pk_fma_f32 {vr(vA+j,2)}, {vr(D+4*k+j,2)}, {vr(vA+8+2*k,2)}, {vr(vA+j,2)} op_sel_hi:[1,0,1]")
        e("s_nop 0")
        for ror in (4, 8):
            for j in range(4):
                e(f"v_add_f32_dpp v{vA+j}, v{vA+j}, v{vA+j} row_ror:{ror} row_mask:0xf bank_mask:0xf")
        e("s_mov_b32 exec_lo, 0x000f000f"); e("s_mov_b32 exec_hi, 0x000f000f")
        e(f"v_cvt_pk_bf16_f32 v{vS}, v{vA}, v{vA+1}")
        e(f"v_cvt_pk_bf16_f32 v{vS+1}, v{vA+2}, v{vA+3}")
        e(f"global_store_dwordx2 v{vLIM}, {vr(vS,2)}, {sr(sOUT)} {cfg.out_flags}")
    n = cfg.pipe
    for i in range(1, n):
        dloads(False, DS[i]); e("s_mov_b64 exec, -1")
    e("L_data:")
    for i in range(n):
        e(f"s_waitcnt vmcnt({4*(n-1)})")
        check(DS[i])
        e(f"s_cbranch_vccz L_final{i}")
        dloads(False, DS[i]); e("s_mov_b64 exec, -1")
    e(f"s_sub_u32 s{sJ0}, s{sJ0}, 1"); e("s_cbranch_scc0 L_data")
    e("s_branch L_fin")
    for i in range(n):
        e(f"L_final{i}:")
        final(DS[i])
        if i < n - 1: e("s_branch L_post")
    e("L_post:")
    e(f"s_or_b32 s{sT2}, s{sSH}, s{sSPL}"); e("s_cbranch_scc1 L_fin")
    e("s_mov_b64 exec, -1")
    firstp = [min(p for p in range(4) if (cms[t] >> (4 * p)) & 15) for t in range(32)]
    e(f"v_and_b32 v{vT}, 31, v{vLANE}")
    e(f"s_lshl_b32 s{sT2}, s{sH}, 12"); e(f"s_add_u32 s{sT2}, s{sT2}, {HDR + 12 + 1024 * firstp[0]}")
    e(f"v_lshl_add_u32 v{vU}, v{vT}, 4, s{sT2}")
    for t in range(1, 32):
        if firstp[t] != firstp[t - 1]:
            e(f"v_cmp_le_u32 vcc, {t}, v{vT}")
            e(f"v_add_u32 v{vF}, {1024 * (firstp[t] - firstp[t-1])}, v{vU}")
            e("s_nop 0")
            e(f"v_cndmask_b32 v{vU}, v{vU}, v{vF}, vcc")
    e("L_ep:")
    e(f"s_sub_u32 s{sJ0}, s{sJ0}, 1"); e("s_cbranch_scc1 L_fin")
    e(f"global_load_dword v{vF}, v{vU}, {sr(sWS)} sc1")
    e("s_waitcnt vmcnt(0)")
    e(f"v_cmp_ne_u32 vcc, s{sTAG}, v{vF}")
    e("s_nop 1")
    e("s_cbranch_vccnz L_ep")
    e("s_mov_b64 exec, 1")
    e(f"global_store_dword v{vCOL}, v{vW}, {sr(sWS)} offset:1024")
    e("L_fin:")
    if cfg.probe:
        k, mult = cfg.probe
        if k == 8:
            e("s_waitcnt vmcnt(0)"); e(f"s_memrealtime {sr(sST+2)}"); k = 1
        e("s_waitcnt lgkmcnt(0)")
        if k == -2:
            e(f"s_mov_b32 s{sT0}, 0")
            e(f"s_getreg_b32 s{sT1}, hwreg(HW_REG_XCC_ID, 0, 4)")
            e(f"s_lshl_b32 s{sT1}, s{sT1}, 8"); e(f"s_add_u32 s{sT1}, s{sT1}, s{sSPL}"); e(f"s_add_u32 s{sT1}, s{sT1}, s{sWAVE}")
            e(f"s_cmp_lg_u32 s{sT1}, 0x400"); e("s_cbranch_scc1 L_pskip")
            for _ in range(6): e("s_sleep 127")
            e(f"s_getpc_b64 {sr(sEX)}")
            e("L_pc:")
            e(f"s_sub_u32 s{sEX}, s{sEX}, L_pc-{NAME}+0x3000"); e(f"s_subb_u32 s{sEX+1}, s{sEX+1}, 0")
            e("s_mov_b64 exec, 1")
            e(f"v_mov_b32 v{vT}, 0x100"); e(f"global_load_dword v{vU}, v{vT}, {sr(sEX)} sc1"); e("s_waitcnt vmcnt(0)")
            for blk, sgn in ((0x200, "s_add_u32"), (0x2200, "s_sub_u32")):
                for j in range(6):
                    e(f"v_mov_b32 v{vT}, {blk + 256*j}")
                    e(f"s_memtime {sr(sMK)}"); e("s_waitcnt lgkmcnt(0)")
                    e(f"global_load_dword v{vU}, v{vT}, {sr(sEX)} sc1"); e("s_waitcnt vmcnt(0)")
                    e(f"s_memtime {sr(sMK+2)}"); e("s_waitcnt lgkmcnt(0)")
                    e(f"s_sub_u32 s{sT1}, s{sMK+2}, s{sMK}"); e(f"{sgn} s{sT0}, s{sT0}, s{sT1}")
            e(f"s_cmp_lt_i32 s{sT0}, 0"); e(f"s_cselect_b32 s{sT0}, 1500, 0"); e(f"s_add_u32 s{sT0}, s{sT0}, 500")
            e("L_pskip:")
        elif k > 0:
            e(f"s_sub_u32 s{sT0}, s{sST+2*k}, s{sST}")
            e(f"s_cmp_gt_u32 s{sT0}, 3000"); e(f"s_cselect_b32 s{sT0}, 0, s{sT0}")
            e(f"s_mul_i32 s{sT0}, s{sT0}, {mult}")
        else:
            e(f"s_mov_b32 s{sT0}, 0")
        e(f"s_add_u32 s{sT0}, s{sT0}, 4000")
        e("L_probe:")
        e("s_sleep 8")
        e(f"s_memrealtime {sr(sMK)}"); e("s_waitcnt lgkmcnt(0)")
        e(f"s_sub_u32 s{sT1}, s{sMK}, s{sST}")
        e(f"s_cmp_lt_u32 s{sT1}, s{sT0}"); e("s_cbranch_scc1 L_probe")
    if cfg.stamps:
        e("s_mov_b64 exec, -1")
        e("s_waitcnt vmcnt(0)")
        e(f"s_memrealtime {sr(sMK)}")
        e("s_waitcnt lgkmcnt(0)")
        e(f"s_min_u32 s{sWAVE}, s{sWAVE}, 4")
        e(f"s_lshl_b32 s{sT2}, s2, 4"); e(f"s_add_u32 s{sT2}, s{sT2}, s{sWAVE}"); e(f"s_lshl_b32 s{sT2}, s{sT2}, 6")
        e(f"s_add_u32 s{sT2}, s{sT2}, 0x8000000")
        e(f"v_mov_b32 v{vT}, s{sT2}")
        e(f"s_getreg_b32 s{sT3}, hwreg(HW_REG_XCC_ID)")
        for k in range(8): e(f"v_mov_b32 v{vKF+k}, s{sST+2*k}")
        e(f"v_mov_b32 v{vKF+8}, s{sMK}"); e(f"v_mov_b32 v{vKF+9}, s{sT3}"); e(f"v_mov_b32 v{vKF+10}, 0x12345678"); e(f"v_mov_b32 v{vKF+11}, s{sJ0}")
        for k in range(3):
            e(f"global_store_dwordx4 v{vT}, {vr(vKF+4*k)}, {sr(sWS)} offset:{16*k}")
    e("s_endpgm")
    e(".p2align 12")
    stub("sh0")
    vphase("sh", [0, 1, 2, 3], {1: "sh1", 2: "sh2", 3: "sh3"})
    assert 12 <= cfg.defer <= 15
    own = [f"v_mfma_f32_16x16x32_bf16 {vr(vACC+4*hf)}, {vr(vVF+4*(n-12))}, {vr(vVF+32+8*(n&3)+4*hf)}, {vr(vACC+4*hf)}" for n in range(cfg.defer, 16) for hf in range(2)]
    for x in own[:2]: e(x)
    e(f"s_cmp_eq_u32 s{sLAST}, 0")
    for hf in range(2):
        for p in range(1, 4):
            e(f"ds_write_b128 v{vDEP}, {vr(vACC+8*p+4*hf)} offset:{2048*p+1024*hf}")
    for x in own[2:]: e(x)
    e("s_cbranch_scc1 L_next")
    e("s_waitcnt lgkmcnt(0)")
    e("s_barrier")
    stamp(5)
    e("L_reduce:")
    reduce_()
    e("s_cbranch_vccnz L_pubsafe")
    publish(cfg.dst)
    stamp(6)
    fin()
    e("L_pubsafe:")
    publish("sc0 sc1")
    stamp(6)
    fin()
    e("L_respec:")
    e(f"v_max_u32 v{vU}, v{vU}, v{vT}")
    e(f"v_add_u32 v{vNR}, v{vTAB}, v{vU}")
    e(f"v_add_u32 v{vTAB}, v{vTAB}, v{vT}")
    e(f"v_lshlrev_b32 v{vNR}, 12, v{vNR}")
    e(f"v_lshl_add_u32 v{vTAB}, v{vTAB}, 12, s{sH512}")
    e(f"v_lshl_or_b32 v{vCOL}, v{vU}, 16, v{vT}")
    e(f"v_cndmask_b32 v{vTAB}, 0, v{vTAB}, vcc")
    e(f"v_cndmask_b32 v{vNR}, 0, v{vNR}, vcc")
    e(f"s_and_b32 s{sFB}, s{sMK}, vcc_lo")
    e(f"s_add_u32 s{sCNT}, s{sJ1}, 15"); e(f"s_lshr_b32 s{sCNT}, s{sCNT}, 4")
    e(f"s_sub_i32 s{sCNT}, s{sCNT}, s{sT0}"); e(f"s_max_i32 s{sCNT}, s{sCNT}, 1")
    e(f"s_cmp_eq_u32 s{sSH}, 1")
    e(f"s_cselect_b32 s{sFB}, 0, s{sFB}")
    e(f"s_cmp_lg_u32 s{sFB}, 0")
    e(f"s_cselect_b32 s{sCNT}, 32, s{sCNT}")
    e(f"s_mov_b32 s{sI}, -4")
    e("L_next:")
    e(f"s_add_u32 s{sI}, s{sI}, 4")
    e(f"s_lshr_b32 s{sT2}, s{sI}, 3")
    e(f"v_cmp_eq_u32 vcc, s{sT2}, v{vF}")
    e(f"s_cmp_eq_u32 s{sFB}, 0")
    e("s_nop 3")
    e("s_cselect_b64 vcc, -1, vcc")
    e(f"v_cndmask_b32 v{vCTXE}, 0, v{vCTXG}, vcc")
    descr()
    e("s_waitcnt vmcnt(0) lgkmcnt(0)")
    e("s_nop 4")
    for u in range(cfg.dep): kblock(u)
    e("s_branch L_go")
    e("L_rescale:")
    e(f"v_sub_f32 v{vAL}, v{vM}, v{vT}")
    e(f"v_mul_f32 v{vAL}, s{sC}, v{vAL}")
    e(f"v_exp_f32 v{vAL}, v{vAL}")
    e("s_nop 1")
    for p in range(4):
        e(f"v_mov_b32_dpp v{vA+2*p}, v{vAL} row_newbcast:{p} row_mask:0x3 bank_mask:0xf")
        e(f"v_mov_b32_dpp v{vA+2*p}, v{vAL} row_newbcast:{8+p} row_mask:0xc bank_mask:0xf")
    e(f"v_mul_f32 v{vL}, v{vL}, v{vAL}")
    for p in range(4):
        for k in range(0, 8, 2):
            e(f"v_pk_mul_f32 {vr(vACC+8*p+k,2)}, {vr(vACC+8*p+k,2)}, {vr(vA+2*p,2)} op_sel_hi:[1,0]")
    e("s_branch L_rescale_ret")
    e("L_zeroctx:")
    e("s_waitcnt lgkmcnt(0)")
    e("s_mov_b64 exec, vcc")
    e(f"v_mov_b32 v{vCTXG}, 4096")
    for k in range(0, 32, 2): e(f"v_mov_b64 {vr(vQF+k,2)}, 0")
    e("s_mov_b64 exec, -1")
    e("s_nop 0")
    e("s_branch L_zeroctx_ret")

    e(".fill 64, 4, 0xbf810000")
    e('.section .rodata,"a"'); e(".p2align 6"); e(f".amdhsa_kernel {NAME}")
    e(f"  .amdhsa_next_free_vgpr {NV}"); e("  .amdhsa_next_free_sgpr 102"); e(f"  .amdhsa_accum_offset {NV}")
    e("  .amdhsa_group_segment_fixed_size 0"); e("  .amdhsa_kernarg_size 64"); e("  .amdhsa_user_sgpr_count 2")
    e("  .amdhsa_user_sgpr_kernarg_segment_ptr 1"); e("  .amdhsa_system_sgpr_workgroup_id_x 1"); e(".end_amdhsa_kernel")
    out = []
    if cfg.nostore: L = [x for x in L if not x.startswith(f"global_store_dwordx4 v{vL16},")]
    if cfg.nohelp: L = [x for x in L if not (x.startswith(f"global_store_dword v") or x.startswith(f"global_store_dwordx4 v{vGH},") or (x.startswith("global_load_dword") and "sc1" in x))]
    for x in L:
        if x.endswith(":") or x.startswith(".") or x.startswith(";") or x.startswith("  ."): out.append(x)
        else: out.append("    " + x)
    return "\n".join(out) + "\n"

if __name__ == "__main__":
    ap = argparse.ArgumentParser()
    ap.add_argument("out"); ap.add_argument("opts", nargs="*")
    a = ap.parse_args()
    cfg = Cfg()
    for o in a.opts:
        k, v = o.split("=", 1)
        assert hasattr(cfg, k), k
        setattr(cfg, k, eval(v))
    open(a.out, "w").write(gen(cfg))
```
